```python
import torch

def _softmax(x, axis=-1):
    return torch.softmax(x, dim=axis)
def _gelu(x):
    return torch.nn.functional.gelu(x, approximate="tanh")
def _silu(x):
    return torch.nn.functional.silu(x)
def _sigmoid(x):
    return torch.sigmoid(x)
def _layernorm(x, axis=-1, eps=1e-5):
    m = x.mean(dim=axis, keepdim=True)
    v = x.var(dim=axis, keepdim=True, unbiased=False)
    return (x - m) / torch.sqrt(v + eps)
def _scatter_add(tgt, idx, src, axis=0):
    return tgt.clone().index_add_(axis, idx, src)
def _segment_sum(src, seg, n):
    out = torch.zeros((n,) + src.shape[1:], dtype=src.dtype)
    return out.index_add_(0, seg, src)
def _pad(x, pw):
    flat = tuple(v for pair in reversed(pw) for v in pair)
    return torch.nn.functional.pad(x, flat)

kernel_name = 'parallel_sum__sliding_block_cached__glu_gated_geglu__decode'

def setup_inputs():

    _w = (lambda a: (lambda t: t.to(torch.bfloat16) if t.is_floating_point() else t)(torch.as_tensor(a)))
    def _A_setup():
        B, Sq, D = 1, 1, 1024
        Hq, Hkv, Sk, Dh = 32, 4, 32768, 128
        assert Hq % Hkv == 0, (Hq, Hkv)
        return {
            "x": _w((lambda *s: torch.randn(*s, dtype=torch.bfloat16) * 0.05)(B, Sq, D)),
            "k_cache": _w((lambda *s: torch.randn(*s, dtype=torch.bfloat16) * 1.6)(B, Hkv, Sk, Dh)),
            "v_cache": _w((lambda *s: torch.randn(*s, dtype=torch.bfloat16) * 0.8)(B, Hkv, Sk, Dh)),
            "wq": _w((lambda *s: torch.randn(*s, dtype=torch.bfloat16) * 1.6)(D, Hq * Dh) * (D ** -0.5)),
            "wo": _w((lambda *s: torch.randn(*s, dtype=torch.bfloat16) * 0.8)(Hq * Dh, D) * ((Hq * Dh) ** -0.5)),
        }
    _A_in = _A_setup()

    def _B_setup():
        B, S, Dm, Df = 1, 1, 1024, 3584
        return {
            "x": _w((lambda *s: torch.randn(*s, dtype=torch.bfloat16) * 0.05)(B, S, Dm)),
            "w_gate": _w((lambda *s: torch.randn(*s, dtype=torch.bfloat16) * 0.8)(Dm, Df) * (Dm ** -0.5)),
            "w_up": _w((lambda *s: torch.randn(*s, dtype=torch.bfloat16) * 0.8)(Dm, Df) * (Dm ** -0.5)),
            "w_down": _w((lambda *s: torch.randn(*s, dtype=torch.bfloat16) * 0.8)(Df, Dm) * (Df ** -0.5)),
        }
    _B_in = _B_setup()

    return {
        "A_x": _A_in["x"],
        "A_k_cache": _A_in["k_cache"],
        "A_v_cache": _A_in["v_cache"],
        "A_wq": _A_in["wq"],
        "A_wo": _A_in["wo"],
        "B_x": _B_in["x"],
        "B_w_gate": _B_in["w_gate"],
        "B_w_up": _B_in["w_up"],
        "B_w_down": _B_in["w_down"],
    }

def reference(A_x, A_k_cache, A_v_cache, A_wq, A_wo, B_x, B_w_gate, B_w_up, B_w_down):
    def _A_ref(x, k_cache, v_cache, wq, wo):
        B, Sq, D = x.shape
        Hq, Dh = 32, 128
        Hkv, Sk = k_cache.shape[1], k_cache.shape[2]
        W = min(4096, max(256, Sk // 4))
        rep = Hq // Hkv
        q = (lambda x, *d: x.permute(*d))((x @ wq).reshape(B, Sq, Hq, Dh), 0, 2, 1, 3)
        k = (lambda x, n, axis: torch.repeat_interleave(x, n, dim=axis))(k_cache[:, :, Sk - W:, :], rep, axis=1)
        v = (lambda x, n, axis: torch.repeat_interleave(x, n, dim=axis))(v_cache[:, :, Sk - W:, :], rep, axis=1)
        scores = torch.einsum("bhqd,bhkd->bhqk", q, k) * (Dh ** -0.5)
        p = _softmax(scores, axis=-1)
        o = torch.einsum("bhqk,bhkd->bhqd", p, v)
        return (lambda x, *d: x.permute(*d))(o, 0, 2, 1, 3).reshape(B, Sq, Hq * Dh) @ wo

    def _B_ref(x, w_gate, w_up, w_down):
        g = torch.einsum("bsd,df->bsf", x, w_gate)
        u = torch.einsum("bsd,df->bsf", x, w_up)
        h = _gelu(g) * u
        return torch.einsum("bsf,fd->bsd", h, w_down)

    x = A_x
    xn = _layernorm(x, axis=-1)
    return x + _A_ref(xn, A_k_cache, A_v_cache, A_wq, A_wo) + _B_ref(xn, B_w_gate, B_w_up, B_w_down)
```

```python
import re
TRANS = ("v_exp_f32", "v_log_f32", "v_rcp_f32", "v_rsq_f32", "v_sqrt_f32", "v_sin_f32", "v_cos_f32")
def regs_of(op):
    op = op.strip()
    op = op.lstrip("-").replace("abs(", "").replace(")", "").replace("|", "")
    m = re.fullmatch(r"([vsa])(\d+)", op)
    if m: return [(m.group(1), int(m.group(2)))]
    m = re.fullmatch(r"([vsa])\[(\d+):(\d+)\]", op)
    if m: return [(m.group(1), i) for i in range(int(m.group(2)), int(m.group(3)) + 1)]
    if op == "vcc": return [("vcc", 0)]
    if op == "exec": return [("exec", 0)]
    if op == "m0": return [("m0", 0)]
    return []
class Ins:
    def __init__(s, text):
        s.text = text
        t = text.split(";")[0].strip()
        parts = t.split(None, 1)
        s.mn = parts[0]
        rest = parts[1] if len(parts) > 1 else ""
        ops = [o.strip() for o in rest.split(",")]
        ops2 = []
        for o in ops:
            ops2.append(o.split()[0] if o.split() else "")
        s.mods = rest
        s.ops = ops2
        mn = s.mn
        s.mfma = mn.startswith("v_mfma")
        s.valu = mn.startswith("v_") and not s.mfma
        s.vmem = mn.startswith("buffer_") or mn.startswith("global_")
        s.ds = mn.startswith("ds_")
        s.salu = mn.startswith("s_")
        s.dpp = "_dpp" in mn
        s.trans = any(mn.startswith(x) for x in TRANS)
        s.wr = []; s.rd = []
        R = [regs_of(o) for o in ops2]
        flat = lambda l: [r for x in l for r in x]
        if s.mfma:
            s.wr = R[0]; s.rd = flat(R[1:]); s.srcc = R[3]; s.ab = R[1] + R[2]
        elif s.valu:
            if mn.startswith("v_permlane") and "swap" in mn:
                s.wr = flat(R); s.rd = flat(R)
            elif mn.startswith("v_cmp"):
                s.wr = R[0]; s.rd = flat(R[1:])
            elif mn.startswith(("v_add_co", "v_addc_co", "v_sub_co")):
                s.wr = R[0] + R[1]; s.rd = flat(R[2:])
            else:
                s.wr = R[0]; s.rd = flat(R[1:])
                if mn.startswith(("v_fmac", "v_dot2c", "v_writelane")) or s.dpp: s.rd += R[0]
        elif s.vmem:
            if "_load" in mn and " lds" not in (" " + rest):
                s.wr = R[0]; s.rd = flat(R[1:])
            else:
                s.rd = flat(R)
            s.ldsdma = " lds" in (" " + rest) or "load_lds" in mn
            s.widestore = ("store_dwordx4" in mn or "store_dwordx3" in mn)
            s.sdata = R[0] if mn.startswith("buffer_store") else []
        elif s.ds:
            if mn.startswith("ds_read") or "_rtn" in mn or "permute" in mn or "swizzle" in mn:
                s.wr = R[0]; s.rd = flat(R[1:])
            else:
                s.rd = flat(R)
        elif s.salu:
            if mn.startswith(("s_cmp", "s_cbranch", "s_branch", "s_waitcnt", "s_nop", "s_barrier", "s_sleep", "s_setprio", "s_endpgm")):
                s.rd = flat(R)
            else:
                s.wr = R[0]; s.rd = flat(R[1:])
                if "saveexec" in mn: s.wr = s.wr + [("exec", 0)]
        s.states = 1
        if mn == "s_nop": s.states = int(ops2[0], 0) + 1
def need(p, c):
    n = 0
    pw = set(p.wr); cr = set(c.rd); cw = set(c.wr)
    pv = {r for r in pw if r[0] in "va" and r[0] != "vcc"}
    ps = {r for r in pw if r[0] in ("s", "vcc")}
    if p.valu:
        if c.mfma and pv & cr: n = max(n, 2)
        if c.dpp and pv & cr: n = max(n, 2)
        if c.mn.startswith("v_permlane") and pv & cr: n = max(n, 2)
        if c.mn.startswith(("v_readlane", "v_readfirstlane")) and pv & cr: n = max(n, 1)
        if p.trans and c.valu and pv & cr: n = max(n, 1)
        if p.trans and c.mfma and pv & cr: n = max(n, 2)
        if ps:
            crs = set(cr)
            if c.mn.startswith(("v_cndmask", "v_addc", "v_subb")) : crs.add(("vcc", 0)) if "vcc" in c.mods or len(c.ops) < 4 else None
            if c.valu and ps & crs: n = max(n, 4 if c.mn.startswith(("v_readlane", "v_writelane")) else 2)
            if c.vmem and ps & crs: n = max(n, 5)
            if c.salu and ps & crs: n = max(n, 1)
            if c.mn.startswith("s_cbranch_vcc") and ("vcc", 0) in ps: n = max(n, 5)
        if ("exec", 0) in pw: n = max(n, 5)
        if "sdwa" in p.mn or "op_sel" in p.mods:
            if c.valu and pv & (cr | cw): n = max(n, 1)
    if p.mfma:
        passes = 8 if "32x32" in p.mn or "x4_f32" in p.mn else 4
        far = {4: 8, 8: 12}[passes]
        if c.mfma:
            if pv & set(c.ab): n = max(n, far)
            if pv & set(c.srcc):
                if c.srcc != p.wr or c.mn != p.mn: n = max(n, far - 2)
            elif pv & cw: n = max(n, far)
        elif (c.valu or c.vmem or c.ds) and pv & (cr | cw): n = max(n, far)
        if c.valu and set(p.srcc) & cw: n = max(n, {4: 3, 8: 7}[passes])
    if p.salu:
        if ("m0", 0) in pw and c.vmem and getattr(c, "ldsdma", False): n = max(n, 1)
    if p.vmem and getattr(p, "widestore", False):
        if set(p.sdata) & cw: n = max(n, 2)
    return n
class Asm:
    def __init__(s):
        s.lines = []; s.hist = []
    def raw(s, t): s.lines.append(t)
    def label(s, name):
        s.lines.append(name + ":")
    def __call__(s, text):
        for t in text.split("\n"):
            t = t.strip()
            if not t: continue
            if t.endswith(":") or t.startswith((";", ".")):
                s.lines.append(t); continue
            c = Ins(t)
            dist = 0; pad = 0
            for p in reversed(s.hist):
                k = need(p, c) - dist
                if k > pad: pad = k
                dist += p.states
                if dist > 24: break
            while pad > 0:
                k = min(pad, 16)
                nop = Ins(f"s_nop {k-1}")
                s.hist.append(nop); s.lines.append("    " + nop.text); pad -= k
            s.hist.append(c); s.lines.append("    " + t)
            if len(s.hist) > 64: s.hist = s.hist[-40:]
    def fence(s, n=12):
        s(f"s_nop {n-1}")
    def text(s): return "\n".join(s.lines) + "\n"
```

```python
import sys, struct
from asmlib import Asm
NAME = "parallel_sum__sliding_block_cached__glu_gated_geglu__decode"
def f32(x): return "0x%08x" % struct.unpack("<I", struct.pack("<f", x))[0]

MB1 = 0x10000; MBML = 0x20000; MB2 = 0x100000; MBH = 0x200000; MB3 = 0x300000
STAMP = 128 << 20
L_WQ = 0; L_K = 32768; L_V = 49152; L_XN = 65536; L_QP = 67584; L_OV = 68096; L_HV = 68160; L_CTL = 68224
LDS_BYTES = 68352
LOG2E = 1.4426950408889634
SPIN_MAX = 200000

def gen(nt=True, stamps=False, prio=True, kvsig=10, sleep=1):
    a = Asm()
    NT = " nt" if nt else ""
    hdr = open("cdna_kernels/" + NAME + ".s.ref").read().split("\n")
    for l in hdr:
        if l.startswith("; @launch"): break
        a.raw(l)
    a.raw(f"; @launch grid=(256,1,1) block=(512,1,1) lds={LDS_BYTES}")
    a.raw('.amdgcn_target "amdgcn-amd-amdhsa--gfx950"')
    a.raw(".text"); a.raw(f".globl {NAME}_kernel"); a.raw(".p2align 8"); a.raw(f".type {NAME}_kernel,@function"); a.raw(f"{NAME}_kernel:")
    NST = 12
    def stamp(i):
        if stamps: a(f"s_memrealtime s[{64+2*i}:{65+2*i}]")
    def stamp_out():
        if not stamps: return
        a("s_mov_b64 exec, -1")
        a("s_waitcnt lgkmcnt(0)")
        for i in range(2 * NST): a(f"v_writelane_b32 v3, s{64+i}, {i}")
        a(f"s_lshl_b32 s40, s2, 3\ns_add_u32 s40, s40, s3\ns_mul_i32 s40, s40, {NST*8}\ns_add_u32 s40, s40, {STAMP}")
        a(f"v_lshlrev_b32 v4, 2, v1\nv_cmp_gt_u32 vcc, {2*NST}, v1\ns_and_saveexec_b64 s[42:43], vcc")
        a("buffer_store_dword v3, v4, s[4:7], s40 offen")
    def allreduce(op, v, t, rows=True, lo=(8, 4, 2, 1)):
        for k in lo:
            a(f"{op}_dpp v{v}, v{v}, v{v} row_ror:{k} row_mask:0xf bank_mask:0xf")
        if rows:
            a(f"v_mov_b32 v{t}, v{v}\nv_permlane16_swap_b32 v{v}, v{t}\n{op} v{v}, v{v}, v{t}")
            a(f"v_mov_b32 v{t}, v{v}\nv_permlane32_swap_b32 v{v}, v{t}\n{op} v{v}, v{v}, v{t}")
    def layernorm(X, OWN, F, ldsaddr):
        for i in range(8):
            a(f"v_lshlrev_b32 v{F+2*i}, 16, v{X+i}\nv_and_b32 v{F+2*i+1}, 0xffff0000, v{X+i}")
        S, T = F + 16, F + 17
        a(f"v_pk_add_f32 v[{X}:{X+1}], v[{F}:{F+1}], v[{F+2}:{F+3}]")
        a(f"v_pk_add_f32 v[{X+2}:{X+3}], v[{F+4}:{F+5}], v[{F+6}:{F+7}]")
        a(f"v_pk_add_f32 v[{X+4}:{X+5}], v[{F+8}:{F+9}], v[{F+10}:{F+11}]")
        a(f"v_pk_add_f32 v[{X+6}:{X+7}], v[{F+12}:{F+13}], v[{F+14}:{F+15}]")
        a(f"v_pk_add_f32 v[{X}:{X+1}], v[{X}:{X+1}], v[{X+2}:{X+3}]")
        a(f"v_pk_add_f32 v[{X+4}:{X+5}], v[{X+4}:{X+5}], v[{X+6}:{X+7}]")
        a(f"v_pk_add_f32 v[{X}:{X+1}], v[{X}:{X+1}], v[{X+4}:{X+5}]")
        a(f"v_add_f32 v{S}, v{X}, v{X+1}")
        allreduce("v_add_f32", S, T)
        a(f"v_mul_f32 v{S}, {f32(1/1024)}, v{S}")
        M = X + 2
        a(f"v_mov_b32 v{M}, v{S}\nv_mov_b32 v{M+1}, v{S}")
        for i in range(8):
            a(f"v_pk_add_f32 v[{F+2*i}:{F+2*i+1}], v[{F+2*i}:{F+2*i+1}], v[{M}:{M+1}] neg_lo:[0,1] neg_hi:[0,1]")
        a(f"v_pk_mul_f32 v[{X}:{X+1}], v[{F}:{F+1}], v[{F}:{F+1}]")
        a(f"v_pk_mul_f32 v[{X+4}:{X+5}], v[{F+2}:{F+3}], v[{F+2}:{F+3}]")
        for i in range(2, 8):
            d = X if i % 2 == 0 else X + 4
            a(f"v_pk_fma_f32 v[{d}:{d+1}], v[{F+2*i}:{F+2*i+1}], v[{F+2*i}:{F+2*i+1}], v[{d}:{d+1}]")
        a(f"v_pk_add_f32 v[{X}:{X+1}], v[{X}:{X+1}], v[{X+4}:{X+5}]")
        V = X + 6
        a(f"v_add_f32 v{V}, v{X}, v{X+1}")
        allreduce("v_add_f32", V, T)
        a(f"v_mul_f32 v{V}, {f32(1/1024)}, v{V}")
        a(f"v_cvt_pk_bf16_f32 v{T}, v{S}, v{V}")
        a(f"v_lshlrev_b32 v{S}, 16, v{T}")
        a(f"v_and_b32 v{V}, 0xffff0000, v{T}")
        a(f"v_add_f32 v{V}, {f32(1e-5)}, v{V}")
        a(f"v_cvt_pk_bf16_f32 v{V}, v{V}, v{V}\nv_and_b32 v{V}, 0xffff0000, v{V}")
        a(f"v_sqrt_f32 v{V}, v{V}")
        a(f"v_lshlrev_b32 v{F}, 16, v{OWN}\nv_and_b32 v{F+1}, 0xffff0000, v{OWN}")
        a(f"v_cvt_pk_bf16_f32 v{V}, v{V}, v{V}\nv_and_b32 v{V}, 0xffff0000, v{V}")
        a(f"v_rcp_f32 v{V}, v{V}")
        a(f"v_sub_f32 v{F}, v{F}, v{S}\nv_sub_f32 v{F+1}, v{F+1}, v{S}")
        a(f"v_cvt_pk_bf16_f32 v{T}, v{F}, v{F+1}")
        a(f"v_lshlrev_b32 v{F}, 16, v{T}\nv_and_b32 v{F+1}, 0xffff0000, v{T}")
        a(f"v_mul_f32 v{F}, v{F}, v{V}\nv_mul_f32 v{F+1}, v{F+1}, v{V}")
        a(f"v_cvt_pk_bf16_f32 v{T}, v{F}, v{F+1}")
        a(f"ds_write_b32 v{ldsaddr}, v{T}")
    def mk_tags():
        a("s_and_b32 s30, s38, 0xfff\ns_bfe_u32 s31, s38, 0xc000c\ns_and_b32 s32, s39, 0xfff\ns_bfe_u32 s33, s39, 0xc000c")
    def mask_tags(bits):
        m = (1 << bits) - 1
        for i in range(4): a(f"s_and_b32 s{34+i}, s{30+i}, {m}")
    def tag_regs(regs, vmask, bits, rn=True):
        for i, r in enumerate(regs):
            if rn: a(f"v_add_u32 v{r}, {1 << (bits-1)}, v{r}")
        for i, r in enumerate(regs):
            a(f"v_bfi_b32 v{r}, v{vmask}, s{30 + i % 4}, v{r}")
    uid = [0]
    def poll(loads, regs, bits, t, lanemask=None, pre=None):
        uid[0] += 1
        L = f"L_poll{uid[0]}"
        mask_tags(bits)
        a("s_mov_b32 s44, 0")
        if pre is not None:
            for ld in loads: a(ld)
            pre()
            a(f"s_branch {L}_w")
        a.label(L)
        for ld in loads: a(ld)
        a.label(L + "_w")
        a("s_waitcnt vmcnt(0)")
        for i, r in enumerate(regs): a(f"v_xor_b32 v{r}, s{34 + i % 4}, v{r}")
        a(f"v_or3_b32 v{t}, v{regs[0]}, v{regs[1]}, v{regs[2]}")
        rest = regs[3:]
        while len(rest) >= 2:
            a(f"v_or3_b32 v{t}, v{t}, v{rest[0]}, v{rest[1]}"); rest = rest[2:]
        if rest: a(f"v_or_b32 v{t}, v{t}, v{rest[0]}")
        a(f"v_and_b32 v{t}, {(1<<bits)-1}, v{t}")
        a(f"v_cmp_ne_u32 vcc, 0, v{t}")
        a(f"s_and_b64 s[42:43], vcc, {lanemask if lanemask is not None else 'exec'}")
        a(f"s_cbranch_scc0 {L}_ok")
        if sleep: a(f"s_sleep {sleep}")
        a(f"s_add_u32 s44, s44, 1\ns_cmp_lt_u32 s44, {SPIN_MAX}\ns_cbranch_scc1 {L}")
        a.label(L + "_ok")
    def lds_wait(off, val, vaddr0, t):
        uid[0] += 1
        L = f"L_lw{uid[0]}"
        a("s_mov_b32 s44, 0")
        a.label(L)
        a(f"ds_read_b32 v{t}, v{vaddr0} offset:{L_CTL - 65536 + off}")
        a("s_waitcnt lgkmcnt(0)")
        a(f"v_readfirstlane_b32 s45, v{t}")
        a(f"s_cmp_ge_u32 s45, {val}\ns_cbranch_scc1 {L}_ok")
        a("s_sleep 1")
        a(f"s_add_u32 s44, s44, 1\ns_cmp_lt_u32 s44, {SPIN_MAX*8}\ns_cbranch_scc1 {L}")
        a.label(L + "_ok")

    stamp(0)
    a("s_cmp_ge_u32 s2, 256\ns_cbranch_scc1 L_end")
    a("s_load_dwordx2 s[4:5], s[0:1], 88\ns_load_dwordx2 s[8:9], s[0:1], 0")
    a("v_lshrrev_b32 v2, 6, v0\nv_and_b32 v1, 63, v0\nv_readfirstlane_b32 s3, v2")
    if stamps:
        for i in range(1, NST): a(f"s_mov_b64 s[{64+2*i}:{65+2*i}], 0")
    a("s_mov_b32 s6, 0x10000000\ns_mov_b32 s7, 0x20000\ns_mov_b32 s10, 2048\ns_mov_b32 s11, 0x20000")
    a("s_mov_b32 s15, 0x20000\ns_mov_b32 s19, 0x20000\ns_mov_b32 s23, 0x20000\ns_mov_b32 s27, 0x20000")
    a("v_lshlrev_b32 v4, 4, v1\nv_lshlrev_b32 v5, 2, v1\nv_lshrrev_b32 v6, 4, v1\nv_and_b32 v7, 15, v1\nv_mov_b32 v8, 0x10000")
    a(f"s_lshl_b32 s40, s3, 8\ns_add_u32 s40, s40, {L_XN}\nv_add_u32 v9, s40, v5")
    a("s_cmp_ge_u32 s3, 4\ns_cbranch_scc1 L_S")

    if prio: a("s_setprio 3")
    a("s_load_dwordx2 s[12:13], s[0:1], 24\ns_load_dwordx2 s[24:25], s[0:1], 72")
    a("s_mov_b32 s14, 0x800000\ns_mov_b32 s26, 2048")
    a("v_lshrrev_b32 v10, 2, v1\nv_lshlrev_b32 v10, 13, v10\nv_and_b32 v11, 3, v1\nv_lshrrev_b32 v12, 5, v1\nv_lshlrev_b32 v12, 1, v12\nv_xor_b32 v11, v11, v12\nv_lshl_or_b32 v10, v11, 4, v10")
    a("s_lshr_b32 s46, s2, 7\ns_and_b32 s47, s2, 127\ns_lshl_b32 s48, s46, 9\ns_lshl_b32 s40, s3, 7\ns_add_u32 s48, s48, s40")
    a("s_lshl_b32 s49, s48, 1")
    a("s_lshl_b32 s50, s48, 13\ns_lshl_b32 s40, s47, 6\ns_add_u32 s50, s50, s40")
    a("s_lshl_b32 s51, s3, 13")
    a("s_mov_b32 m0, s51")
    a("s_waitcnt lgkmcnt(0)")
    stamp(1)
    X, OWN, F, EV = 16, 24, 28, 26
    a(f"buffer_load_dwordx4 v[{X}:{X+3}], v4, s[8:11], 0 offen")
    a(f"buffer_load_dwordx4 v[{X+4}:{X+7}], v4, s[8:11], 0 offen offset:1024")
    a(f"buffer_load_dword v{OWN}, v5, s[8:11], s49 offen")
    for n in range(8):
        if n == 4: a("s_add_u32 s40, s51, 4096\ns_mov_b32 m0, s40")
        if n: a(f"s_add_u32 s50, s50, {16*8192 - (1024 if n != 4 else -3072)}")
        a(f"buffer_load_dwordx4 v10, s[12:15], s50 offen offset:{(n&3)*1024}{NT} lds")
    a(f"buffer_load_dwordx2 v[{EV}:{EV+1}], off, s[4:7], 0 sc0 sc1")
    a("s_barrier")
    a("v_lshlrev_b32 v11, 9, v6\nv_bfe_u32 v12, v1, 2, 2\nv_lshl_or_b32 v11, v12, 6, v11")
    a("v_bfe_u32 v12, v1, 1, 1\nv_bfe_u32 v13, v1, 4, 1\nv_lshl_or_b32 v12, v13, 1, v12\nv_lshl_or_b32 v11, v12, 4, v11")
    a("v_and_b32 v12, 1, v1\nv_lshl_or_b32 v11, v12, 3, v11\nv_add_u32 v11, s51, v11\nv_xor_b32 v12, 32, v11")
    a(f"s_lshl_b32 s40, s3, 8\ns_add_u32 s40, s40, {L_XN}\nv_lshlrev_b32 v13, 4, v6\nv_add_u32 v13, s40, v13")
    a("s_waitcnt vmcnt(9)")
    stamp(2)
    layernorm(X, OWN, F, 9)
    XB = 48
    for t in range(4): a(f"ds_read_b128 v[{XB+4*t}:{XB+4*t+3}], v13 offset:{64*t}")
    AC = 64
    WF = 72
    for t in range(4):
        a(f"s_waitcnt vmcnt({7-2*t})")
        for h in range(2):
            for e in range(2):
                r = WF + 8*t + 4*h + 2*e
                a(f"ds_read_b64_tr_b16 v[{r}:{r+1}], v{11+h} offset:{2048*t + 256*e}")
        if t:
            a("s_waitcnt lgkmcnt(4)")
            for h in range(2):
                r = WF + 8*(t-1) + 4*h
                c = "0" if t == 1 else f"v[{AC+4*h}:{AC+4*h+3}]"
                a(f"v_mfma_f32_16x16x32_bf16 v[{AC+4*h}:{AC+4*h+3}], v[{r}:{r+3}], v[{XB+4*(t-1)}:{XB+4*(t-1)+3}], {c}")
    a("s_waitcnt lgkmcnt(0)")
    for h in range(2):
        r = WF + 24 + 4*h
        a(f"v_mfma_f32_16x16x32_bf16 v[{AC+4*h}:{AC+4*h+3}], v[{r}:{r+3}], v[{XB+12}:{XB+15}], v[{AC+4*h}:{AC+4*h+3}]")
    a("s_waitcnt vmcnt(0)")
    a(f"v_readfirstlane_b32 s38, v{EV}\nv_readfirstlane_b32 s39, v{EV+1}")
    a("s_add_u32 s38, s38, 0x7f4a7c15\ns_add_u32 s39, s39, 0x9e3779b9")
    mk_tags()
    a(f"s_lshl_b32 s40, s3, 7\ns_add_u32 s40, s40, {L_QP}\nv_lshlrev_b32 v14, 4, v6\nv_lshl_or_b32 v14, v7, 6, v14\nv_add_u32 v14, s40, v14")
    a("v_mov_b32 v16, s38\nv_mov_b32 v17, s39\nv_mov_b32 v18, 1\nv_mov_b32 v19, 1")
    a("v_cmp_eq_u32 vcc, 0, v7")
    for r in range(4): a(f"v_cndmask_b32 v{AC+r}, v{AC+4+r}, v{AC+r}, vcc")
    a("v_cmp_gt_u32 vcc, 2, v7\ns_and_saveexec_b64 s[42:43], vcc")
    a(f"ds_write_b128 v14, v[{AC}:{AC+3}]")
    a("s_mov_b64 exec, 1")
    a(f"ds_write_b128 v8, v[16:19] offset:{L_CTL-65536+16}")
    a(f"ds_add_rtn_u32 v20, v8, v18 offset:{L_CTL-65536}")
    a("s_waitcnt lgkmcnt(0)")
    a("v_readfirstlane_b32 s40, v20")
    a("s_mov_b64 exec, -1")
    stamp(3)
    a("s_cmp_lg_u32 s40, 3\ns_cbranch_scc1 L_qdone")
    a("s_mov_b64 exec, 0xff")
    a(f"v_add_u32 v14, {L_QP}, v4")
    for i in range(4): a(f"ds_read_b128 v[{16+4*i}:{19+4*i}], v14 offset:{128*i}")
    a("v_and_b32 v14, 1, v1\nv_lshlrev_b32 v14, 10, v14\nv_lshrrev_b32 v15, 1, v1\nv_lshl_or_b32 v14, v15, 8, v14")
    a("s_lshr_b32 s40, s47, 5\ns_lshl_b32 s40, s40, 13")
    a("s_and_b32 s41, s47, 3\ns_lshl_b32 s41, s41, 11\ns_add_u32 s40, s40, s41")
    a("s_lshl_b32 s41, s46, 7\ns_add_u32 s40, s40, s41")
    a("s_bfe_u32 s41, s47, 0x30002\ns_lshl_b32 s41, s41, 4\ns_add_u32 s40, s40, s41")
    a(f"s_add_u32 s40, s40, {MB1}")
    a("v_mov_b32 v15, 0xff")
    a("s_waitcnt lgkmcnt(0)")
    a("v_pk_add_f32 v[16:17], v[16:17], v[20:21]\nv_pk_add_f32 v[18:19], v[18:19], v[22:23]")
    a("v_pk_add_f32 v[24:25], v[24:25], v[28:29]\nv_pk_add_f32 v[26:27], v[26:27], v[30:31]")
    a("v_pk_add_f32 v[16:17], v[16:17], v[24:25]\nv_pk_add_f32 v[18:19], v[18:19], v[26:27]")
    tag_regs([16, 17, 18, 19], 15, 8)
    a("buffer_store_dwordx4 v[16:19], v14, s[4:7], s40 offen sc1")
    a("s_mov_b64 exec, -1")
    a.label("L_qdone")
    a("s_nop 1")
    a("s_cmp_eq_u32 s3, 1\ns_cbranch_scc1 L_C1\ns_cmp_eq_u32 s3, 2\ns_cbranch_scc1 L_C2\ns_cmp_eq_u32 s3, 3\ns_cbranch_scc1 L_fin")

    KF = 64; VF = 128; QR = 16; QB = 48
    a(f"s_lshr_b32 s46, s2, 6\ns_and_b32 s47, s2, 63")
    a(f"s_lshl_b32 s50, s46, 13\ns_add_u32 s50, s50, {MB1}\ns_add_u32 s51, s50, 4096")
    qloads = [f"buffer_load_dwordx4 v[{QR+4*i}:{QR+4*i+3}], v4, s[4:7], s{50 + i//4} offen offset:{(i&3)*1024} sc1" for i in range(8)]
    def pre_kv():
        lds_wait(4, 4, 8, 10)
        stamp(4)
        a("v_xor_b32 v10, v6, v7\nv_lshlrev_b32 v10, 4, v10\nv_lshl_or_b32 v10, v7, 8, v10")
        for s in range(1, 4): a(f"v_xor_b32 v{10+s}, {64*s}, v10")
        for T in range(4):
            for s in range(4):
                r = KF + 16*T + 4*s
                a(f"ds_read_b128 v[{r}:{r+3}], v{10+s} offset:{L_K + 4096*T}")
            if T % 2 == 1: a("s_waitcnt lgkmcnt(4)")
        a("v_lshrrev_b32 v14, 2, v1\nv_lshlrev_b32 v14, 8, v14\nv_bfe_u32 v15, v1, 1, 4\nv_lshl_or_b32 v14, v15, 4, v14\nv_and_b32 v15, 1, v1\nv_lshl_or_b32 v14, v15, 3, v14")
        for dt in range(8):
            a(f"v_xor_b32 v15, {32*dt}, v14")
            for u in range(2):
                for e in range(2):
                    r = VF + 8*dt + 4*u + 2*e
                    a(f"ds_read_b64_tr_b16 v[{r}:{r+1}], v15 offset:{L_V + 4096*(2*u+e)}")
            if dt % 2 == 1: a("s_waitcnt lgkmcnt(4)")
        a("s_mov_b32 s44, 0")
    poll(qloads, list(range(QR, QR+32)), 8, 10, pre=pre_kv)
    stamp(5)
    for r in range(QR, QR+32): a(f"v_add_f32_dpp v{r}, v{r}, v{r} row_ror:8 row_mask:0xf bank_mask:0xf")
    for i in range(16): a(f"v_cvt_pk_bf16_f32 v{QB+i}, v{QR+2*i}, v{QR+2*i+1}")
    a("s_waitcnt lgkmcnt(0)")
    SC = 16
    for s in range(4):
        for T in range(4):
            c = "0" if s == 0 else f"v[{SC+4*T}:{SC+4*T+3}]"
            a(f"v_mfma_f32_16x16x32_bf16 v[{SC+4*T}:{SC+4*T+3}], v[{KF+16*T+4*s}:{KF+16*T+4*s+3}], v[{QB+4*s}:{QB+4*s+3}], {c}")
    a("v_cmp_gt_u32 vcc, 8, v7")
    a(f"s_mov_b32 s40, {f32(128**-0.5)}\ns_mov_b32 s41, {f32(LOG2E)}")
    a("v_and_b32 v10, 7, v7\nv_lshlrev_b32 v11, 15, v10\nv_lshrrev_b32 v12, 3, v7\nv_lshl_or_b32 v11, v12, 14, v11\nv_lshl_or_b32 v11, v6, 4, v11")
    a(f"s_lshl_b32 s50, s46, 18\ns_and_b32 s51, s47, 7\ns_lshl_b32 s51, s51, 10\ns_add_u32 s50, s50, s51\ns_lshr_b32 s51, s47, 3\ns_lshl_b32 s51, s51, 7\ns_add_u32 s50, s50, s51\ns_add_u32 s50, s50, {MB2}\ns_add_u32 s51, s50, 8192")
    a("v_lshlrev_b32 v12, 10, v10")
    a(f"s_lshl_b32 s52, s46, 13\ns_lshl_b32 s53, s47, 4\ns_add_u32 s52, s52, s53\ns_add_u32 s52, s52, {MBML}")
    a("v_mov_b32 v13, 0xfff")
    P = 32
    for i in range(8): a(f"v_cndmask_b32 v{P+i}, v{SC+8+i}, v{SC+i}, vcc")
    for i in range(4): a(f"v_cvt_pk_bf16_f32 v{40+i}, v{P+2*i}, v{P+2*i+1}")
    for i in range(4): a(f"v_lshlrev_b32 v{P+2*i}, 16, v{40+i}\nv_and_b32 v{P+2*i+1}, 0xffff0000, v{40+i}")
    for i in range(8): a(f"v_mul_f32 v{P+i}, s40, v{P+i}")
    for i in range(4): a(f"v_cvt_pk_bf16_f32 v{40+i}, v{P+2*i}, v{P+2*i+1}")
    for i in range(4): a(f"v_lshlrev_b32 v{P+2*i}, 16, v{40+i}\nv_and_b32 v{P+2*i+1}, 0xffff0000, v{40+i}")
    ML = 44
    a(f"v_max3_f32 v{ML}, v{P}, v{P+1}, v{P+2}\nv_max3_f32 v14, v{P+3}, v{P+4}, v{P+5}\nv_max3_f32 v{ML}, v{ML}, v{P+6}, v{P+7}\nv_max_f32 v{ML}, v{ML}, v14")
    allreduce("v_max_f32", ML, 14, lo=(8,))
    a(f"v_mul_f32 v14, s41, v{ML}")
    for i in range(8): a(f"v_fma_f32 v{P+i}, v{P+i}, s41, -v14")
    for i in range(8): a(f"v_exp_f32 v{P+i}, v{P+i}")
    PA = 16; PB = 20
    for i in range(4): a(f"v_cvt_pk_bf16_f32 v{PA+i}, v{P+2*i}, v{P+2*i+1}")
    for i in range(4): a(f"v_mov_b32 v{PB+i}, v{PA+i}")
    for i in range(4): a(f"v_mov_b32_dpp v{PB+i}, v{PA+i} row_ror:8 row_mask:0xf bank_mask:0x3")
    for i in range(4): a(f"v_mov_b32_dpp v{PA+i}, v{PA+i} row_ror:8 row_mask:0xf bank_mask:0xc")
    OA = 64
    for dt in range(8):
        a(f"v_mfma_f32_16x16x32_bf16 v[{OA+4*dt}:{OA+4*dt+3}], v[{VF+8*dt}:{VF+8*dt+3}], v[{PA}:{PA+3}], 0")
    a(f"v_add_f32 v{ML+1}, v{P}, v{P+1}\nv_add_f32 v14, v{P+2}, v{P+3}\nv_add_f32 v15, v{P+4}, v{P+5}\nv_add_f32 v24, v{P+6}, v{P+7}")
    for dt in range(8):
        a(f"v_mfma_f32_16x16x32_bf16 v[{OA+4*dt}:{OA+4*dt+3}], v[{VF+8*dt+4}:{VF+8*dt+7}], v[{PB}:{PB+3}], v[{OA+4*dt}:{OA+4*dt+3}]")
    a(f"v_add_f32 v{ML+1}, v{ML+1}, v14\nv_add_f32 v15, v15, v24\nv_add_f32 v{ML+1}, v{ML+1}, v15")
    allreduce("v_add_f32", ML+1, 14, lo=(8,))
    a(f"v_mov_b32 v{ML+2}, v{ML}\nv_mov_b32 v{ML+3}, v{ML+1}")
    tag_regs([ML, ML+1, ML+2, ML+3], 13, 12, rn=False)
    a("s_mov_b64 exec, 0xff")
    a(f"buffer_store_dwordx4 v[{ML}:{ML+3}], v12, s[4:7], s52 offen sc1")
    a("s_mov_b64 exec, -1")
    for d in range(4):
        for r in range(4): a(f"v_cndmask_b32 v{OA+4*d+r}, v{OA+16+4*d+r}, v{OA+4*d+r}, vcc")
        tag_regs([OA+4*d+r for r in range(4)], 13, 12, rn=False)
        a(f"buffer_store_dwordx4 v[{OA+4*d}:{OA+4*d+3}], v11, s[4:7], s{50 + (d>>1)} offen offset:{64*(d&1)} sc1")
    stamp(6)
    a(f"s_lshr_b32 s46, s2, 1\ns_lshl_b32 s50, s46, 13\ns_add_u32 s50, s50, {MB2}\ns_add_u32 s51, s50, 4096")
    a(f"s_lshr_b32 s52, s2, 3\ns_lshl_b32 s52, s52, 10\ns_add_u32 s52, s52, {MBML}")
    OR_ = 20; MLR = 16
    ol = [f"buffer_load_dwordx4 v[{MLR}:{MLR+3}], v4, s[4:7], s52 offen sc1"]
    ol += [f"buffer_load_dwordx4 v[{OR_+4*i}:{OR_+4*i+3}], v4, s[4:7], s{50 + i//4} offen offset:{(i&3)*1024} sc1" for i in range(8)]
    poll(ol, list(range(MLR, MLR+36)), 12, 10)
    stamp(7)
    allreduce("v_max_f32", MLR+2, 10)
    a(f"v_sub_f32 v{MLR}, v{MLR}, v{MLR+2}\nv_mul_f32 v{MLR}, s41, v{MLR}\nv_exp_f32 v{MLR}, v{MLR}")
    a(f"v_mul_f32 v{MLR+1}, v{MLR}, v{MLR+1}")
    W = 56
    for i in range(8):
        a(f"v_mov_b32_dpp v{W+i}, v{MLR} row_newbcast:{i} row_mask:0xf bank_mask:0x3")
    for i in range(8):
        a(f"v_mov_b32_dpp v{W+i}, v{MLR} row_newbcast:{8+i} row_mask:0xf bank_mask:0xc")
    allreduce("v_add_f32", MLR+1, 10)
    a(f"v_rcp_f32 v{MLR+1}, v{MLR+1}")
    for r in range(4): a(f"v_mul_f32 v{64+r}, v{W}, v{OR_+r}")
    for i in range(1, 8):
        for r in range(4): a(f"v_fmac_f32 v{64+r}, v{W+i}, v{OR_+4*i+r}")
    for r in range(4): a(f"v_add_f32_dpp v{64+r}, v{64+r}, v{64+r} row_ror:8 row_mask:0xf bank_mask:0xf")
    for sw in ("v_permlane16_swap_b32", "v_permlane32_swap_b32"):
        for r in range(4): a(f"v_mov_b32 v{68+r}, v{64+r}")
        for r in range(4): a(f"{sw} v{64+r}, v{68+r}")
        for r in range(4): a(f"v_add_f32 v{64+r}, v{64+r}, v{68+r}")
    for r in range(4): a(f"v_mul_f32 v{64+r}, v{64+r}, v{MLR+1}")
    a("v_cvt_pk_bf16_f32 v68, v64, v65\nv_cvt_pk_bf16_f32 v69, v66, v67")
    a(f"v_lshlrev_b32 v10, 3, v1\nv_add_u32 v10, {L_OV}, v10")
    a("s_mov_b64 exec, 0xff")
    a("ds_write_b64 v10, v[68:69]")
    a("s_waitcnt lgkmcnt(0)")
    stamp(8)
    a("s_barrier")
    a("s_branch L_fin")

    a.label("L_C1")
    a("s_cmp_ge_u32 s2, 224\ns_cbranch_scc1 L_C1p")
    lds_wait(8, 4, 8, 10)
    a.label("L_C1p")
    stamp(4)
    a(f"s_lshr_b32 s46, s2, 1\ns_lshl_b32 s50, s46, 12\ns_add_u32 s50, s50, {MBH}")
    a("s_mov_b32 s52, 0x7f7f7f7f\ns_mov_b32 s53, 0x7f7f7f7f")
    hl = [f"buffer_load_dwordx4 v[{16+4*i}:{19+4*i}], v4, s[4:7], s50 offen offset:{i*1024} sc1" for i in range(4)]
    poll(hl, list(range(16, 32)), 10, 10, lanemask="s[52:53]")
    stamp(7)
    a("v_pk_add_f32 v[16:17], v[16:17], v[20:21]\nv_pk_add_f32 v[18:19], v[18:19], v[22:23]")
    a("v_pk_add_f32 v[24:25], v[24:25], v[28:29]\nv_pk_add_f32 v[26:27], v[26:27], v[30:31]")
    a("v_pk_add_f32 v[16:17], v[16:17], v[24:25]\nv_pk_add_f32 v[18:19], v[18:19], v[26:27]")
    for sw in ("v_permlane16_swap_b32", "v_permlane32_swap_b32"):
        for r in range(4): a(f"v_mov_b32 v{20+r}, v{16+r}")
        for r in range(4): a(f"{sw} v{16+r}, v{20+r}")
        for r in range(4): a(f"v_add_f32 v{16+r}, v{16+r}, v{20+r}")
    a("v_cvt_pk_bf16_f32 v20, v16, v17\nv_cvt_pk_bf16_f32 v21, v18, v19")
    a("v_lshlrev_b32 v16, 16, v20\nv_and_b32 v17, 0xffff0000, v20\nv_lshlrev_b32 v18, 16, v21\nv_and_b32 v19, 0xffff0000, v21")
    k0 = 0.7978845608028654; k1 = 0.044715
    a(f"s_mov_b32 s40, {f32(-2*LOG2E*k0*k1)}\nv_mov_b32 v28, {f32(-2*LOG2E*k0)}")
    for r in range(4): a(f"v_mul_f32 v{20+r}, v{16+r}, v{16+r}")
    for r in range(4): a(f"v_fma_f32 v{20+r}, v{20+r}, s40, v28")
    for r in range(4): a(f"v_mul_f32 v{20+r}, v{20+r}, v{16+r}")
    for r in range(4): a(f"v_exp_f32 v{20+r}, v{20+r}")
    for r in range(4): a(f"v_add_f32 v{20+r}, 1.0, v{20+r}")
    for r in range(4): a(f"v_rcp_f32 v{20+r}, v{20+r}")
    for r in range(4): a(f"v_mul_f32 v{20+r}, v{20+r}, v{16+r}")
    a("v_cvt_pk_bf16_f32 v24, v20, v21\nv_cvt_pk_bf16_f32 v25, v22, v23")
    a("v_lshlrev_b32 v20, 16, v24\nv_and_b32 v21, 0xffff0000, v24\nv_lshlrev_b32 v22, 16, v25\nv_and_b32 v23, 0xffff0000, v25")
    for r in range(4): a(f"v_mul_f32_dpp v{20+r}, v{16+r}, v{20+r} row_ror:8 row_mask:0xf bank_mask:0xf")
    a("v_cvt_pk_bf16_f32 v24, v20, v21\nv_cvt_pk_bf16_f32 v25, v22, v23")
    a("v_cmp_gt_u32 vcc, 7, v1")
    a("v_cndmask_b32 v24, 0, v24, vcc\nv_cndmask_b32 v25, 0, v25, vcc")
    a(f"v_lshlrev_b32 v10, 3, v1\nv_add_u32 v10, {L_HV}, v10")
    a("s_mov_b64 exec, 0xff")
    a("ds_write_b64 v10, v[24:25]")
    a("s_waitcnt lgkmcnt(0)")
    stamp(8)
    a("s_barrier")
    a("s_branch L_fin")

    a.label("L_C2")
    a("s_lshl_b32 s46, s2, 3")
    a("buffer_load_dwordx2 v[24:25], off, s[8:11], s46")
    a(f"s_lshl_b32 s50, s2, 11\ns_add_u32 s50, s50, {MB3}")
    a("s_barrier\ns_barrier")
    stamp(9)
    rl = [f"buffer_load_dwordx4 v[{16+4*i}:{19+4*i}], v4, s[4:7], s50 offen offset:{i*1024} sc1" for i in range(2)]
    poll(rl, list(range(16, 24)), 10, 10)
    stamp(10)
    a("v_pk_add_f32 v[16:17], v[16:17], v[20:21]\nv_pk_add_f32 v[18:19], v[18:19], v[22:23]")
    for k in (8, 4, 2, 1):
        for r in range(4): a(f"v_add_f32_dpp v{16+r}, v{16+r}, v{16+r} row_ror:{k} row_mask:0xf bank_mask:0xf")
    for r in range(4): a(f"v_add_f32_dpp v{16+r}, v{16+r}, v{16+r} row_bcast:15 row_mask:0xa bank_mask:0xf")
    for r in range(4): a(f"v_add_f32_dpp v{16+r}, v{16+r}, v{16+r} row_bcast:31 row_mask:0xc bank_mask:0xf")
    a("v_lshlrev_b32 v20, 16, v24\nv_and_b32 v21, 0xffff0000, v24\nv_lshlrev_b32 v22, 16, v25\nv_and_b32 v23, 0xffff0000, v25")
    a("v_pk_add_f32 v[16:17], v[16:17], v[20:21]\nv_pk_add_f32 v[18:19], v[18:19], v[22:23]")
    a("v_cvt_pk_bf16_f32 v20, v16, v17\nv_cvt_pk_bf16_f32 v21, v18, v19")
    a("v_mov_b32 v22, s38\nv_mov_b32 v23, s39")
    a("s_mov_b32 exec_lo, 0\ns_mov_b32 exec_hi, 0x80000000")
    a("buffer_store_dwordx2 v[20:21], off, s[24:27], s46")
    a("s_cmp_lg_u32 s2, 0\ns_cbranch_scc1 L_fin")
    a("buffer_store_dwordx2 v[22:23], off, s[4:7], 0 sc0 sc1")
    a("s_branch L_fin")

    a.label("L_S")
    a("s_load_dwordx2 s[12:13], s[0:1], 48\ns_load_dwordx2 s[28:29], s[0:1], 56")
    a("s_load_dwordx2 s[16:17], s[0:1], 32\ns_load_dwordx2 s[20:21], s[0:1], 64")
    a("s_load_dwordx2 s[24:25], s[0:1], 8\ns_load_dwordx2 s[56:57], s[0:1], 16")
    a("s_mov_b32 s14, 0x700000\ns_mov_b32 s18, 0x800000\ns_mov_b32 s22, 0x700000\ns_mov_b32 s26, 0x2000000\ns_mov_b32 s58, 0x2000000\ns_mov_b32 s59, 0x20000")
    a("v_mov_b32 v16, 0\nv_mov_b32 v17, 0\nv_mov_b32 v18, 0\nv_mov_b32 v19, 0")
    a(f"ds_write_b128 v8, v[16:19] offset:{L_CTL-65536}\nds_write_b128 v8, v[16:19] offset:{L_CTL-65536+16}")
    a("s_sub_u32 s46, s3, 4")
    a("s_and_b32 s47, s2, 7\ns_lshr_b32 s48, s2, 3")
    a("s_lshl_b32 s49, s47, 8")
    a("v_xor_b32 v10, v7, v6\nv_lshlrev_b32 v10, 4, v10\nv_lshl_or_b32 v10, v6, 8, v10")
    for n in range(1, 4): a(f"v_xor_b32 v{10+n}, {64*n}, v10")
    a("v_lshlrev_b32 v14, 1, v6\nv_xor_b32 v14, v7, v14\nv_lshlrev_b32 v14, 4, v14\nv_lshl_or_b32 v14, v6, 8, v14\nv_xor_b32 v15, 128, v14")
    a(f"s_lshr_b32 s50, s2, 6\ns_lshl_b32 s50, s50, 23\ns_and_b32 s40, s2, 63\ns_lshl_b32 s40, s40, 14\ns_add_u32 s50, s50, s40\ns_lshl_b32 s40, s46, 12\ns_add_u32 s50, s50, s40\ns_add_u32 s50, s50, {28672*256}")
    a(f"s_add_u32 s41, s40, {L_K}\ns_mov_b32 m0, s41\ns_add_u32 s41, s40, {L_V}")
    a(f"v_mul_u32_u24 v2, {16*7168}, v6\nv_lshl_add_u32 v2, v7, 4, v2")
    a("s_lshr_b32 s52, s46, 1\ns_lshl_b32 s51, s47, 1\ns_add_u32 s52, s51, s52")
    a(f"s_mul_i32 s51, s52, {64*7168}\ns_lshl_b32 s40, s48, 8\ns_add_u32 s51, s51, s40")
    a("v_lshlrev_b32 v3, 14, v6\nv_lshl_or_b32 v3, v7, 4, v3")
    a("s_lshr_b32 s53, s2, 1\ns_and_b32 s40, s2, 1\ns_lshl_b32 s40, s40, 10\ns_lshl_b32 s54, s46, 8\ns_add_u32 s40, s40, s54")
    a(f"s_lshl_b32 s54, s53, 16\ns_add_u32 s54, s54, s40\ns_mul_i32 s55, s53, {28*2048}\ns_add_u32 s55, s55, s40")
    a("s_bitcmp1_b32 s46, 0")
    a("s_waitcnt lgkmcnt(0)")
    a("s_cselect_b32 s12, s28, s12\ns_cselect_b32 s13, s29, s13")
    stamp(1)
    a(f"buffer_load_dwordx4 v[{X}:{X+3}], v4, s[8:11], 0 offen")
    a(f"buffer_load_dwordx4 v[{X+4}:{X+7}], v4, s[8:11], 0 offen offset:1024")
    a(f"buffer_load_dword v{OWN}, v5, s[8:11], s49 offen")
    a("s_barrier")
    for n in range(4): a(f"buffer_load_dwordx4 v{10+n}, s[24:27], s50 offen offset:{1024*n}{NT} lds")
    a("s_mov_b32 m0, s41")
    for n in range(4): a(f"buffer_load_dwordx4 v{14+(n&1)}, s[56:59], s50 offen offset:{1024*n}{NT} lds")
    a("v_mov_b32 v10, 1")
    a("v_mov_b32 v11, 0x40000000\nv_cmp_eq_u32 vcc, 3, v6\nv_cndmask_b32 v0, v3, v11, vcc")
    GU = 64; WD = 128; WO = 160
    def late_load(k):
        if k < 8:
            if k and k % 2 == 0: a("s_add_u32 s55, s55, 4096")
            a(f"buffer_load_dwordx4 v[{WD+4*k}:{WD+4*k+3}], v{3 if k < 4 else 0}, s[20:23], s55 offen offset:{2048*(k&1)}{NT}")
        else:
            k -= 8
            if k and k % 2 == 0: a("s_add_u32 s54, s54, 4096")
            a(f"buffer_load_dwordx4 v[{WO+4*k}:{WO+4*k+3}], v3, s[16:19], s54 offen offset:{2048*(k&1)}{NT}")
    def kv_signal(n):
        a(f"s_waitcnt vmcnt({n})")
        a("s_mov_b64 exec, 1")
        a(f"ds_add_u32 v8, v10 offset:{L_CTL-65536+4}")
        a("s_mov_b64 exec, -1")
    SEL = 48
    def mk_sel():
        a("v_and_b32 v11, 1, v7\nv_cmp_eq_u32 vcc, 1, v11")
        a("v_mov_b32 v11, 0x0c0c0100\nv_mov_b32 v12, 0x01000c0c\nv_cndmask_b32 v11, v11, v12, vcc")
        a("v_mov_b32 v12, 0x0c0c0302\nv_mov_b32 v13, 0x03020c0c\nv_cndmask_b32 v12, v12, v13, vcc")
        a("v_lshrrev_b32 v13, 1, v7\nv_mov_b32 v14, 0x0c0c0c0c")
        for d in range(4):
            a(f"v_cmp_eq_u32 vcc, {d}, v13")
            a(f"v_cndmask_b32 v{SEL+2*d}, v14, v11, vcc\nv_cndmask_b32 v{SEL+2*d+1}, v14, v12, vcc")
    ACC = 56; AT = 40
    def sp_mfma(xreg, par, breg, idx, first, wait=None):
        at = AT + 4 * (idx & 1)
        for d in range(4): a(f"v_perm_b32 v{at+d}, v{xreg}, v{xreg}, v{SEL+2*d+par}")
        if wait is not None: a(f"s_waitcnt vmcnt({wait})")
        c = "0" if first else f"v[{ACC}:{ACC+3}]"
        a(f"v_mfma_f32_16x16x32_bf16 v[{ACC}:{ACC+3}], v[{at}:{at+3}], v[{breg}:{breg+3}], {c}")
    def get_tags():
        uid[0] += 1
        L = f"L_tg{uid[0]}"
        a("s_mov_b32 s44, 0")
        a.label(L)
        a(f"ds_read_b128 v[12:15], v8 offset:{L_CTL-65536+16}")
        a("s_waitcnt lgkmcnt(0)")
        a("v_readfirstlane_b32 s45, v14\nv_readfirstlane_b32 s38, v12\nv_readfirstlane_b32 s39, v13")
        a(f"s_cmp_lg_u32 s45, 0\ns_cbranch_scc1 {L}_ok")
        a(f"s_sleep 1\ns_add_u32 s44, s44, 1\ns_cmp_lt_u32 s44, {SPIN_MAX*8}\ns_cbranch_scc1 {L}")
        a.label(L + "_ok")
        mk_tags()
    a("s_cmp_ge_u32 s2, 224\ns_cbranch_scc1 L_Snogu")
    for n in range(16):
        if n: a("s_add_u32 s51, s51, 7168")
        a(f"buffer_load_dwordx4 v[{GU+4*n}:{GU+4*n+3}], v2, s[12:15], s51 offen{NT}")
        if n + 1 == kvsig: kv_signal(kvsig)
    stamp(2)
    layernorm(X, OWN, F, 9)
    a(f"s_lshl_b32 s40, s3, 8\ns_lshr_b32 s41, s46, 1\ns_lshl_b32 s41, s41, 7\ns_add_u32 s40, s40, s41\ns_add_u32 s40, s40, {L_XN}")
    a("v_lshlrev_b32 v11, 5, v6\nv_add_u32 v11, s40, v11")
    a("ds_read_b128 v[16:19], v11\nds_read_b128 v[20:23], v11 offset:16")
    mk_sel()
    a("s_waitcnt lgkmcnt(0)")
    for n in range(16):
        sp_mfma(16 + n // 2, n & 1, GU + 4*n, n, n == 0, wait=15)
        late_load(n)
    stamp(3)
    get_tags()
    a("s_lshl_b32 s40, s48, 5\nv_lshl_add_u32 v11, v7, 1, v6\nv_add_u32 v11, s40, v11")
    a("v_mul_u32_u24 v12, 9363, v11\nv_lshrrev_b32 v12, 16, v12\nv_mul_u32_u24 v13, 7, v12\nv_sub_u32 v11, v11, v13")
    a("v_lshlrev_b32 v12, 12, v12\nv_lshl_or_b32 v11, v11, 4, v12")
    a(f"s_lshl_b32 s40, s52, 8\ns_and_b32 s41, s46, 1\ns_lshl_b32 s41, s41, 7\ns_add_u32 s40, s40, s41\ns_add_u32 s40, s40, {MBH}")
    a("v_mov_b32 v9, 0x3ff")
    tag_regs([ACC, ACC+1, ACC+2, ACC+3], 9, 10)
    a("s_mov_b32 exec_hi, 0")
    a(f"buffer_store_dwordx4 v[{ACC}:{ACC+3}], v11, s[4:7], s40 offen sc1")
    a("s_mov_b64 exec, 1")
    a(f"ds_add_u32 v8, v10 offset:{L_CTL-65536+8}")
    a("s_mov_b64 exec, -1")
    stamp(4)
    a("s_branch L_Sfin")
    a.label("L_Snogu")
    for n in range(16):
        late_load(n)
        if n + 1 == kvsig: kv_signal(kvsig)
    mk_sel()
    get_tags()
    a("v_mov_b32 v9, 0x3ff")
    a.label("L_Sfin")
    a("v_lshl_add_u32 v11, v7, 1, v6\nv_lshlrev_b32 v11, 11, v11")
    a(f"s_and_b32 s40, s2, 1\ns_lshl_b32 s40, s40, 2\ns_add_u32 s40, s40, s46\ns_lshl_b32 s40, s40, 16\ns_lshl_b32 s41, s53, 4\ns_add_u32 s40, s40, s41\ns_add_u32 s40, s40, {MB3}")
    a(f"v_lshlrev_b32 v12, 4, v6\nv_add_u32 v12, {L_OV}, v12")
    a("s_barrier")
    stamp(8)
    a(f"ds_read_b128 v[16:19], v12 offset:64\nds_read_b128 v[20:23], v12")
    a("s_waitcnt lgkmcnt(0)")
    for k in range(16):
        sp_mfma(16 + k // 2, k & 1, WD + 4*k, k, k == 0, wait=15 - k)
    stamp(9)
    tag_regs([ACC, ACC+1, ACC+2, ACC+3], 9, 10)
    a("s_mov_b32 exec_hi, 0")
    a(f"buffer_store_dwordx4 v[{ACC}:{ACC+3}], v11, s[4:7], s40 offen sc1")
    a("s_barrier")
    a.label("L_fin")
    stamp(11)
    stamp_out()
    a.label("L_end")
    a("s_endpgm")
    a.raw('.section .rodata,"a"'); a.raw(".p2align 6"); a.raw(f".amdhsa_kernel {NAME}_kernel")
    a.raw("  .amdhsa_next_free_vgpr 192"); a.raw("  .amdhsa_next_free_sgpr 96"); a.raw("  .amdhsa_accum_offset 192")
    a.raw("  .amdhsa_group_segment_fixed_size 0"); a.raw("  .amdhsa_kernarg_size 96"); a.raw("  .amdhsa_user_sgpr_count 2")
    a.raw("  .amdhsa_user_sgpr_kernarg_segment_ptr 1"); a.raw("  .amdhsa_system_sgpr_workgroup_id_x 1"); a.raw(".end_amdhsa_kernel")
    return a.text()

if __name__ == "__main__":
    open("k1.s", "w").write(gen())
    open("k1_st.s", "w").write(gen(stamps=True))
    open("k1_nt0.s", "w").write(gen(nt=False))
```

```python
import sys, struct
from asmlib import Asm
NAME = "parallel_sum__sliding_block_cached__glu_gated_geglu__decode"
def f32(x): return "0x%08x" % struct.unpack("<I", struct.pack("<f", x))[0]

MB1 = 0x10000; MBML = 0x20000; MB2 = 0x100000; MBH = 0x200000; MB3 = 0x300000
STAMP = 128 << 20
L_WQ = 0; L_K = 32768; L_V = 49152; L_XN = 65536; L_QP = 67584; L_OV = 68096; L_HV = 68160; L_CTL = 68224
L_GP = 68352
LDS_BYTES = 70400
CO = L_CTL - 65536
LOG2E = 1.4426950408889634
SPIN_MAX = 200000

def gen(nt=True, stamps=False, prio=True, win=5, sleep=2, dq=10, do=12, dh=12, dr=6, win2=None, barx=True, pf=0, dqs=None, winl=None, rsleep=1, swi=14, tp=0, dn=40, tcnt=4, lx=1, ls=1, winn=None):
    a = Asm()
    NT = " nt" if nt else ""
    hdr = open("cdna_kernels/" + NAME + ".s.ref").read().split("\n")
    for l in hdr:
        if l.startswith("; @launch"): break
        a.raw(l)
    a.raw(f"; @launch grid=(256,1,1) block=(512,1,1) lds={LDS_BYTES}")
    a.raw('.amdgcn_target "amdgcn-amd-amdhsa--gfx950"')
    a.raw(".text"); a.raw(f".globl {NAME}_kernel"); a.raw(".p2align 8"); a.raw(f".type {NAME}_kernel,@function"); a.raw(f"{NAME}_kernel:")
    NST = 15
    def stamp(i):
        if stamps: a(f"s_memrealtime s[{64+2*i}:{65+2*i}]")
    def stamp_out():
        if not stamps: return
        a("s_mov_b64 exec, -1")
        a("s_waitcnt lgkmcnt(0)")
        for i in range(2 * NST): a(f"v_writelane_b32 v3, s{64+i}, {i}")
        a(f"s_lshl_b32 s40, s2, 3\ns_add_u32 s40, s40, s3\ns_mul_i32 s40, s40, {NST*8}\ns_add_u32 s40, s40, {STAMP}")
        a(f"v_lshlrev_b32 v4, 2, v1\nv_cmp_gt_u32 vcc, {2*NST}, v1\ns_and_saveexec_b64 s[42:43], vcc")
        a("buffer_store_dword v3, v4, s[4:7], s40 offen")
    def allreduce(op, v, t, rows=True, lo=(8, 4, 2, 1)):
        for k in lo:
            a(f"{op}_dpp v{v}, v{v}, v{v} row_ror:{k} row_mask:0xf bank_mask:0xf")
        if rows:
            a(f"v_mov_b32 v{t}, v{v}\nv_permlane16_swap_b32 v{v}, v{t}\n{op} v{v}, v{v}, v{t}")
            a(f"v_mov_b32 v{t}, v{v}\nv_permlane32_swap_b32 v{v}, v{t}\n{op} v{v}, v{v}, v{t}")
    def layernorm(X, OWN, F, ldsaddr):
        for i in range(8):
            a(f"v_lshlrev_b32 v{F+2*i}, 16, v{X+i}\nv_and_b32 v{F+2*i+1}, 0xffff0000, v{X+i}")
        S, T = F + 16, F + 17
        a(f"v_pk_add_f32 v[{X}:{X+1}], v[{F}:{F+1}], v[{F+2}:{F+3}]")
        a(f"v_pk_add_f32 v[{X+2}:{X+3}], v[{F+4}:{F+5}], v[{F+6}:{F+7}]")
        a(f"v_pk_add_f32 v[{X+4}:{X+5}], v[{F+8}:{F+9}], v[{F+10}:{F+11}]")
        a(f"v_pk_add_f32 v[{X+6}:{X+7}], v[{F+12}:{F+13}], v[{F+14}:{F+15}]")
        a(f"v_pk_add_f32 v[{X}:{X+1}], v[{X}:{X+1}], v[{X+2}:{X+3}]")
        a(f"v_pk_add_f32 v[{X+4}:{X+5}], v[{X+4}:{X+5}], v[{X+6}:{X+7}]")
        a(f"v_pk_add_f32 v[{X}:{X+1}], v[{X}:{X+1}], v[{X+4}:{X+5}]")
        a(f"v_add_f32 v{S}, v{X}, v{X+1}")
        allreduce("v_add_f32", S, T)
        a(f"v_mul_f32 v{S}, {f32(1/1024)}, v{S}")
        M = X + 2
        a(f"v_mov_b32 v{M}, v{S}\nv_mov_b32 v{M+1}, v{S}")
        for i in range(8):
            a(f"v_pk_add_f32 v[{F+2*i}:{F+2*i+1}], v[{F+2*i}:{F+2*i+1}], v[{M}:{M+1}] neg_lo:[0,1] neg_hi:[0,1]")
        a(f"v_pk_mul_f32 v[{X}:{X+1}], v[{F}:{F+1}], v[{F}:{F+1}]")
        a(f"v_pk_mul_f32 v[{X+4}:{X+5}], v[{F+2}:{F+3}], v[{F+2}:{F+3}]")
        for i in range(2, 8):
            d = X if i % 2 == 0 else X + 4
            a(f"v_pk_fma_f32 v[{d}:{d+1}], v[{F+2*i}:{F+2*i+1}], v[{F+2*i}:{F+2*i+1}], v[{d}:{d+1}]")
        a(f"v_pk_add_f32 v[{X}:{X+1}], v[{X}:{X+1}], v[{X+4}:{X+5}]")
        V = X + 6
        a(f"v_add_f32 v{V}, v{X}, v{X+1}")
        allreduce("v_add_f32", V, T)
        a(f"v_mul_f32 v{V}, {f32(1/1024)}, v{V}")
        a(f"v_cvt_pk_bf16_f32 v{T}, v{S}, v{V}")
        a(f"v_lshlrev_b32 v{S}, 16, v{T}")
        a(f"v_and_b32 v{V}, 0xffff0000, v{T}")
        a(f"v_add_f32 v{V}, {f32(1e-5)}, v{V}")
        a(f"v_cvt_pk_bf16_f32 v{V}, v{V}, v{V}\nv_and_b32 v{V}, 0xffff0000, v{V}")
        a(f"v_sqrt_f32 v{V}, v{V}")
        a(f"v_cvt_pk_bf16_f32 v{V}, v{V}, v{V}\nv_and_b32 v{V}, 0xffff0000, v{V}")
        a(f"v_rcp_f32 v{V}, v{V}")
        norm_own(OWN, F, S, V, T, ldsaddr)
    def norm_own(OWN, F, S, V, T, ldsaddr):
        a(f"v_lshlrev_b32 v{F}, 16, v{OWN}\nv_and_b32 v{F+1}, 0xffff0000, v{OWN}")
        a(f"v_sub_f32 v{F}, v{F}, v{S}\nv_sub_f32 v{F+1}, v{F+1}, v{S}")
        a(f"v_cvt_pk_bf16_f32 v{T}, v{F}, v{F+1}")
        a(f"v_lshlrev_b32 v{F}, 16, v{T}\nv_and_b32 v{F+1}, 0xffff0000, v{T}")
        a(f"v_mul_f32 v{F}, v{F}, v{V}\nv_mul_f32 v{F+1}, v{F+1}, v{V}")
        a(f"v_cvt_pk_bf16_f32 v{T}, v{F}, v{F+1}")
        a(f"ds_write_b32 v{ldsaddr}, v{T}")
    def mk_tags():
        a("s_and_b32 s30, s38, 0xfff\ns_bfe_u32 s31, s38, 0xc000c\ns_and_b32 s32, s39, 0xfff\ns_bfe_u32 s33, s39, 0xc000c")
    def mask_tags(bits):
        m = (1 << bits) - 1
        for i in range(4): a(f"s_and_b32 s{34+i}, s{30+i}, {m}")
    def tag_regs(regs, vmask, bits, rn=True):
        for i, r in enumerate(regs):
            if rn: a(f"v_add_u32 v{r}, {1 << (bits-1)}, v{r}")
        for i, r in enumerate(regs):
            a(f"v_bfi_b32 v{r}, v{vmask}, s{30 + i % 4}, v{r}")
    uid = [0]
    def backoff(n):
        while n > 0:
            k = min(n, 127); a(f"s_sleep {k}"); n -= k
    def poll(loads, regs, bits, t, lanemask=None, pre=None, delay=0, slot=13, sleep=sleep):
        uid[0] += 1
        L = f"L_poll{uid[0]}"
        mask_tags(bits)
        backoff(delay)
        if slot == 13: stamp(14)
        if lanemask is not None: a(f"s_mov_b64 exec, {lanemask}")
        if pre is not None:
            for ld in loads: a(ld)
            pre()
            a("s_mov_b32 s44, 0")
            a(f"s_branch {L}_w")
        a("s_mov_b32 s44, 0")
        a.label(L)
        for ld in loads: a(ld)
        a.label(L + "_w")
        a("s_waitcnt vmcnt(0)")
        for i, r in enumerate(regs): a(f"v_xor_b32 v{r}, s{34 + i % 4}, v{r}")
        a(f"v_or3_b32 v{t}, v{regs[0]}, v{regs[1]}, v{regs[2]}")
        rest = regs[3:]
        while len(rest) >= 2:
            a(f"v_or3_b32 v{t}, v{t}, v{rest[0]}, v{rest[1]}"); rest = rest[2:]
        if rest: a(f"v_or_b32 v{t}, v{t}, v{rest[0]}")
        a(f"v_and_b32 v{t}, {(1<<bits)-1}, v{t}")
        a(f"v_cmp_ne_u32 vcc, 0, v{t}")
        a(f"s_and_b64 exec, vcc, exec")
        a(f"s_cbranch_scc0 {L}_ok")
        if sleep: a(f"s_sleep {sleep}")
        a(f"s_add_u32 s44, s44, 1\ns_cmp_lt_u32 s44, {SPIN_MAX}\ns_cbranch_scc1 {L}")
        a.label(L + "_ok")
        a("s_mov_b64 exec, -1")
        if stamps: a(f"s_mul_i32 s{64+2*slot}, s44, 100\ns_add_u32 s{64+2*slot}, s{64+2*slot}, s64\ns_addc_u32 s{65+2*slot}, s65, 0")
    def lds_wait(off, val, t, slp=True):
        uid[0] += 1
        L = f"L_lw{uid[0]}"
        a("s_mov_b32 s44, 0")
        a.label(L)
        a(f"ds_read_b32 v{t}, v8 offset:{CO + off}")
        a("s_waitcnt lgkmcnt(0)")
        a(f"v_readfirstlane_b32 s45, v{t}")
        a(f"s_cmp_ge_u32 s45, {val}\ns_cbranch_scc1 {L}_ok")
        if slp: a("s_sleep 1")
        a(f"s_add_u32 s44, s44, 1\ns_cmp_lt_u32 s44, {SPIN_MAX*8}\ns_cbranch_scc1 {L}")
        a.label(L + "_ok")

    def gu_ids():
        a("s_lshr_b32 s47, s62, 2\ns_and_b32 s52, s62, 3")
        a("s_max_u32 s48, s47, 1\ns_sub_u32 s48, s48, 1")
        a("s_lshr_b32 s40, s60, 6\ns_mul_i32 s40, s40, 7\ns_add_u32 s48, s48, s40")
    stamp(0)
    a("s_cmp_ge_u32 s2, 256\ns_cbranch_scc1 L_end")
    a("s_load_dwordx2 s[4:5], s[0:1], 88\ns_load_dwordx2 s[8:9], s[0:1], 0")
    a("v_lshrrev_b32 v2, 6, v0\nv_and_b32 v1, 63, v0\nv_readfirstlane_b32 s3, v2")
    if stamps:
        for i in range(1, NST): a(f"s_mov_b64 s[{64+2*i}:{65+2*i}], 0")
    a("s_mov_b32 s6, 0x10000000\ns_mov_b32 s7, 0x20000\ns_mov_b32 s10, 2048\ns_mov_b32 s11, 0x20000")
    a("s_mov_b32 s15, 0x20000\ns_mov_b32 s19, 0x20000\ns_mov_b32 s23, 0x20000\ns_mov_b32 s27, 0x20000")
    a("s_and_b32 s61, s2, 7\ns_lshr_b32 s62, s2, 3\ns_lshl_b32 s60, s61, 5\ns_add_u32 s60, s60, s62")
    a("v_lshlrev_b32 v4, 4, v1\nv_lshlrev_b32 v5, 2, v1\nv_lshrrev_b32 v6, 4, v1\nv_and_b32 v7, 15, v1\nv_mov_b32 v8, 0x10000")
    a(f"s_lshl_b32 s40, s3, 8\ns_add_u32 s40, s40, {L_XN}\nv_add_u32 v9, s40, v5")
    a("s_cmp_ge_u32 s3, 4\ns_cbranch_scc1 L_S")

    if prio: a("s_setprio 3")
    a("s_load_dwordx2 s[12:13], s[0:1], 24\ns_load_dwordx2 s[24:25], s[0:1], 72")
    a("s_mov_b32 s14, 0x800000\ns_mov_b32 s26, 2048")
    a("v_lshrrev_b32 v10, 2, v1\nv_lshlrev_b32 v10, 13, v10\nv_and_b32 v11, 3, v1\nv_lshrrev_b32 v12, 5, v1\nv_lshlrev_b32 v12, 1, v12\nv_xor_b32 v11, v11, v12\nv_lshl_or_b32 v10, v11, 4, v10")
    a("s_lshr_b32 s47, s60, 6\ns_lshl_b32 s47, s47, 3\ns_lshr_b32 s40, s62, 2\ns_add_u32 s47, s47, s40")
    a("s_bfe_u32 s46, s60, 0x10005\ns_and_b32 s56, s62, 3")
    a("s_lshl_b32 s48, s46, 9\ns_lshl_b32 s40, s3, 7\ns_add_u32 s48, s48, s40\ns_mov_b32 s58, s56")
    a("s_lshr_b32 s57, 0xa2222222, s47\ns_and_b32 s57, s57, 1\ns_mov_b32 s63, s57\ns_cbranch_scc0 L_nospec")
    a("s_lshl_b32 s46, s46, 1\ns_lshr_b32 s40, s56, 1\ns_add_u32 s46, s46, s40")
    a("s_and_b32 s56, s56, 1\ns_and_b32 s40, s3, 1\ns_lshl_b32 s40, s40, 1\ns_add_u32 s58, s56, s40")
    a("s_lshl_b32 s48, s46, 8\ns_lshr_b32 s40, s3, 1\ns_lshl_b32 s40, s40, 7\ns_add_u32 s48, s48, s40")
    a.label("L_nospec")
    a("s_lshl_b32 s49, s48, 1")
    a("s_lshl_b32 s50, s48, 13\ns_lshl_b32 s40, s47, 8\ns_add_u32 s50, s50, s40\ns_lshl_b32 s40, s58, 6\ns_add_u32 s50, s50, s40")
    a("s_lshl_b32 s51, s3, 13")
    a("s_mov_b32 m0, s51")
    a("s_waitcnt lgkmcnt(0)")
    stamp(1)
    X, OWN, F, EV = 16, 24, 28, 26
    a(f"buffer_load_dwordx4 v[{X}:{X+3}], v4, s[8:11], 0 offen")
    a(f"buffer_load_dwordx4 v[{X+4}:{X+7}], v4, s[8:11], 0 offen offset:1024")
    a(f"buffer_load_dword v{OWN}, v5, s[8:11], s49 offen")
    for n in range(8):
        if n == 4: a("s_add_u32 s40, s51, 4096\ns_mov_b32 m0, s40")
        if n: a(f"s_add_u32 s50, s50, {16*8192 - (1024 if n != 4 else -3072)}")
        a(f"buffer_load_dwordx4 v10, s[12:15], s50 offen offset:{(n&3)*1024}{NT} lds")
    a(f"buffer_load_dwordx2 v[{EV}:{EV+1}], off, s[4:7], 0 sc0 sc1")
    if not barx: a("s_barrier")
    a("v_lshlrev_b32 v11, 9, v6\nv_bfe_u32 v12, v1, 2, 2\nv_lshl_or_b32 v11, v12, 6, v11")
    a("v_bfe_u32 v12, v1, 1, 1\nv_bfe_u32 v13, v1, 4, 1\nv_lshl_or_b32 v12, v13, 1, v12\nv_lshl_or_b32 v11, v12, 4, v11")
    a("v_and_b32 v12, 1, v1\nv_lshl_or_b32 v11, v12, 3, v11\nv_add_u32 v11, s51, v11\nv_xor_b32 v12, 32, v11")
    a(f"s_lshl_b32 s40, s3, 8\ns_add_u32 s40, s40, {L_XN}\nv_lshlrev_b32 v13, 4, v6\nv_add_u32 v13, s40, v13")
    a("s_waitcnt vmcnt(9)")
    if barx: a("s_barrier")
    stamp(2)
    layernorm(X, OWN, F, 9)
    XB = 48; AC = 64; WF = 72
    for t in range(4): a(f"ds_read_b128 v[{XB+4*t}:{XB+4*t+3}], v13 offset:{64*t}")
    a(f"s_lshl_b32 s40, s3, 7\ns_add_u32 s40, s40, {L_QP}\nv_lshlrev_b32 v14, 4, v6\nv_lshl_or_b32 v14, v7, 6, v14\nv_add_u32 v14, s40, v14")
    a(f"v_add_u32 v3, {L_QP}, v4")
    a("s_lshr_b32 s52, s47, 3\ns_lshl_b32 s52, s52, 14")
    a("s_lshl_b32 s41, s56, 12\ns_add_u32 s52, s52, s41")
    a("s_lshl_b32 s41, s46, 10\ns_add_u32 s52, s52, s41")
    a("s_and_b32 s41, s47, 7\ns_lshl_b32 s41, s41, 7\ns_add_u32 s52, s52, s41")
    a(f"s_add_u32 s52, s52, {MB1}")
    a(f"v_mov_b32 v15, 0xff\nv_or_b32 v18, 1, v{F+16}\nv_mov_b32 v19, v{X+6}\nv_mov_b32 v21, 1")
    a("v_cmp_eq_u32 vcc, 0, v7\nv_cmp_gt_u32 s[54:55], 2, v7")
    for t in range(4):
        a(f"s_waitcnt vmcnt({7-2*t})")
        for h in range(2):
            for e in range(2):
                r = WF + 8*t + 4*h + 2*e
                a(f"ds_read_b64_tr_b16 v[{r}:{r+1}], v{11+h} offset:{2048*t + 256*e}")
        if t:
            a("s_waitcnt lgkmcnt(4)")
            for h in range(2):
                r = WF + 8*(t-1) + 4*h
                c = "0" if t == 1 else f"v[{AC+4*h}:{AC+4*h+3}]"
                a(f"v_mfma_f32_16x16x32_bf16 v[{AC+4*h}:{AC+4*h+3}], v[{r}:{r+3}], v[{XB+4*(t-1)}:{XB+4*(t-1)+3}], {c}")
    a("s_waitcnt vmcnt(0)")
    a(f"v_readfirstlane_b32 s38, v{EV}\nv_readfirstlane_b32 s39, v{EV+1}")
    a("s_waitcnt lgkmcnt(0)")
    for h in range(2):
        r = WF + 24 + 4*h
        a(f"v_mfma_f32_16x16x32_bf16 v[{AC+4*h}:{AC+4*h+3}], v[{r}:{r+3}], v[{XB+12}:{XB+15}], v[{AC+4*h}:{AC+4*h+3}]")
    a("s_add_u32 s38, s38, 0x7f4a7c15\ns_add_u32 s39, s39, 0x9e3779b9")
    mk_tags()
    a("v_mov_b32 v16, s38\nv_mov_b32 v17, s39")
    for r in range(4): a(f"v_cndmask_b32 v{AC+r}, v{AC+4+r}, v{AC+r}, vcc")
    a("s_mov_b64 exec, s[54:55]")
    a(f"ds_write_b128 v14, v[{AC}:{AC+3}]")
    a("s_mov_b64 exec, 1")
    a(f"ds_write_b128 v8, v[16:19] offset:{CO+16}")
    a(f"ds_add_rtn_u32 v20, v8, v21 offset:{CO}")
    a("s_waitcnt lgkmcnt(0)")
    a("v_readfirstlane_b32 s40, v20")
    a("s_mov_b64 exec, 0xff")
    stamp(3)
    a("s_cmp_lg_u32 s40, 3\ns_cbranch_scc1 L_qdone")
    for i in range(4): a(f"ds_read_b128 v[{16+4*i}:{19+4*i}], v3 offset:{128*i}")
    a("s_waitcnt lgkmcnt(0)")
    a("v_pk_add_f32 v[16:17], v[16:17], v[24:25]\nv_pk_add_f32 v[18:19], v[18:19], v[26:27]")
    a("v_pk_add_f32 v[20:21], v[20:21], v[28:29]\nv_pk_add_f32 v[22:23], v[22:23], v[30:31]")
    a("s_cmp_lg_u32 s57, 0\ns_cbranch_scc1 L_qspec")
    a("v_pk_add_f32 v[16:17], v[16:17], v[20:21]\nv_pk_add_f32 v[18:19], v[18:19], v[22:23]")
    tag_regs([16, 17, 18, 19], 15, 8)
    a("buffer_store_dwordx4 v[16:19], v4, s[4:7], s52 offen sc1")
    a("s_branch L_qdone")
    a.label("L_qspec")
    tag_regs(list(range(16, 24)), 15, 8)
    a("s_add_u32 s53, s52, 8192")
    a("buffer_store_dwordx4 v[16:19], v4, s[4:7], s52 offen sc1")
    a("buffer_store_dwordx4 v[20:23], v4, s[4:7], s53 offen sc1")
    a.label("L_qdone")
    a("s_mov_b64 exec, -1")

    KF = 64; VF = 128; QR = 24; QB = 48
    a("s_lshr_b32 s46, s60, 6\ns_and_b32 s47, s60, 63")
    a(f"s_lshl_b32 s50, s46, 14\ns_lshl_b32 s40, s3, 12\ns_add_u32 s50, s50, s40\ns_add_u32 s50, s50, {MB1}")
    a("s_mov_b32 s56, 0xff00\ns_cmp_eq_u32 s46, 3\ns_cselect_b32 s57, 0xff00ff00, s56")
    qloads = [f"buffer_load_dwordx4 v[{QR+4*i}:{QR+4*i+3}], v4, s[4:7], s50 offen offset:{i*1024} sc1" for i in range(2)]
    qloads += ["\n".join(f"v_mov_b32 v{QR+8+i}, s{34+i%4}" for i in range(8))]
    qloads += ["s_and_saveexec_b64 s[58:59], s[56:57]"]
    qloads += [f"buffer_load_dwordx4 v[{QR+4*i}:{QR+4*i+3}], v4, s[4:7], s50 offen offset:{i*1024} sc1" for i in range(2, 4)]
    qloads += ["s_mov_b64 exec, s[58:59]"]
    def pre_kv():
        lds_wait(4, 4, 10)
        stamp(4)
        a("v_xor_b32 v10, v6, v7\nv_lshlrev_b32 v10, 4, v10\nv_lshl_or_b32 v10, v7, 8, v10")
        for s in range(1, 4): a(f"v_xor_b32 v{10+s}, {64*s}, v10")
        for T in range(4):
            for s in range(4):
                r = KF + 16*T + 4*s
                a(f"ds_read_b128 v[{r}:{r+3}], v{10+s} offset:{L_K + 4096*T}")
            if T % 2 == 1: a("s_waitcnt lgkmcnt(4)")
        a("v_lshrrev_b32 v14, 2, v1\nv_lshlrev_b32 v14, 8, v14\nv_bfe_u32 v15, v1, 1, 4\nv_lshl_or_b32 v14, v15, 4, v14\nv_and_b32 v15, 1, v1\nv_lshl_or_b32 v14, v15, 3, v14")
        a("s_lshl_b32 s40, s3, 6\nv_xor_b32 v14, s40, v14\nv_xor_b32 v15, 32, v14")
        for dt in range(2):
            for u in range(2):
                for e in range(2):
                    r = VF + 8*dt + 4*u + 2*e
                    a(f"ds_read_b64_tr_b16 v[{r}:{r+1}], v{14+dt} offset:{L_V + 4096*(2*u+e)}")
        a("v_and_b32 v10, 7, v7\nv_lshlrev_b32 v11, 15, v10\nv_lshrrev_b32 v12, 3, v7\nv_lshl_or_b32 v11, v12, 6, v11\nv_lshl_or_b32 v11, v6, 4, v11")
        a(f"s_lshl_b32 s53, s46, 18\ns_and_b32 s40, s47, 7\ns_lshl_b32 s40, s40, 10\ns_add_u32 s53, s53, s40\ns_lshr_b32 s40, s47, 3\ns_lshl_b32 s40, s40, 7\ns_add_u32 s53, s53, s40\ns_add_u32 s53, s53, s51\ns_add_u32 s53, s53, {MB2}")
        a(f"s_lshl_b32 s52, s60, 7\ns_add_u32 s52, s52, {MBML}")
        a("v_bfe_u32 v2, v1, 1, 2\nv_lshlrev_b32 v2, 7, v2\nv_lshrrev_b32 v3, 3, v1\nv_lshl_or_b32 v2, v3, 4, v2\nv_and_b32 v3, 1, v1\nv_lshl_or_b32 v2, v3, 3, v2\nv_add_u32 v2, s51, v2")
        a("v_lshlrev_b32 v12, 7, v6\nv_lshl_or_b32 v12, v10, 4, v12")
        a("v_mov_b32 v13, 0xfff\nv_mov_b32 v3, 1")
        a(f"s_mov_b32 s40, {f32(128**-0.5)}\ns_mov_b32 s41, {f32(LOG2E)}")
        a("v_cmp_gt_u32 s[54:55], 8, v7")
    if dqs is not None:
        a("s_cmp_lg_u32 s63, 0\ns_cbranch_scc1 L_dqs")
        backoff(dq - dqs)
        a.label("L_dqs")
    poll(qloads, list(range(QR, QR+16)), 8, 10, pre=pre_kv, delay=dq if dqs is None else dqs, slot=12)
    stamp(5)
    a(f"v_pk_add_f32 v[{QR}:{QR+1}], v[{QR}:{QR+1}], v[{QR+8}:{QR+9}]\nv_pk_add_f32 v[{QR+2}:{QR+3}], v[{QR+2}:{QR+3}], v[{QR+10}:{QR+11}]")
    a(f"v_pk_add_f32 v[{QR+4}:{QR+5}], v[{QR+4}:{QR+5}], v[{QR+12}:{QR+13}]\nv_pk_add_f32 v[{QR+6}:{QR+7}], v[{QR+6}:{QR+7}], v[{QR+14}:{QR+15}]")
    a(f"v_pk_add_f32 v[{QR}:{QR+1}], v[{QR}:{QR+1}], v[{QR+4}:{QR+5}]\nv_pk_add_f32 v[{QR+2}:{QR+3}], v[{QR+2}:{QR+3}], v[{QR+6}:{QR+7}]")
    a(f"v_cvt_pk_bf16_f32 v16, v{QR}, v{QR+1}\nv_cvt_pk_bf16_f32 v17, v{QR+2}, v{QR+3}")
    a("ds_write_b64 v2, v[16:17]")
    a("s_mov_b64 exec, 1")
    a(f"ds_add_u32 v8, v3 offset:{CO+12}")
    a("s_mov_b64 exec, -1")
    lds_wait(12, 4, 10, slp=False)
    for s in range(4): a(f"ds_read_b128 v[{QB+4*s}:{QB+4*s+3}], v12 offset:{8192*s}")
    SC = 16
    for s in range(4):
        a(f"s_waitcnt lgkmcnt({3-s})")
        for T in range(4):
            c = "0" if s == 0 else f"v[{SC+4*T}:{SC+4*T+3}]"
            a(f"v_mfma_f32_16x16x32_bf16 v[{SC+4*T}:{SC+4*T+3}], v[{KF+16*T+4*s}:{KF+16*T+4*s+3}], v[{QB+4*s}:{QB+4*s+3}], {c}")
    P = 32
    for i in range(8): a(f"v_cndmask_b32 v{P+i}, v{SC+8+i}, v{SC+i}, s[54:55]")
    for i in range(4): a(f"v_cvt_pk_bf16_f32 v{40+i}, v{P+2*i}, v{P+2*i+1}")
    for i in range(4): a(f"v_lshlrev_b32 v{P+2*i}, 16, v{40+i}\nv_and_b32 v{P+2*i+1}, 0xffff0000, v{40+i}")
    for i in range(8): a(f"v_mul_f32 v{P+i}, s40, v{P+i}")
    for i in range(4): a(f"v_cvt_pk_bf16_f32 v{40+i}, v{P+2*i}, v{P+2*i+1}")
    for i in range(4): a(f"v_lshlrev_b32 v{P+2*i}, 16, v{40+i}\nv_and_b32 v{P+2*i+1}, 0xffff0000, v{40+i}")
    ML = 44
    a(f"v_max3_f32 v{ML}, v{P}, v{P+1}, v{P+2}\nv_max3_f32 v14, v{P+3}, v{P+4}, v{P+5}\nv_max3_f32 v{ML}, v{ML}, v{P+6}, v{P+7}\nv_max_f32 v{ML}, v{ML}, v14")
    allreduce("v_max_f32", ML, 14, lo=(8,))
    a(f"v_mul_f32 v14, s41, v{ML}")
    for i in range(8): a(f"v_fma_f32 v{P+i}, v{P+i}, s41, -v14")
    for i in range(8): a(f"v_exp_f32 v{P+i}, v{P+i}")
    PA = 16; PB = 20
    for i in range(4): a(f"v_cvt_pk_bf16_f32 v{PA+i}, v{P+2*i}, v{P+2*i+1}")
    for i in range(4): a(f"v_mov_b32 v{PB+i}, v{PA+i}")
    for i in range(4): a(f"v_mov_b32_dpp v{PB+i}, v{PA+i} row_ror:8 row_mask:0xf bank_mask:0x3")
    for i in range(4): a(f"v_mov_b32_dpp v{PA+i}, v{PA+i} row_ror:8 row_mask:0xf bank_mask:0xc")
    OA = 64
    for dt in range(2):
        a(f"v_mfma_f32_16x16x32_bf16 v[{OA+4*dt}:{OA+4*dt+3}], v[{VF+8*dt+4}:{VF+8*dt+7}], v[{PB}:{PB+3}], 0")
    for dt in range(2):
        a(f"v_mfma_f32_16x16x32_bf16 v[{OA+4*dt}:{OA+4*dt+3}], v[{VF+8*dt}:{VF+8*dt+3}], v[{PA}:{PA+3}], v[{OA+4*dt}:{OA+4*dt+3}]")
    a(f"v_add_f32 v{ML+1}, v{P}, v{P+1}\nv_add_f32 v14, v{P+2}, v{P+3}\nv_add_f32 v15, v{P+4}, v{P+5}\nv_add_f32 v24, v{P+6}, v{P+7}")
    a(f"v_add_f32 v{ML+1}, v{ML+1}, v14\nv_add_f32 v15, v15, v24\nv_add_f32 v{ML+1}, v{ML+1}, v15")
    for r in range(4): a(f"v_cndmask_b32 v{OA+r}, v{OA+4+r}, v{OA+r}, s[54:55]")
    tag_regs([OA+r for r in range(4)], 13, 12, rn=False)
    a(f"buffer_store_dwordx4 v[{OA}:{OA+3}], v11, s[4:7], s53 offen sc1")
    stamp(6)
    a("s_cmp_eq_u32 s3, 0\ns_cbranch_scc1 L_C0\ns_cmp_eq_u32 s3, 1\ns_cbranch_scc1 L_C1\ns_cmp_eq_u32 s3, 2\ns_cbranch_scc1 L_C2")
    allreduce("v_add_f32", ML+1, 14, lo=(8,))
    a(f"v_mov_b32 v{ML+2}, v{ML}\nv_mov_b32 v{ML+3}, v{ML+1}")
    tag_regs([ML, ML+1, ML+2, ML+3], 13, 12, rn=False)
    a("s_mov_b64 exec, 0xff")
    a(f"buffer_store_dwordx4 v[{ML}:{ML+3}], v4, s[4:7], s52 offen sc1")
    a("s_branch L_fin")
    a.label("L_C0")
    a(f"s_lshr_b32 s46, s60, 1\ns_lshl_b32 s50, s46, 13\ns_add_u32 s50, s50, {MB2}\ns_add_u32 s51, s50, 4096")
    a(f"s_lshr_b32 s52, s60, 6\ns_lshl_b32 s52, s52, 13\ns_bfe_u32 s40, s60, 0x30003\ns_lshl_b32 s40, s40, 4\ns_add_u32 s52, s52, s40\ns_add_u32 s52, s52, {MBML}")
    a("v_lshlrev_b32 v2, 7, v1")
    OR_ = 20; MLR = 16
    ol = [f"buffer_load_dwordx4 v[{MLR}:{MLR+3}], v2, s[4:7], s52 offen sc1"]
    ol += [f"buffer_load_dwordx4 v[{OR_+4*i}:{OR_+4*i+3}], v4, s[4:7], s{50 + i//4} offen offset:{(i&3)*1024} sc1" for i in range(8)]
    lds_wait(40, tcnt, 10)
    poll(ol, list(range(MLR, MLR+36)), 12, 10, delay=do)
    stamp(7)
    allreduce("v_max_f32", MLR+2, 10)
    a(f"v_sub_f32 v{MLR}, v{MLR}, v{MLR+2}\nv_mul_f32 v{MLR}, s41, v{MLR}\nv_exp_f32 v{MLR}, v{MLR}")
    a(f"v_mul_f32 v{MLR+1}, v{MLR}, v{MLR+1}")
    W = 56
    for i in range(8):
        a(f"v_mov_b32_dpp v{W+i}, v{MLR} row_newbcast:{i} row_mask:0xf bank_mask:0x3")
    for i in range(8):
        a(f"v_mov_b32_dpp v{W+i}, v{MLR} row_newbcast:{8+i} row_mask:0xf bank_mask:0xc")
    allreduce("v_add_f32", MLR+1, 10)
    a(f"v_rcp_f32 v{MLR+1}, v{MLR+1}")
    for r in range(4): a(f"v_mul_f32 v{64+r}, v{W}, v{OR_+r}")
    for i in range(1, 8):
        for r in range(4): a(f"v_fmac_f32 v{64+r}, v{W+i}, v{OR_+4*i+r}")
    for r in range(4): a(f"v_add_f32_dpp v{64+r}, v{64+r}, v{64+r} row_ror:8 row_mask:0xf bank_mask:0xf")
    for sw in ("v_permlane16_swap_b32", "v_permlane32_swap_b32"):
        for r in range(4): a(f"v_mov_b32 v{68+r}, v{64+r}")
        for r in range(4): a(f"{sw} v{64+r}, v{68+r}")
        for r in range(4): a(f"v_add_f32 v{64+r}, v{64+r}, v{68+r}")
    for r in range(4): a(f"v_mul_f32 v{64+r}, v{64+r}, v{MLR+1}")
    a("v_cvt_pk_bf16_f32 v68, v64, v65\nv_cvt_pk_bf16_f32 v69, v66, v67")
    a(f"v_lshlrev_b32 v10, 3, v1\nv_add_u32 v10, {L_OV}, v10")
    a("s_mov_b64 exec, 0xff")
    a("ds_write_b64 v10, v[68:69]")
    a(f"ds_write_b32 v8, v3 offset:{CO+36}")
    stamp(8)
    a("s_branch L_fin")

    a.label("L_C1")
    gu_ids()
    a("s_lshl_b32 s40, s48, 5\nv_add_u32 v11, s40, v1")
    a("v_mul_u32_u24 v12, 9363, v11\nv_lshrrev_b32 v12, 16, v12\nv_mul_u32_u24 v13, 7, v12\nv_sub_u32 v11, v11, v13")
    a("v_lshlrev_b32 v12, 10, v12\nv_lshl_or_b32 v11, v11, 4, v12")
    a(f"s_lshl_b32 s49, s52, 8\ns_lshl_b32 s41, s61, 7\ns_and_b32 s41, s41, 128\ns_add_u32 s49, s49, s41\ns_add_u32 s49, s49, {MBH}")
    a(f"v_mov_b32 v9, 0x3ff\nv_add_u32 v12, {L_GP}, v4")
    a(f"s_lshr_b32 s46, s60, 1\ns_lshl_b32 s50, s46, 10\ns_add_u32 s50, s50, {MBH}")
    lds_wait(8, 4, 10)
    a("s_cmp_eq_u32 s47, 1\ns_cbranch_scc1 L_C1p")
    a("s_mov_b32 exec_hi, 0")
    for i in range(4): a(f"ds_read_b128 v[{16+4*i}:{19+4*i}], v12 offset:{512*i}")
    a("s_waitcnt lgkmcnt(0)")
    a("v_pk_add_f32 v[16:17], v[16:17], v[20:21]\nv_pk_add_f32 v[18:19], v[18:19], v[22:23]")
    a("v_pk_add_f32 v[24:25], v[24:25], v[28:29]\nv_pk_add_f32 v[26:27], v[26:27], v[30:31]")
    a("v_pk_add_f32 v[32:33], v[16:17], v[24:25]\nv_pk_add_f32 v[34:35], v[18:19], v[26:27]")
    tag_regs([32, 33, 34, 35], 9, 10)
    a("buffer_store_dwordx4 v[32:35], v11, s[4:7], s49 offen sc1")
    a.label("L_C1p")
    stamp(9)
    a("s_mov_b32 s52, 0x7f7f7f7f\ns_mov_b32 s53, 0x7f7f7f7f")
    lds_wait(40, tcnt, 10)
    hl = [f"buffer_load_dwordx4 v[16:19], v4, s[4:7], s50 offen sc1"]
    poll(hl, list(range(16, 20)), 10, 10, lanemask="s[52:53]", delay=dh)
    stamp(7)
    for sw in ("v_permlane16_swap_b32", "v_permlane32_swap_b32"):
        for r in range(4): a(f"v_mov_b32 v{20+r}, v{16+r}")
        for r in range(4): a(f"{sw} v{16+r}, v{20+r}")
        for r in range(4): a(f"v_add_f32 v{16+r}, v{16+r}, v{20+r}")
    a("v_cvt_pk_bf16_f32 v20, v16, v17\nv_cvt_pk_bf16_f32 v21, v18, v19")
    a("v_lshlrev_b32 v16, 16, v20\nv_and_b32 v17, 0xffff0000, v20\nv_lshlrev_b32 v18, 16, v21\nv_and_b32 v19, 0xffff0000, v21")
    k0 = 0.7978845608028654; k1 = 0.044715
    a(f"s_mov_b32 s40, {f32(-2*LOG2E*k0*k1)}\nv_mov_b32 v28, {f32(-2*LOG2E*k0)}")
    for r in range(4): a(f"v_mul_f32 v{20+r}, v{16+r}, v{16+r}")
    for r in range(4): a(f"v_fma_f32 v{20+r}, v{20+r}, s40, v28")
    for r in range(4): a(f"v_mul_f32 v{20+r}, v{20+r}, v{16+r}")
    for r in range(4): a(f"v_exp_f32 v{20+r}, v{20+r}")
    for r in range(4): a(f"v_add_f32 v{20+r}, 1.0, v{20+r}")
    for r in range(4): a(f"v_rcp_f32 v{20+r}, v{20+r}")
    for r in range(4): a(f"v_mul_f32 v{20+r}, v{20+r}, v{16+r}")
    a("v_cvt_pk_bf16_f32 v24, v20, v21\nv_cvt_pk_bf16_f32 v25, v22, v23")
    a("v_lshlrev_b32 v20, 16, v24\nv_and_b32 v21, 0xffff0000, v24\nv_lshlrev_b32 v22, 16, v25\nv_and_b32 v23, 0xffff0000, v25")
    for r in range(4): a(f"v_mul_f32_dpp v{20+r}, v{16+r}, v{20+r} row_ror:8 row_mask:0xf bank_mask:0xf")
    a("v_cvt_pk_bf16_f32 v24, v20, v21\nv_cvt_pk_bf16_f32 v25, v22, v23")
    a("v_cmp_gt_u32 vcc, 7, v1")
    a("v_cndmask_b32 v24, 0, v24, vcc\nv_cndmask_b32 v25, 0, v25, vcc")
    a(f"v_lshlrev_b32 v10, 3, v1\nv_add_u32 v10, {L_HV}, v10")
    a("s_mov_b64 exec, 0xff")
    a("ds_write_b64 v10, v[24:25]")
    a(f"ds_write_b32 v8, v3 offset:{CO+32}")
    stamp(8)
    a("s_branch L_fin")

    a.label("L_C2")
    a("s_lshl_b32 s46, s60, 3")
    a("buffer_load_dwordx2 v[24:25], off, s[8:11], s46")
    a(f"s_lshl_b32 s50, s60, 4\ns_add_u32 s50, s50, {MB3}\ns_add_u32 s51, s50, 0x40000\nv_lshlrev_b32 v2, 12, v1")
    a("s_barrier")
    stamp(9)
    rl = [f"buffer_load_dwordx4 v[{16+4*i}:{19+4*i}], v2, s[4:7], s{50+i} offen sc1" for i in range(2)]
    poll(rl, list(range(16, 24)), 10, 10, delay=dr, sleep=rsleep)
    stamp(10)
    a("v_pk_add_f32 v[16:17], v[16:17], v[20:21]\nv_pk_add_f32 v[18:19], v[18:19], v[22:23]")
    for k in (8, 4, 2, 1):
        for r in range(4): a(f"v_add_f32_dpp v{16+r}, v{16+r}, v{16+r} row_ror:{k} row_mask:0xf bank_mask:0xf")
    for r in range(4): a(f"v_add_f32_dpp v{16+r}, v{16+r}, v{16+r} row_bcast:15 row_mask:0xa bank_mask:0xf")
    for r in range(4): a(f"v_add_f32_dpp v{16+r}, v{16+r}, v{16+r} row_bcast:31 row_mask:0xc bank_mask:0xf")
    a("v_lshlrev_b32 v20, 16, v24\nv_and_b32 v21, 0xffff0000, v24\nv_lshlrev_b32 v22, 16, v25\nv_and_b32 v23, 0xffff0000, v25")
    a("v_pk_add_f32 v[16:17], v[16:17], v[20:21]\nv_pk_add_f32 v[18:19], v[18:19], v[22:23]")
    a("v_cvt_pk_bf16_f32 v20, v16, v17\nv_cvt_pk_bf16_f32 v21, v18, v19")
    a("v_mov_b32 v22, s38\nv_mov_b32 v23, s39")
    a("s_mov_b32 exec_lo, 0\ns_mov_b32 exec_hi, 0x80000000")
    a("buffer_store_dwordx2 v[20:21], off, s[24:27], s46")
    a("s_cmp_lg_u32 s2, 0\ns_cbranch_scc1 L_fin")
    a("buffer_store_dwordx2 v[22:23], off, s[4:7], 0 sc0 sc1")
    a("s_branch L_fin")

    a.label("L_S")
    a("s_load_dwordx2 s[12:13], s[0:1], 48\ns_load_dwordx2 s[28:29], s[0:1], 56")
    a("s_load_dwordx2 s[16:17], s[0:1], 32\ns_load_dwordx2 s[20:21], s[0:1], 64")
    a("s_load_dwordx2 s[24:25], s[0:1], 8\ns_load_dwordx2 s[56:57], s[0:1], 16")
    a("s_mov_b32 s14, 0x700000\ns_mov_b32 s18, 0x800000\ns_mov_b32 s22, 0x700000\ns_mov_b32 s26, 0x2000000\ns_mov_b32 s58, 0x2000000\ns_mov_b32 s59, 0x20000")
    a("v_mov_b32 v16, 0\nv_mov_b32 v17, 0\nv_mov_b32 v18, 0\nv_mov_b32 v19, 0")
    a(f"ds_write_b128 v8, v[16:19] offset:{CO}\nds_write_b128 v8, v[16:19] offset:{CO+16}\nds_write_b128 v8, v[16:19] offset:{CO+32}")
    a("s_sub_u32 s46, s3, 4")
    gu_ids()
    a("s_lshl_b32 s49, s52, 1\ns_lshr_b32 s40, s46, 1\ns_add_u32 s49, s49, s40\ns_lshl_b32 s49, s49, 8")
    a("s_waitcnt lgkmcnt(0)")
    stamp(1)
    a("s_bitcmp1_b32 s61, 0")
    a("s_cselect_b32 s12, s28, s12\ns_cselect_b32 s13, s29, s13")
    a("v_xor_b32 v10, v7, v6\nv_lshlrev_b32 v10, 4, v10\nv_lshl_or_b32 v10, v6, 8, v10")
    for n in range(1, 4): a(f"v_xor_b32 v{10+n}, {64*n}, v10")
    a("v_lshlrev_b32 v14, 1, v6\nv_xor_b32 v14, v7, v14\nv_lshlrev_b32 v14, 4, v14\nv_lshl_or_b32 v14, v6, 8, v14\nv_xor_b32 v15, 128, v14")
    a(f"s_lshr_b32 s50, s60, 6\ns_lshl_b32 s50, s50, 23\ns_and_b32 s40, s60, 63\ns_lshl_b32 s40, s40, 14\ns_add_u32 s50, s50, s40\ns_lshl_b32 s40, s46, 12\ns_add_u32 s50, s50, s40\ns_add_u32 s50, s50, {28672*256}")
    a(f"s_add_u32 s41, s40, {L_K}\ns_mov_b32 m0, s41\ns_add_u32 s63, s40, {L_V}")
    a(f"v_mul_u32_u24 v2, {16*7168}, v6\nv_lshl_add_u32 v2, v7, 4, v2")
    a(f"s_lshl_b32 s51, s52, 2\ns_add_u32 s51, s51, s46\ns_mul_i32 s51, s51, {64*7168}\ns_lshl_b32 s40, s48, 8\ns_add_u32 s51, s51, s40")
    a("v_lshlrev_b32 v3, 14, v6\nv_lshl_or_b32 v3, v7, 4, v3")
    a("s_lshr_b32 s53, s60, 1\ns_and_b32 s40, s60, 1\ns_lshl_b32 s40, s40, 10\ns_lshl_b32 s54, s46, 8\ns_add_u32 s40, s40, s54")
    a(f"s_lshl_b32 s54, s53, 16\ns_add_u32 s54, s54, s40\ns_mul_i32 s55, s53, {28*2048}\ns_add_u32 s55, s55, s40")
    a("v_mov_b32 v25, 0x40000000\nv_cmp_eq_u32 vcc, 3, v6\nv_cndmask_b32 v0, v3, v25, vcc")
    a("v_mov_b32 v25, 1")
    GU = 64; WD = 128; WO = 160; SEL = 48; ACC = 56; AT = 40
    def mk_sel():
        a("v_and_b32 v60, 1, v7\nv_cmp_eq_u32 vcc, 1, v60")
        a("v_mov_b32 v60, 0x0c0c0100\nv_mov_b32 v61, 0x01000c0c\nv_cndmask_b32 v60, v60, v61, vcc")
        a("v_mov_b32 v61, 0x0c0c0302\nv_mov_b32 v62, 0x03020c0c\nv_cndmask_b32 v61, v61, v62, vcc")
        a("v_lshrrev_b32 v62, 1, v7\nv_mov_b32 v63, 0x0c0c0c0c")
        for d in range(4):
            a(f"v_cmp_eq_u32 vcc, {d}, v62")
            a(f"v_cndmask_b32 v{SEL+2*d}, v63, v60, vcc\nv_cndmask_b32 v{SEL+2*d+1}, v63, v61, vcc")
    mk_sel()
    def sp_perm(xreg, par, idx):
        at = AT + 4 * (idx & 1)
        for d in range(4): a(f"v_perm_b32 v{at+d}, v{xreg}, v{xreg}, v{SEL+2*d+par}")
    def sp_mfma(breg, idx, first):
        at = AT + 4 * (idx & 1)
        c = "0" if first else f"v[{ACC}:{ACC+3}]"
        a(f"v_mfma_f32_16x16x32_bf16 v[{ACC}:{ACC+3}], v[{at}:{at+3}], v[{breg}:{breg+3}], {c}")
    def get_tags():
        uid[0] += 1
        L = f"L_tg{uid[0]}"
        a("s_mov_b32 s44, 0")
        a.label(L)
        a(f"ds_read_b128 v[60:63], v8 offset:{CO+16}")
        a("s_waitcnt lgkmcnt(0)")
        a("v_readfirstlane_b32 s45, v62\nv_readfirstlane_b32 s38, v60\nv_readfirstlane_b32 s39, v61")
        a(f"s_bitcmp1_b32 s45, 0\ns_cbranch_scc1 {L}_ok")
        a(f"s_sleep 1\ns_add_u32 s44, s44, 1\ns_cmp_lt_u32 s44, {SPIN_MAX*8}\ns_cbranch_scc1 {L}")
        a.label(L + "_ok")
        mk_tags()
    def signal(off):
        a("s_mov_b64 exec, 1")
        a(f"ds_add_u32 v8, v25 offset:{CO+off}")
        a("s_mov_b64 exec, -1")
    def issue(op):
        kind, n = op
        if kind == "K": a(f"buffer_load_dwordx4 v{10+n}, s[24:27], s50 offen offset:{1024*n}{NT} lds")
        elif kind == "V":
            if n == 0: a("s_mov_b32 m0, s63")
            a(f"buffer_load_dwordx4 v{14+(n&1)}, s[56:59], s50 offen offset:{1024*n}{NT} lds")
        elif kind == "G":
            if n: a("s_add_u32 s51, s51, 7168")
            a(f"buffer_load_dwordx4 v[{GU+4*n}:{GU+4*n+3}], v2, s[12:15], s51 offen{NT}")
        elif kind == "D":
            if n and n % 2 == 0: a("s_add_u32 s55, s55, 4096")
            a(f"buffer_load_dwordx4 v[{WD+4*n}:{WD+4*n+3}], v{3 if n < 4 else 0}, s[20:23], s55 offen offset:{2048*(n&1)}{NT}")
        elif kind == "O":
            if n and n % 2 == 0: a("s_add_u32 s54, s54, 4096")
            a(f"buffer_load_dwordx4 v[{WO+4*n}:{WO+4*n+3}], v3, s[16:19], s54 offen offset:{2048*(n&1)}{NT}")
    def stream(with_gu, win):
        ops = [("K", n) for n in range(4)] + [("V", n) for n in range(4)]
        if with_gu: ops += [("G", n) for n in range(16)]
        ops += [("D", n) for n in range(8)] + [("O", n) for n in range(8)]
        issued = []
        def landed(op):
            kind, n = op
            if op == ("V", 3):
                signal(4); stamp(3)
                get_tags()
                if with_gu:
                    a("v_and_b32 v62, 0xffff0000, v62")
                    norm_own(OWN, F, 62, 63, F + 2, 9)
                    a(f"s_lshl_b32 s40, s3, 8\ns_and_b32 s41, s46, 1\ns_lshl_b32 s41, s41, 7\ns_add_u32 s40, s40, s41\ns_add_u32 s40, s40, {L_XN}")
                    a("v_lshlrev_b32 v26, 5, v6\nv_add_u32 v26, s40, v26")
                    a("ds_read_b128 v[16:19], v26\nds_read_b128 v[20:23], v26 offset:16")
                    a(f"s_lshl_b32 s40, s46, 9\ns_add_u32 s40, s40, {L_GP}\nv_lshl_add_u32 v11, v7, 1, v6\nv_lshlrev_b32 v11, 4, v11\nv_add_u32 v11, s40, v11")
                    a("s_waitcnt lgkmcnt(0)")
                    sp_perm(16, 0, 0)
                a("v_mov_b32 v9, 0x3ff")
            if kind == "G":
                sp_mfma(GU + 4*n, n, n == 0)
                if n < 15: sp_perm(16 + (n+1) // 2, (n+1) & 1, n + 1)
                else:
                    a("s_mov_b32 exec_hi, 0")
                    a(f"ds_write_b128 v11, v[{ACC}:{ACC+3}]")
                    signal(8)
                    stamp(4)
        nl = 0
        for i, op in enumerate(ops):
            w = win if (win2 is None or i < swi) else win2
            tg = []
            while nl <= i - w:
                tg.append(ops[nl]); nl += 1
            if tg:
                k = len(issued) - 1 - issued.index(tg[-1])
                a(f"s_waitcnt vmcnt({k})")
            issue(op); issued.append(op)
            for t_ in tg: landed(t_)
            if with_gu and i == len(ops) - 1 - tp: signal(40)
        while nl < len(ops) and ops[nl][0] in "KVG":
            k = len(issued) - 1 - issued.index(ops[nl])
            a(f"s_waitcnt vmcnt({k})")
            landed(ops[nl]); nl += 1
        if not with_gu:
            signal(8)
            backoff(dn)
            signal(40)
    a("s_barrier")
    stamp(2)
    a(f"buffer_load_dword v{OWN}, v5, s[8:11], s49 offen")
    if pf:
        a("s_getpc_b64 s[40:41]")
        a.label("L_pc")
        a(f"s_sub_u32 s40, s40, L_pc-{NAME}_kernel\ns_subb_u32 s41, s41, 0")
        a("s_lshl_b32 s42, s62, 2\ns_add_u32 s42, s42, s46\ns_and_b32 s42, s42, 15\ns_lshl_b32 s42, s42, 10")
        a(f"s_min_u32 s42, s42, L_end-{NAME}_kernel-1020")
        a("s_and_b32 s42, s42, 0xfffffffc")
        a("v_add_u32 v26, s42, v4")
        a("global_load_dwordx4 v[28:31], v26, s[40:41]")
    a("s_cmp_eq_u32 s47, 1\ns_cbranch_scc1 L_Snogu")
    if winl is not None:
        if lx: a("s_cmp_ge_u32 s61, 4\ns_cbranch_scc1 L_Slate")
        if ls:
            a("s_lshr_b32 s40, s60, 6\ns_lshl_b32 s40, s40, 3\ns_add_u32 s40, s40, s47\ns_bitcmp1_b32 0xa2222222, s40\ns_cbranch_scc1 L_Slate")
    stream(True, win)
    a("s_branch L_Sfin")
    if winl is not None:
        a.label("L_Slate")
        stream(True, winl)
        a("s_branch L_Sfin")
    a.label("L_Snogu")
    stream(False, winn or win)
    a.label("L_Sfin")
    stamp(5)
    a("v_lshl_add_u32 v11, v7, 1, v6\nv_lshlrev_b32 v11, 4, v11")
    a(f"s_lshl_b32 s40, s60, 11\ns_lshl_b32 s41, s46, 9\ns_add_u32 s40, s40, s41\ns_add_u32 s40, s40, {MB3}")
    a(f"v_lshlrev_b32 v12, 4, v6\nv_add_u32 v12, {L_OV}, v12")
    for half, (foff, doff) in enumerate(((32, 64), (36, 0))):
        uid[0] += 1
        L = f"L_fw{uid[0]}"
        a("s_mov_b32 s44, 0")
        a.label(L)
        a(f"ds_read_b32 v13, v8 offset:{CO + foff}")
        a(f"ds_read_b128 v[16:19], v12 offset:{doff}")
        a("s_waitcnt lgkmcnt(0)")
        a("v_readfirstlane_b32 s45, v13")
        a(f"s_cmp_lg_u32 s45, 0\ns_cbranch_scc1 {L}_ok")
        a(f"s_sleep 1\ns_add_u32 s44, s44, 1\ns_cmp_lt_u32 s44, {SPIN_MAX*8}\ns_cbranch_scc1 {L}")
        a.label(L + "_ok")
        stamp(7 + half)
        for k in range(8 * half, 8 * half + 8):
            sp_perm(16 + (k & 7) // 2, k & 1, k)
            a(f"s_waitcnt vmcnt({15-k})")
            sp_mfma(WD + 4*k, k, k == 0)
    stamp(9)
    tag_regs([ACC, ACC+1, ACC+2, ACC+3], 9, 10)
    a("s_mov_b32 exec_hi, 0")
    a(f"buffer_store_dwordx4 v[{ACC}:{ACC+3}], v11, s[4:7], s40 offen sc1")
    a("s_barrier")
    a.label("L_fin")
    stamp(11)
    stamp_out()
    a.label("L_end")
    a("s_endpgm")
    a.raw('.section .rodata,"a"'); a.raw(".p2align 6"); a.raw(f".amdhsa_kernel {NAME}_kernel")
    a.raw("  .amdhsa_next_free_vgpr 192"); a.raw("  .amdhsa_next_free_sgpr 100"); a.raw("  .amdhsa_accum_offset 192")
    a.raw("  .amdhsa_group_segment_fixed_size 0"); a.raw("  .amdhsa_kernarg_size 96"); a.raw("  .amdhsa_user_sgpr_count 2")
    a.raw("  .amdhsa_user_sgpr_kernarg_segment_ptr 1"); a.raw("  .amdhsa_system_sgpr_workgroup_id_x 1"); a.raw(".end_amdhsa_kernel")
    return a.text()

if __name__ == "__main__":
    import sys
    for spec in sys.argv[1:]:
        nm, _, kv = spec.partition(":")
        kw = {}
        for p in kv.split(","):
            if p:
                k, v = p.split("="); kw[k] = int(v)
        open(nm + ".s", "w").write(gen(**kw))
        open(nm + "_st.s", "w").write(gen(stamps=True, **kw))
```

```python
import sys, struct
from asmlib import Asm
NAME = "parallel_sum__sliding_block_cached__glu_gated_geglu__decode"
def f32(x): return "0x%08x" % struct.unpack("<I", struct.pack("<f", x))[0]

MQ = 0x10000; MML = 0x20000; MH = 0x30000; MO = 0x40000; GD = 0xC0000; M3 = 0x180000
STAMP = 128 << 20
L_K = 0; L_V = 32768; B = 65536
XN = 0; GP = 1024; QBI = 3072; SCX = 5120; OV = 7168; CO = 7296
LDS_BYTES = B + 7360
C_G, C_K, C_V, C_QB, C_REC, C_SC, C_OV, C_TR = 0, 4, 8, 12, 16, 32, 36, 40
LOG2E = 1.4426950408889634
SPIN_MAX = 200000

def gen(nt=True, stamps=False, wa=6, wf=6, sleep=2, dq=0, do=0, dh=0, dr=12, rsleep=1, local=1, gper=4, cst=10, wkv=None, ww=None, tlb=0, rot=1):
    a = Asm()
    NT = " nt" if nt else ""
    hdr = open("cdna_kernels/" + NAME + ".s.ref").read().split("\n")
    for l in hdr:
        if l.startswith("; @launch"): break
        a.raw(l)
    a.raw(f"; @launch grid=(256,1,1) block=(512,1,1) lds={LDS_BYTES}")
    a.raw('.amdgcn_target "amdgcn-amd-amdhsa--gfx950"')
    a.raw(".text"); a.raw(f".globl {NAME}_kernel"); a.raw(".p2align 8"); a.raw(f".type {NAME}_kernel,@function"); a.raw(f"{NAME}_kernel:")
    NST = 15
    uid = [0]
    def stamp(i):
        if stamps: a(f"s_memrealtime s[{64+2*i}:{65+2*i}]")
    def stamp_out():
        if not stamps: return
        a("s_mov_b64 exec, -1")
        a("s_waitcnt lgkmcnt(0)")
        for i in range(2 * NST): a(f"v_writelane_b32 v3, s{64+i}, {i}")
        a(f"s_lshl_b32 s40, s2, 3\ns_add_u32 s40, s40, s3\ns_mul_i32 s40, s40, {NST*8}\ns_add_u32 s40, s40, {STAMP}")
        a(f"v_lshlrev_b32 v4, 2, v1\nv_cmp_gt_u32 vcc, {2*NST}, v1\ns_and_saveexec_b64 s[42:43], vcc")
        a("buffer_store_dword v3, v4, s[4:7], s40 offen")
    def swapred(op, kind, regs, tmp):
        for i, r in enumerate(regs): a(f"v_mov_b32 v{tmp+i}, v{r}")
        for i, r in enumerate(regs): a(f"v_permlane{kind}_swap_b32 v{r}, v{tmp+i}")
        for i, r in enumerate(regs): a(f"{op} v{r}, v{r}, v{tmp+i}")
    def allreduce(op, v, t, lo=(8, 4, 2, 1)):
        for k in lo: a(f"{op}_dpp v{v}, v{v}, v{v} row_ror:{k} row_mask:0xf bank_mask:0xf")
        swapred(op, 16, [v], t); swapred(op, 32, [v], t)
    def unpack(dst, src):
        a(f"v_lshlrev_b32 v{dst}, 16, v{src}\nv_and_b32 v{dst+1}, 0xffff0000, v{src}")
    def mk_tags():
        a("s_and_b32 s30, s38, 0xfff\ns_bfe_u32 s31, s38, 0xc000c\ns_and_b32 s32, s39, 0xfff\ns_bfe_u32 s33, s39, 0xc000c")
    def tag_regs(regs, vmask, bits, rn=True):
        if rn:
            for r in regs: a(f"v_add_u32 v{r}, {1 << (bits-1)}, v{r}")
        for i, r in enumerate(regs): a(f"v_bfi_b32 v{r}, v{vmask}, s{30 + i % 4}, v{r}")
    def backoff(n):
        while n > 0:
            k = min(n, 127); a(f"s_sleep {k}"); n -= k
    def publish(vd, voff, soff):
        if local:
            a(f"buffer_store_dwordx4 v[{vd}:{vd+3}], v{voff}, s[4:7], s{soff} offen")
        a(f"s_add_u32 s45, s{soff}, {GD}")
        a(f"buffer_store_dwordx4 v[{vd}:{vd+3}], v{voff}, s[4:7], s45 offen sc1")
    def poll(loads, bases, regs, bits, t, lanemask=None, pre=None, delay=0, slot=13, slp=None, dual=True):
        uid[0] += 1
        L = f"L_poll{uid[0]}"
        slp = sleep if slp is None else slp
        m = (1 << bits) - 1
        for i in range(4): a(f"s_and_b32 s{34+i}, s{30+i}, {m}")
        def issue():
            for vd, vo, bi, imm in loads:
                a(f"buffer_load_dwordx4 v[{vd}:{vd+3}], v{vo}, s[4:7], s{wk[bi]} offen offset:{imm} sc1")
        if dual:
            wk = [46 + i for i in range(len(bases))]
            for i, b in enumerate(bases):
                a(f"s_mov_b32 s{wk[i]}, s{b}" if local else f"s_add_u32 s{wk[i]}, s{b}, {GD}")
        else: wk = bases
        backoff(delay)
        if slot == 13: stamp(14)
        if lanemask is not None: a(f"s_mov_b64 exec, {lanemask}")
        if pre is not None:
            issue(); pre()
            a("s_mov_b32 s44, 0")
            a(f"s_branch {L}_w")
        a("s_mov_b32 s44, 0")
        a.label(L)
        issue()
        a.label(L + "_w")
        a("s_waitcnt vmcnt(0)")
        for i, r in enumerate(regs): a(f"v_xor_b32 v{r}, s{34 + i % 4}, v{r}")
        a(f"v_or3_b32 v{t}, v{regs[0]}, v{regs[1]}, v{regs[2]}")
        rest = regs[3:]
        while len(rest) >= 2:
            a(f"v_or3_b32 v{t}, v{t}, v{rest[0]}, v{rest[1]}"); rest = rest[2:]
        if rest: a(f"v_or_b32 v{t}, v{t}, v{rest[0]}")
        a(f"v_and_b32 v{t}, {m}, v{t}")
        a(f"v_cmp_ne_u32 vcc, 0, v{t}")
        a("s_and_b64 exec, vcc, exec")
        a(f"s_cbranch_scc0 {L}_ok")
        if slp: a(f"s_sleep {slp}")
        a("s_add_u32 s44, s44, 1")
        if dual and local:
            a(f"s_and_b32 s45, s44, {gper-1}\ns_cmp_eq_u32 s45, {gper-1}\ns_cselect_b32 s45, {GD}, 0")
            for i, b in enumerate(bases): a(f"s_add_u32 s{wk[i]}, s{b}, s45")
        a(f"s_cmp_lt_u32 s44, {SPIN_MAX}\ns_cbranch_scc1 {L}")
        a.label(L + "_ok")
        a("s_mov_b64 exec, -1")
        if stamps: a(f"s_mul_i32 s{64+2*slot}, s44, 100\ns_add_u32 s{64+2*slot}, s{64+2*slot}, s64\ns_addc_u32 s{65+2*slot}, s65, 0")
    def lds_wait(off, val, t, slp=1, extra=None):
        uid[0] += 1
        L = f"L_lw{uid[0]}"
        a("s_mov_b32 s44, 0")
        a.label(L)
        a(f"ds_read_b32 v{t}, v8 offset:{CO + off}")
        if extra: a(extra)
        a("s_waitcnt lgkmcnt(0)")
        a(f"v_readfirstlane_b32 s45, v{t}")
        a(f"s_cmp_ge_u32 s45, {val}\ns_cbranch_scc1 {L}_ok")
        if slp: a(f"s_sleep {slp}")
        a(f"s_add_u32 s44, s44, 1\ns_cmp_lt_u32 s44, {SPIN_MAX*8}\ns_cbranch_scc1 {L}")
        a.label(L + "_ok")
    def signal(off):
        a("s_mov_b64 exec, 1")
        a(f"ds_add_u32 v8, v9 offset:{CO+off}")
        a("s_mov_b64 exec, -1")
    def get_rec(r):
        uid[0] += 1
        L = f"L_tg{uid[0]}"
        a("s_mov_b32 s44, 0")
        a.label(L)
        a(f"ds_read_b128 v[{r}:{r+3}], v8 offset:{CO+C_REC}")
        a("s_waitcnt lgkmcnt(0)")
        a(f"v_readfirstlane_b32 s45, v{r+2}\nv_readfirstlane_b32 s38, v{r}\nv_readfirstlane_b32 s39, v{r+1}")
        a(f"s_bitcmp1_b32 s45, 0\ns_cbranch_scc1 {L}_ok")
        a(f"s_sleep 1\ns_add_u32 s44, s44, 1\ns_cmp_lt_u32 s44, {SPIN_MAX*8}\ns_cbranch_scc1 {L}")
        a.label(L + "_ok")
        mk_tags()
    def f_ids():
        a("s_sub_u32 s40, s62, 24\ns_lshr_b32 s40, s40, 1\ns_add_u32 s40, s40, 24\ns_cmp_lt_u32 s62, 24\ns_cselect_b32 s55, s62, s40")
        a("s_and_b32 s40, s62, 25\ns_cmp_eq_u32 s40, 24\ns_cselect_b32 s54, 1, 0")

    stamp(0)
    a("s_cmp_ge_u32 s2, 256\ns_cbranch_scc1 L_end")
    a("v_lshrrev_b32 v2, 6, v0\nv_and_b32 v1, 63, v0")
    a("s_load_dwordx2 s[4:5], s[0:1], 88\ns_load_dwordx2 s[8:9], s[0:1], 0")
    a("v_readfirstlane_b32 s3, v2")
    a("s_and_b32 s61, s2, 7\ns_lshr_b32 s62, s2, 3")
    a("v_lshrrev_b32 v6, 4, v1\nv_and_b32 v7, 15, v1\nv_lshlrev_b32 v4, 4, v1")
    a("s_cmp_ge_u32 s3, 4\ns_cbranch_scc1 L_S")
    def common():
        if stamps:
            for i in range(1, NST): a(f"s_mov_b64 s[{64+2*i}:{65+2*i}], 0")
        a("s_mov_b32 s6, 0x10000000\ns_mov_b32 s7, 0x20000\ns_mov_b32 s10, 2048\ns_mov_b32 s11, 0x20000")
        a("s_lshl_b32 s60, s61, 5\ns_add_u32 s60, s60, s62")
        a(f"v_mov_b32 v8, {B}\nv_mov_b32 v9, 1")
    a("s_setprio 3")
    common()
    a("s_cmp_lg_u32 s3, 0\ns_cbranch_scc1 L_Cn0")
    X, F, EV = 16, 28, 24
    a("s_waitcnt lgkmcnt(0)")
    a(f"buffer_load_dwordx4 v[{X}:{X+3}], v4, s[8:11], 0 offen")
    a(f"buffer_load_dwordx4 v[{X+4}:{X+7}], v4, s[8:11], 0 offen offset:1024")
    a(f"buffer_load_dwordx2 v[{EV}:{EV+1}], off, s[4:7], 0 sc0 sc1")
    a("s_barrier")
    a("s_waitcnt vmcnt(1)")
    stamp(2)
    for i in range(8): unpack(F + 2*i, X + i)
    S, T = F + 16, F + 17
    for i in range(4): a(f"v_pk_add_f32 v[{X+2*i}:{X+2*i+1}], v[{F+4*i}:{F+4*i+1}], v[{F+4*i+2}:{F+4*i+3}]")
    a(f"v_pk_add_f32 v[{X}:{X+1}], v[{X}:{X+1}], v[{X+2}:{X+3}]\nv_pk_add_f32 v[{X+4}:{X+5}], v[{X+4}:{X+5}], v[{X+6}:{X+7}]")
    a(f"v_pk_add_f32 v[{X}:{X+1}], v[{X}:{X+1}], v[{X+4}:{X+5}]\nv_add_f32 v{S}, v{X}, v{X+1}")
    allreduce("v_add_f32", S, T)
    a(f"v_mul_f32 v{S}, {f32(1/1024)}, v{S}")
    M = X + 2
    a(f"v_mov_b32 v{M}, v{S}\nv_mov_b32 v{M+1}, v{S}")
    for i in range(8): a(f"v_pk_add_f32 v[{F+2*i}:{F+2*i+1}], v[{F+2*i}:{F+2*i+1}], v[{M}:{M+1}] neg_lo:[0,1] neg_hi:[0,1]")
    a(f"v_pk_mul_f32 v[{X}:{X+1}], v[{F}:{F+1}], v[{F}:{F+1}]\nv_pk_mul_f32 v[{X+4}:{X+5}], v[{F+2}:{F+3}], v[{F+2}:{F+3}]")
    for i in range(2, 8):
        d = X if i % 2 == 0 else X + 4
        a(f"v_pk_fma_f32 v[{d}:{d+1}], v[{F+2*i}:{F+2*i+1}], v[{F+2*i}:{F+2*i+1}], v[{d}:{d+1}]")
    V = X + 6
    a(f"v_pk_add_f32 v[{X}:{X+1}], v[{X}:{X+1}], v[{X+4}:{X+5}]\nv_add_f32 v{V}, v{X}, v{X+1}")
    allreduce("v_add_f32", V, T)
    a(f"v_mul_f32 v{V}, {f32(1/1024)}, v{V}")
    a(f"v_cvt_pk_bf16_f32 v{T}, v{S}, v{V}")
    a(f"v_lshl_or_b32 v{EV+2}, v{T}, 16, 1")
    a(f"v_and_b32 v{V}, 0xffff0000, v{T}\nv_add_f32 v{V}, {f32(1e-5)}, v{V}")
    a(f"v_cvt_pk_bf16_f32 v{V}, v{V}, v{V}\nv_and_b32 v{V}, 0xffff0000, v{V}\nv_sqrt_f32 v{V}, v{V}")
    a(f"v_cvt_pk_bf16_f32 v{V}, v{V}, v{V}\nv_and_b32 v{V}, 0xffff0000, v{V}\nv_rcp_f32 v{EV+3}, v{V}")
    a("s_waitcnt vmcnt(0)")
    a(f"v_add_u32 v{EV}, 0x7f4a7c15, v{EV}\nv_add_u32 v{EV+1}, 0x9e3779b9, v{EV+1}")
    a("s_mov_b64 exec, 1")
    a(f"ds_write_b128 v8, v[{EV}:{EV+3}] offset:{CO+C_REC}")
    a("s_mov_b64 exec, -1")
    stamp(3)
    a("s_branch L_Cj")
    a.label("L_Cn0")
    a("v_mov_b32 v16, 0\nv_mov_b32 v17, 0\nv_mov_b32 v18, 0\nv_mov_b32 v19, 0")
    a(f"ds_write_b128 v8, v[16:19] offset:{CO}\nds_write_b128 v8, v[16:19] offset:{CO+16}\nds_write_b128 v8, v[16:19] offset:{CO+32}")
    a("s_waitcnt lgkmcnt(0)")
    a("s_barrier")
    if tlb:
        a("s_cmp_lg_u32 s3, 3\ns_cbranch_scc1 L_Cj")
        a("s_load_dwordx4 s[12:15], s[0:1], 8\ns_load_dwordx2 s[16:17], s[0:1], 32\ns_load_dwordx4 s[20:23], s[0:1], 64")
        a(f"s_lshl_b32 s40, s61, 23\ns_lshl_b32 s41, s62, 15\ns_add_u32 s40, s40, s41\ns_add_u32 s40, s40, {28672*256}")
        a(f"s_lshr_b32 s41, s60, 1\ns_lshl_b32 s42, s41, 17\ns_sub_u32 s41, s41, 64\ns_mul_i32 s43, s41, {56*2048}\ns_lshl_b32 s44, s60, 3")
        a("s_waitcnt lgkmcnt(0)")
        a("s_cmp_ge_u32 s61, 4\ns_cbranch_scc1 L_tf")
        if tlb & 1: a("s_load_dword s48, s[12:13], s40\ns_load_dword s49, s[14:15], s40\ns_load_dword s50, s[16:17], s42")
        if tlb & 2:
            a("s_mov_b64 exec, 1\nv_mov_b32 v16, s40\nv_mov_b32 v17, s42")
            if tlb & 1: a("s_waitcnt lgkmcnt(0)")
            a("global_load_dword v18, v16, s[12:13] nt\nglobal_load_dword v19, v16, s[14:15] nt\nglobal_load_dword v20, v17, s[16:17] nt")
        a("s_branch L_tj")
        a.label("L_tf")
        if tlb & 1: a("s_load_dword s50, s[20:21], s43")
        if tlb & 2:
            a("s_mov_b64 exec, 1\nv_mov_b32 v17, s43")
            if tlb & 1: a("s_waitcnt lgkmcnt(0)")
            a("global_load_dword v20, v17, s[20:21] nt")
        a.label("L_tj")
        if tlb & 1: a("s_load_dword s51, s[22:23], s44")
        if tlb & 2:
            a("v_mov_b32 v17, s44")
            if tlb & 1: a("s_waitcnt lgkmcnt(0)")
            a("global_load_dword v21, v17, s[22:23]")
        a("s_waitcnt vmcnt(0) lgkmcnt(0)\ns_mov_b64 exec, -1")
    a.label("L_Cj")
    a("s_cmp_ge_u32 s61, 4\ns_cbranch_scc1 L_CF")

    def gemv1_reduce(voff, soff, bits, vmask):
        a("s_mov_b32 exec_hi, 0")
        a(f"v_add_u32 v12, {B+GP}, v4")
        for i in range(4): a(f"ds_read_b128 v[{16+4*i}:{19+4*i}], v12 offset:{512*i}")
        a("s_waitcnt lgkmcnt(0)")
        a("v_pk_add_f32 v[16:17], v[16:17], v[20:21]\nv_pk_add_f32 v[18:19], v[18:19], v[22:23]")
        a("v_pk_add_f32 v[24:25], v[24:25], v[28:29]\nv_pk_add_f32 v[26:27], v[26:27], v[30:31]")
        a("v_pk_add_f32 v[32:33], v[16:17], v[24:25]\nv_pk_add_f32 v[34:35], v[18:19], v[26:27]")
        tag_regs([32, 33, 34, 35], vmask, bits)
        publish(32, voff, soff)
        a("s_mov_b64 exec, -1")
    KF = 64; VF = 96; QR = 40; QB = 16
    a(f"s_lshl_b32 s50, s61, 14\ns_add_u32 s50, s50, {MQ}")
    a("s_and_b32 s40, s62, 3\ns_lshl_b32 s40, s40, 10\ns_add_u32 s51, s50, s40\ns_lshr_b32 s40, s62, 2\ns_lshl_b32 s40, s40, 7\ns_add_u32 s51, s51, s40")
    a("s_lshl_b32 s40, s3, 12\ns_add_u32 s50, s50, s40")
    a("v_lshrrev_b32 v11, 3, v1\nv_lshlrev_b32 v11, 12, v11\nv_and_b32 v10, 7, v1\nv_lshl_or_b32 v11, v10, 4, v11\nv_mov_b32 v13, 0xff")
    get_rec(16)
    lds_wait(C_G, 4, 10)
    a("s_cmp_lg_u32 s3, 1\ns_cbranch_scc1 L_Aq")
    gemv1_reduce(11, 51, 8, 13)
    stamp(9)
    a.label("L_Aq")
    def pre_k():
        a("v_bfe_u32 v2, v1, 1, 2\nv_lshlrev_b32 v2, 7, v2\nv_lshrrev_b32 v3, 3, v1\nv_lshl_or_b32 v2, v3, 4, v2\nv_and_b32 v3, 1, v1\nv_lshl_or_b32 v2, v3, 3, v2")
        a(f"s_lshl_b32 s40, s3, 9\ns_add_u32 s40, s40, {B}\nv_add_u32 v2, s40, v2")
        a("v_and_b32 v10, 7, v7\nv_lshlrev_b32 v12, 7, v6\nv_lshl_or_b32 v12, v10, 4, v12")
        a("v_lshrrev_b32 v5, 3, v7")
        a("v_lshl_add_u32 v3, v5, 3, v12\nv_add_u32 v3, s40, v3")
        a(f"v_add_u32 v12, {B}, v12\nv_lshl_add_u32 v0, v5, 10, v12")
        a("v_lshlrev_b32 v11, 14, v10\nv_lshl_or_b32 v11, v5, 6, v11\nv_lshl_or_b32 v11, v6, 4, v11")
        a(f"s_lshl_b32 s53, s61, 17\ns_lshl_b32 s40, s3, 12\ns_add_u32 s53, s53, s40\ns_and_b32 s40, s62, 3\ns_lshl_b32 s40, s40, 10\ns_add_u32 s53, s53, s40\ns_lshr_b32 s40, s62, 2\ns_lshl_b32 s40, s40, 7\ns_add_u32 s53, s53, s40\ns_add_u32 s53, s53, {MO}")
        a(f"s_lshl_b32 s52, s60, 7\ns_add_u32 s52, s52, {MML}")
        a("v_mov_b32 v13, 0xfff\nv_cmp_gt_u32 s[54:55], 8, v7")
        a("v_lshrrev_b32 v14, 2, v1\nv_lshlrev_b32 v14, 8, v14\nv_bfe_u32 v15, v1, 1, 4\nv_lshl_or_b32 v14, v15, 4, v14\nv_and_b32 v15, 1, v1\nv_lshl_or_b32 v14, v15, 3, v14")
        a("s_lshl_b32 s40, s3, 6\nv_xor_b32 v14, s40, v14\nv_xor_b32 v15, 32, v14")
        a("v_xor_b32 v56, v6, v7\nv_lshlrev_b32 v56, 4, v56\nv_lshl_or_b32 v56, v7, 8, v56\ns_lshl_b32 s40, s3, 13\nv_add_u32 v56, s40, v56")
        for s in range(1, 4): a(f"v_xor_b32 v{56+s}, {64*s}, v56")
        a(f"s_mov_b32 s40, {f32(128**-0.5)}\ns_mov_b32 s41, {f32(LOG2E)}")
    poll([(QR + 4*p, 4, 0, 1024*p) for p in range(4)], [50], list(range(QR, QR+16)), 8, 10, pre=pre_k, delay=dq, slot=12)
    stamp(5)
    a(f"v_pk_add_f32 v[{QR}:{QR+1}], v[{QR}:{QR+1}], v[{QR+4}:{QR+5}]\nv_pk_add_f32 v[{QR+2}:{QR+3}], v[{QR+2}:{QR+3}], v[{QR+6}:{QR+7}]")
    a(f"v_pk_add_f32 v[{QR+8}:{QR+9}], v[{QR+8}:{QR+9}], v[{QR+12}:{QR+13}]\nv_pk_add_f32 v[{QR+10}:{QR+11}], v[{QR+10}:{QR+11}], v[{QR+14}:{QR+15}]")
    a(f"v_pk_add_f32 v[{QR}:{QR+1}], v[{QR}:{QR+1}], v[{QR+8}:{QR+9}]\nv_pk_add_f32 v[{QR+2}:{QR+3}], v[{QR+2}:{QR+3}], v[{QR+10}:{QR+11}]")
    a(f"v_cvt_pk_bf16_f32 v16, v{QR}, v{QR+1}\nv_cvt_pk_bf16_f32 v17, v{QR+2}, v{QR+3}")
    a(f"ds_write_b64 v2, v[16:17] offset:{QBI}")
    signal(C_QB)
    lds_wait(C_K, 4, 10)
    stamp(4)
    for T in range(2):
        for s in range(4):
            r = KF + 16*T + 4*s
            a(f"ds_read_b128 v[{r}:{r+3}], v{56+s} offset:{L_K + 4096*T}")
    lds_wait(C_QB, 4, 10, slp=0)
    for s in range(4): a(f"ds_read_b128 v[{QB+4*s}:{QB+4*s+3}], v12 offset:{QBI + 512*s}")
    SC = 32
    for s in range(4):
        a(f"s_waitcnt lgkmcnt({3-s})")
        for T in range(2):
            c = "0" if s == 0 else f"v[{SC+4*T}:{SC+4*T+3}]"
            a(f"v_mfma_f32_16x16x32_bf16 v[{SC+4*T}:{SC+4*T+3}], v[{KF+16*T+4*s}:{KF+16*T+4*s+3}], v[{QB+4*s}:{QB+4*s+3}], {c}")
    for i in range(4): a(f"v_cndmask_b32 v{40+i}, v{SC+4+i}, v{SC+i}, s[54:55]")
    a("v_cvt_pk_bf16_f32 v44, v40, v41\nv_cvt_pk_bf16_f32 v45, v42, v43")
    unpack(40, 44); unpack(42, 45)
    for i in range(4): a(f"v_mul_f32 v{40+i}, s40, v{40+i}")
    a("v_cvt_pk_bf16_f32 v44, v40, v41\nv_cvt_pk_bf16_f32 v45, v42, v43")
    a(f"ds_write_b64 v3, v[44:45] offset:{SCX}")
    signal(C_SC)
    lds_wait(C_SC, 4, 10, slp=0)
    a(f"ds_read_b128 v[16:19], v0 offset:{SCX}\nds_read_b128 v[20:23], v0 offset:{SCX+512}")
    a("s_waitcnt lgkmcnt(0)")
    P = 32
    for i in range(8): unpack(P + 2*i, 16 + i)
    ML = 60
    a(f"v_max3_f32 v{ML}, v{P}, v{P+1}, v{P+2}\nv_max3_f32 v24, v{P+3}, v{P+4}, v{P+5}\nv_max3_f32 v25, v{P+6}, v{P+7}, v{P+8}\nv_max3_f32 v26, v{P+9}, v{P+10}, v{P+11}")
    a(f"v_max3_f32 v{ML}, v{ML}, v{P+12}, v{P+13}\nv_max3_f32 v24, v24, v{P+14}, v{P+15}\nv_max3_f32 v{ML}, v{ML}, v25, v26\nv_max_f32 v{ML}, v{ML}, v24")
    allreduce("v_max_f32", ML, 24, lo=(8,))
    a(f"v_mul_f32 v24, s41, v{ML}")
    for i in range(16): a(f"v_fma_f32 v{P+i}, v{P+i}, s41, -v24")
    for i in range(16): a(f"v_exp_f32 v{P+i}, v{P+i}")
    PA = 16; PB = 24
    for i in range(8): a(f"v_cvt_pk_bf16_f32 v{PA+i}, v{P+2*i}, v{P+2*i+1}")
    for i in range(8): a(f"v_mov_b32 v{PB+i}, v{PA+i}")
    for i in range(8): a(f"v_mov_b32_dpp v{PB+i}, v{PA+i} row_ror:8 row_mask:0xf bank_mask:0x3")
    for i in range(8): a(f"v_mov_b32_dpp v{PA+i}, v{PA+i} row_ror:8 row_mask:0xf bank_mask:0xc")
    a("s_cmp_lg_u32 s3, 3\ns_cbranch_scc1 L_Apv")
    for i in range(4): a(f"v_pk_add_f32 v[{P+4*i}:{P+4*i+1}], v[{P+4*i}:{P+4*i+1}], v[{P+4*i+2}:{P+4*i+3}]")
    a(f"v_pk_add_f32 v[{P}:{P+1}], v[{P}:{P+1}], v[{P+4}:{P+5}]\nv_pk_add_f32 v[{P+8}:{P+9}], v[{P+8}:{P+9}], v[{P+12}:{P+13}]")
    a(f"v_pk_add_f32 v[{P}:{P+1}], v[{P}:{P+1}], v[{P+8}:{P+9}]\nv_add_f32 v{ML+1}, v{P}, v{P+1}")
    allreduce("v_add_f32", ML+1, 48, lo=(8,))
    a(f"v_mov_b32 v{ML+2}, v{ML}\nv_mov_b32 v{ML+3}, v{ML+1}")
    tag_regs([ML, ML+1, ML+2, ML+3], 13, 12, rn=False)
    a("s_mov_b64 exec, 0xff")
    publish(ML, 4, 52)
    a("s_mov_b64 exec, -1")
    a.label("L_Apv")
    stamp(1)
    lds_wait(C_V, 4, 10)
    stamp(10)
    OA = 64
    for u in range(4):
        for dt in range(2):
            for e in range(2):
                r = VF + 8*u + 4*dt + 2*e
                a(f"ds_read_b64_tr_b16 v[{r}:{r+1}], v{14+dt} offset:{L_V + 4096*(2*u+e)}")
        if u == 2: a("s_waitcnt lgkmcnt(8)")
        if u >= 2:
            pass
    for u in range(4):
        a(f"s_waitcnt lgkmcnt({12-4*u})")
        for dt in range(2):
            c = "0" if u == 0 else f"v[{OA+4*dt}:{OA+4*dt+3}]"
            a(f"v_mfma_f32_16x16x32_bf16 v[{OA+4*dt}:{OA+4*dt+3}], v[{VF+8*u+4*dt}:{VF+8*u+4*dt+3}], v[{PA+4*u}:{PA+4*u+3}], {c}")
    for r in range(4): a(f"v_cndmask_b32 v{OA+r}, v{OA+4+r}, v{OA+r}, s[54:55]")
    tag_regs([OA+r for r in range(4)], 13, 12, rn=False)
    publish(OA, 11, 53)
    stamp(6)
    a("s_cmp_eq_u32 s3, 2\ns_cbranch_scc1 L_RED\ns_cmp_eq_u32 s3, 3\ns_cbranch_scc1 L_fin")
    a(f"s_lshr_b32 s50, s60, 1\ns_lshl_b32 s50, s50, 13\ns_lshl_b32 s40, s3, 12\ns_add_u32 s50, s50, s40\ns_add_u32 s50, s50, {MO}")
    a(f"s_lshl_b32 s51, s61, 12\ns_lshr_b32 s40, s62, 2\ns_lshl_b32 s40, s40, 4\ns_add_u32 s51, s51, s40\ns_add_u32 s51, s51, {MML}")
    a("v_lshrrev_b32 v2, 3, v1\nv_lshlrev_b32 v2, 2, v2\nv_and_b32 v3, 3, v1\nv_or_b32 v2, v2, v3\nv_lshlrev_b32 v2, 7, v2")
    a(f"s_lshl_b32 s40, s3, 6\ns_add_u32 s40, s40, {B+OV}\nv_lshlrev_b32 v12, 3, v1\nv_add_u32 v12, s40, v12")
    MLR = 16; OR_ = 20
    poll([(MLR, 2, 1, 0)] + [(OR_ + 4*i, 4, 0, 1024*i) for i in range(4)], [50, 51], list(range(MLR, MLR+20)), 12, 10, delay=do)
    stamp(7)
    allreduce("v_max_f32", MLR+2, 10, lo=(8, 2, 1))
    a(f"v_sub_f32 v{MLR}, v{MLR}, v{MLR+2}\nv_mul_f32 v{MLR}, s41, v{MLR}\nv_exp_f32 v{MLR}, v{MLR}")
    a(f"v_mul_f32 v{MLR+1}, v{MLR}, v{MLR+1}")
    for r in range(4): a(f"v_mul_f32_dpp v{40+r}, v{MLR}, v{OR_+r} quad_perm:[0,0,0,0] row_mask:0xf bank_mask:0xf")
    for i in range(1, 4):
        for r in range(4): a(f"v_fmac_f32_dpp v{40+r}, v{MLR}, v{OR_+4*i+r} quad_perm:[{i},{i},{i},{i}] row_mask:0xf bank_mask:0xf")
    a(f"v_add_f32_dpp v44, v{MLR+1}, v{MLR+1} quad_perm:[1,0,3,2] row_mask:0xf bank_mask:0xf")
    a(f"v_add_f32_dpp v44, v44, v44 quad_perm:[2,3,0,1] row_mask:0xf bank_mask:0xf")
    for r in range(5): a(f"v_add_f32_dpp v{40+r}, v{40+r}, v{40+r} row_ror:8 row_mask:0xf bank_mask:0xf")
    swapred("v_add_f32", 16, [40, 41, 42, 43, 44], 48); swapred("v_add_f32", 32, [40, 41, 42, 43, 44], 48)
    a("v_rcp_f32 v44, v44")
    for r in range(4): a(f"v_mul_f32 v{40+r}, v{40+r}, v44")
    a("v_cvt_pk_bf16_f32 v48, v40, v41\nv_cvt_pk_bf16_f32 v49, v42, v43")
    a("s_mov_b64 exec, 0xff")
    a("ds_write_b64 v12, v[48:49]")
    signal(C_OV)
    stamp(8)
    a("s_branch L_fin")

    a.label("L_CF")
    a("s_cmp_eq_u32 s3, 0\ns_cbranch_scc1 L_fin\ns_cmp_eq_u32 s3, 3\ns_cbranch_scc1 L_fin")
    get_rec(16)
    a("s_cmp_eq_u32 s3, 2\ns_cbranch_scc1 L_RED")
    f_ids()
    a("s_lshr_b32 s40, s55, 2\ns_lshl_b32 s40, s40, 5\nv_add_u32 v11, s40, v1")
    a("v_mul_u32_u24 v12, 4682, v11\nv_lshrrev_b32 v12, 16, v12\nv_mul_u32_u24 v13, 14, v12\nv_sub_u32 v11, v11, v13")
    a("v_lshlrev_b32 v12, 10, v12\nv_lshl_or_b32 v11, v11, 4, v12\nv_mov_b32 v13, 0x3ff")
    a(f"s_sub_u32 s50, s61, 4\ns_lshl_b32 s50, s50, 14\ns_add_u32 s50, s50, {MH}")
    a("s_and_b32 s40, s55, 1\ns_lshl_b32 s40, s40, 9\ns_add_u32 s51, s50, s40\ns_bfe_u32 s40, s55, 0x10001\ns_lshl_b32 s40, s40, 8\ns_add_u32 s51, s51, s40")
    a("s_lshr_b32 s40, s62, 1\ns_lshl_b32 s40, s40, 10\ns_add_u32 s50, s50, s40")
    a("s_mov_b32 s52, 0x3fff3fff\ns_mov_b32 s53, 0x3fff3fff")
    lds_wait(C_G, 4, 10)
    a("s_cmp_eq_u32 s54, 1\ns_cbranch_scc1 L_Fh")
    gemv1_reduce(11, 51, 10, 13)
    a.label("L_Fh")
    stamp(9)
    poll([(16, 4, 0, 0)], [50], [16, 17, 18, 19], 10, 10, lanemask="s[52:53]", delay=dh, slp=4)
    stamp(7)
    swapred("v_add_f32", 32, [16, 17, 18, 19], 20)
    a("v_cvt_pk_bf16_f32 v20, v16, v17\nv_cvt_pk_bf16_f32 v21, v18, v19")
    a("v_mov_b32 v30, v20\nv_mov_b32 v31, v21")
    a("v_permlane16_swap_b32 v20, v30\nv_permlane16_swap_b32 v21, v31")
    unpack(16, 20); unpack(18, 21)
    k0 = 0.7978845608028654; k1 = 0.044715
    a(f"s_mov_b32 s40, {f32(-2*LOG2E*k0*k1)}\nv_mov_b32 v28, {f32(-2*LOG2E*k0)}")
    for r in range(4): a(f"v_mul_f32 v{20+r}, v{16+r}, v{16+r}")
    for r in range(4): a(f"v_fma_f32 v{20+r}, v{20+r}, s40, v28")
    for r in range(4): a(f"v_mul_f32 v{20+r}, v{20+r}, v{16+r}")
    for r in range(4): a(f"v_exp_f32 v{20+r}, v{20+r}")
    unpack(32, 30); unpack(34, 31)
    for r in range(4): a(f"v_add_f32 v{20+r}, 1.0, v{20+r}")
    for r in range(4): a(f"v_rcp_f32 v{20+r}, v{20+r}")
    a(f"v_lshlrev_b32 v12, 3, v1\nv_add_u32 v12, {B+OV}, v12\nv_cmp_gt_u32 vcc, 14, v1\nv_mov_b32 v9, 2")
    for r in range(4): a(f"v_mul_f32 v{20+r}, v{20+r}, v{16+r}")
    a("v_cvt_pk_bf16_f32 v24, v20, v21\nv_cvt_pk_bf16_f32 v25, v22, v23")
    unpack(20, 24); unpack(22, 25)
    for r in range(4): a(f"v_mul_f32 v{20+r}, v{20+r}, v{32+r}")
    a("v_cvt_pk_bf16_f32 v24, v20, v21\nv_cvt_pk_bf16_f32 v25, v22, v23")
    a("v_cndmask_b32 v24, 0, v24, vcc\nv_cndmask_b32 v25, 0, v25, vcc")
    a("s_mov_b64 exec, 0xffff")
    a("ds_write_b64 v12, v[24:25]")
    signal(C_OV)
    stamp(8)
    a("s_branch L_fin")

    a.label("L_RED")
    a("s_load_dwordx2 s[24:25], s[0:1], 72\ns_mov_b32 s26, 2048\ns_mov_b32 s27, 0x20000")
    a("s_lshl_b32 s52, s60, 3")
    a("buffer_load_dwordx2 v[24:25], off, s[8:11], s52")
    a(f"s_lshl_b32 s50, s60, 4\ns_add_u32 s50, s50, {M3}\ns_add_u32 s51, s50, 0x40000\nv_lshlrev_b32 v2, 12, v1")
    a("s_waitcnt lgkmcnt(0)")
    a("s_barrier")
    stamp(9)
    poll([(16, 2, 0, 0), (20, 2, 1, 0)], [50, 51], list(range(16, 24)), 10, 10, delay=dr, slp=rsleep, dual=False)
    stamp(10)
    a("v_pk_add_f32 v[16:17], v[16:17], v[20:21]\nv_pk_add_f32 v[18:19], v[18:19], v[22:23]")
    for k in (8, 4, 2, 1):
        for r in range(4): a(f"v_add_f32_dpp v{16+r}, v{16+r}, v{16+r} row_ror:{k} row_mask:0xf bank_mask:0xf")
    for r in range(4): a(f"v_add_f32_dpp v{16+r}, v{16+r}, v{16+r} row_bcast:15 row_mask:0xa bank_mask:0xf")
    for r in range(4): a(f"v_add_f32_dpp v{16+r}, v{16+r}, v{16+r} row_bcast:31 row_mask:0xc bank_mask:0xf")
    unpack(20, 24); unpack(22, 25)
    a("v_pk_add_f32 v[16:17], v[16:17], v[20:21]\nv_pk_add_f32 v[18:19], v[18:19], v[22:23]")
    a("v_cvt_pk_bf16_f32 v20, v16, v17\nv_cvt_pk_bf16_f32 v21, v18, v19")
    a("v_mov_b32 v22, s38\nv_mov_b32 v23, s39")
    a("s_mov_b32 exec_lo, 0\ns_mov_b32 exec_hi, 0x80000000")
    a("buffer_store_dwordx2 v[20:21], off, s[24:27], s52")
    a("s_cmp_lg_u32 s2, 0\ns_cbranch_scc1 L_fin")
    a("buffer_store_dwordx2 v[22:23], off, s[4:7], 0 sc0 sc1")
    a("s_branch L_fin")

    G1 = 64; W2 = 128; SEL = 48; ACC = 56; AT = 40; XR = 16; OWN = 32
    def mk_sel():
        a("v_and_b32 v60, 1, v7\nv_cmp_eq_u32 vcc, 1, v60")
        a("v_mov_b32 v60, 0x0c0c0100\nv_mov_b32 v61, 0x01000c0c\nv_cndmask_b32 v60, v60, v61, vcc")
        a("v_mov_b32 v61, 0x0c0c0302\nv_mov_b32 v62, 0x03020c0c\nv_cndmask_b32 v61, v61, v62, vcc")
        a("v_lshrrev_b32 v62, 1, v7\nv_mov_b32 v63, 0x0c0c0c0c")
        for d in range(4):
            a(f"v_cmp_eq_u32 vcc, {d}, v62")
            a(f"v_cndmask_b32 v{SEL+2*d}, v63, v60, vcc\nv_cndmask_b32 v{SEL+2*d+1}, v63, v61, vcc")
    def sp_perm(n):
        at = AT + 4 * (n & 1)
        for d in range(4): a(f"v_perm_b32 v{at+d}, v{XR + n // 2}, v{XR + n // 2}, v{SEL+2*d+(n&1)}")
    def sp_mfma(breg, n, first):
        at = AT + 4 * (n & 1)
        c = "0" if first else f"v[{ACC}:{ACC+3}]"
        a(f"v_mfma_f32_16x16x32_bf16 v[{ACC}:{ACC+3}], v[{at}:{at+3}], v[{breg}:{breg+3}], {c}")
    def stream(kind, win):
        NG = {"A": 16, "F": 32, "N": 0}[kind]
        stride = 8192 if kind == "A" else 7168
        ops = [("G", n) for n in range(NG)]
        if kind == "A": ops += [("K", n) for n in range(8)] + [("V", n) for n in range(8)]
        ops += [("W", n) for n in range(16)]
        def issue(op):
            k, n = op
            if k == "G":
                if n: a(f"s_add_u32 s51, s51, {stride}")
                r = G1 + 4 * (n % 16)
                a(f"buffer_load_dwordx4 v[{r}:{r+3}], v2, s[12:15], s51 offen{NT}")
            elif k in "KV":
                a(f"s_add_u32 s53, s53, 1024\ns_and_b32 s53, s53, 0x1c00")
                if k == "K": a("s_bfe_u32 s40, s53, 0x2000a\ns_lshl_b32 s40, s40, 6")
                else: a("s_bfe_u32 s40, s53, 0x1000a\ns_lshl_b32 s40, s40, 7")
                a("s_or_b32 s40, s40, s53")
                a(f"v_xor_b32 v{12+(n&1)}, s40, v{10 if k == 'K' else 11}")
                a(f"s_add_u32 m0, s53, s{54 if k == 'K' else 55}")
                srd = 20 if k == "K" else 24
                a(f"buffer_load_dwordx4 v{12+(n&1)}, s[{srd}:{srd+3}], s50 offen{NT} lds")
            else:
                if n and n % 2 == 0: a("s_add_u32 s52, s52, 4096")
                a(f"buffer_load_dwordx4 v[{W2+4*n}:{W2+4*n+3}], v{3 if n < 8 else 0}, s[16:19], s52 offen offset:{2048*(n&1)}{NT}")
        def setup_rest():
            common()
            a("v_mov_b32 v5, 0x3ff")
            a("v_lshlrev_b32 v3, 15, v6\nv_lshl_or_b32 v3, v7, 4, v3")
            a("s_and_b32 s40, s62, 1\ns_lshl_b32 s40, s40, 10\ns_lshl_b32 s41, s46, 8\ns_add_u32 s40, s40, s41\ns_lshr_b32 s41, s60, 1")
            if kind == "A":
                a("v_mov_b32 v0, v3\ns_lshl_b32 s52, s41, 17\ns_add_u32 s52, s52, s40")
                a("v_xor_b32 v10, v7, v6\nv_lshlrev_b32 v10, 4, v10\nv_lshl_or_b32 v10, v6, 8, v10")
                a("v_lshlrev_b32 v11, 1, v6\nv_xor_b32 v11, v7, v11\nv_lshlrev_b32 v11, 4, v11\nv_lshl_or_b32 v11, v6, 8, v11")
                a(f"s_lshl_b32 s50, s61, 23\ns_lshl_b32 s40, s62, 15\ns_add_u32 s50, s50, s40\ns_lshl_b32 s54, s46, 13\ns_add_u32 s50, s50, s54\ns_add_u32 s50, s50, {28672*256}\ns_add_u32 s55, s54, {L_V}")
                a("s_lshl_b32 s53, s62, 10" if rot else "s_mov_b32 s53, 0x1c00")
            else:
                a(f"s_sub_u32 s41, s41, 64\ns_mul_i32 s52, s41, {56*2048}\ns_add_u32 s52, s52, s40")
                a("v_mov_b32 v60, 0x40000000\nv_cmp_eq_u32 vcc, 3, v6\nv_cndmask_b32 v0, v3, v60, vcc")
            mk_sel()
        def get_x():
            get_rec(60)
            a("v_and_b32 v62, 0xffff0000, v62")
            unpack(34, OWN)
            a("v_sub_f32 v34, v34, v62\nv_sub_f32 v35, v35, v62\nv_cvt_pk_bf16_f32 v36, v34, v35")
            unpack(34, 36)
            a("v_mul_f32 v34, v34, v63\nv_mul_f32 v35, v35, v63\nv_cvt_pk_bf16_f32 v36, v34, v35")
            a(f"s_lshl_b32 s40, s46, 8\ns_add_u32 s40, s40, {B+XN}\nv_lshl_add_u32 v37, v1, 2, s40\nds_write_b32 v37, v36")
            a(f"v_lshl_add_u32 v37, v6, {5 if kind == 'A' else 6}, s40")
            for i in range(NG // 8): a(f"ds_read_b128 v[{XR+4*i}:{XR+4*i+3}], v37 offset:{16*i}")
            a(f"s_lshl_b32 s40, s46, 9\ns_add_u32 s40, s40, {B+GP}\nv_lshl_add_u32 v33, v7, 1, v6\nv_lshl_add_u32 v33, v33, 4, s40")
            a("s_waitcnt lgkmcnt(0)")
            stamp(2)
        def consume(n):
            if n == 0: get_x()
            sp_perm(n); sp_mfma(G1 + 4 * (n % 16), n, n == 0)
            if n == NG - 1:
                a("s_mov_b32 exec_hi, 0")
                a(f"ds_write_b128 v33, v[{ACC}:{ACC+3}]")
                signal(C_G)
                stamp(4)
        nc = 0
        nl = -1
        if kind == "N": setup_rest(); a("s_barrier")
        for i, op in enumerate(ops):
            w = win
            if op[0] in "KV" and wkv: w = wkv
            if op[0] == "W" and ww and kind != "N": w = ww
            newl = max(nl, i - w)
            if newl > nl or (newl == nl and i - w >= 0 and False):
                a(f"s_waitcnt vmcnt({i - 1 - newl})")
            evs = list(range(nl + 1, newl + 1)); nl = newl
            if op[0] == "G" and op[1] >= 16:
                while nc <= op[1] - 16: consume(nc); nc += 1
            issue(op)
            if i == win - 1 and kind != "N":
                setup_rest(); a("s_barrier")
            for e in evs:
                if ops[e] == ("K", 7): signal(C_K); stamp(3)
                if ops[e] == ("V", 7): signal(C_V); stamp(6)
            k = 0
            while i >= cst and nc < NG and nc <= nl and k < 2:
                consume(nc); nc += 1; k += 1
        assert nc == NG
        if kind == "N":
            get_rec(60)
            a("s_waitcnt vmcnt(0)")
            signal(C_G)
    a.label("L_S")
    a("s_sub_u32 s46, s3, 4")
    a("s_mov_b32 s15, 0x20000\ns_mov_b32 s19, 0x20000\ns_mov_b32 s10, 2048\ns_mov_b32 s11, 0x20000\nv_lshlrev_b32 v60, 2, v1")
    a("s_cmp_ge_u32 s61, 4\ns_cbranch_scc1 L_SF")
    a("s_load_dwordx2 s[12:13], s[0:1], 24\ns_load_dwordx2 s[16:17], s[0:1], 32\ns_load_dwordx2 s[20:21], s[0:1], 8\ns_load_dwordx2 s[24:25], s[0:1], 16")
    a("s_mov_b32 s14, 0x800000\ns_mov_b32 s18, 0x800000\ns_mov_b32 s22, 0x2000000\ns_mov_b32 s23, 0x20000\ns_mov_b32 s26, 0x2000000\ns_mov_b32 s27, 0x20000")
    a("v_lshlrev_b32 v2, 17, v6\nv_lshl_or_b32 v2, v7, 4, v2")
    a("s_and_b32 s40, s62, 3\ns_lshl_b32 s40, s40, 2\ns_add_u32 s40, s40, s46\ns_lshl_b32 s51, s40, 19\ns_lshl_b32 s49, s40, 7")
    a("s_lshl_b32 s40, s61, 3\ns_lshr_b32 s41, s62, 2\ns_add_u32 s40, s40, s41\ns_lshl_b32 s40, s40, 8\ns_add_u32 s51, s51, s40")
    a("s_waitcnt lgkmcnt(0)")
    a(f"buffer_load_dword v{OWN}, v60, s[8:11], s49 offen")
    stream("A", wa)
    a("s_branch L_Sfin")
    a.label("L_SF")
    a("s_load_dwordx2 s[12:13], s[0:1], 48\ns_load_dwordx2 s[28:29], s[0:1], 56\ns_load_dwordx2 s[16:17], s[0:1], 64")
    a("s_mov_b32 s14, 0x700000\ns_mov_b32 s18, 0x700000")
    f_ids()
    a(f"v_mul_u32_u24 v2, {32*7168}, v6\nv_lshl_add_u32 v2, v7, 4, v2")
    a(f"s_and_b32 s40, s55, 1\ns_lshl_b32 s40, s40, 2\ns_add_u32 s40, s40, s46\ns_mul_i32 s51, s40, {128*7168}\ns_lshl_b32 s49, s40, 8")
    a("s_sub_u32 s40, s61, 4\ns_mul_i32 s40, s40, 7\ns_lshr_b32 s41, s55, 2\ns_add_u32 s40, s40, s41\ns_lshl_b32 s40, s40, 8\ns_add_u32 s51, s51, s40")
    a("s_bitcmp1_b32 s55, 1")
    a("s_waitcnt lgkmcnt(0)")
    a("s_cselect_b32 s12, s28, s12\ns_cselect_b32 s13, s29, s13")
    a("s_cmp_eq_u32 s54, 1\ns_cbranch_scc1 L_SN")
    a(f"buffer_load_dword v{OWN}, v60, s[8:11], s49 offen")
    stream("F", wf)
    a("s_branch L_Sfin")
    a.label("L_SN")
    stream("N", 2)
    a.label("L_Sfin")
    stamp(5)
    a("v_lshl_add_u32 v11, v7, 1, v6\nv_lshlrev_b32 v11, 4, v11")
    a(f"s_lshl_b32 s50, s60, 11\ns_lshl_b32 s41, s46, 9\ns_add_u32 s50, s50, s41\ns_add_u32 s50, s50, {M3}")
    a(f"v_lshlrev_b32 v12, 5, v6\nv_add_u32 v12, {B+OV}, v12")
    lds_wait(C_OV, 2, 13, extra=f"ds_read_b128 v[{XR}:{XR+3}], v12\nds_read_b128 v[{XR+4}:{XR+7}], v12 offset:16")
    stamp(8)
    for k in range(16):
        sp_perm(k)
        if 15 - k < 8: a(f"s_waitcnt vmcnt({15-k})")
        sp_mfma(W2 + 4*k, k, k == 0)
    stamp(9)
    tag_regs([ACC, ACC+1, ACC+2, ACC+3], 5, 10)
    a("s_mov_b32 exec_hi, 0")
    a(f"buffer_store_dwordx4 v[{ACC}:{ACC+3}], v11, s[4:7], s50 offen sc1")
    a("s_barrier")
    a.label("L_fin")
    stamp(11)
    stamp_out()
    a.label("L_end")
    a("s_endpgm")
    a.raw('.section .rodata,"a"'); a.raw(".p2align 6"); a.raw(f".amdhsa_kernel {NAME}_kernel")
    a.raw("  .amdhsa_next_free_vgpr 192"); a.raw("  .amdhsa_next_free_sgpr 100"); a.raw("  .amdhsa_accum_offset 192")
    a.raw("  .amdhsa_group_segment_fixed_size 0"); a.raw("  .amdhsa_kernarg_size 96"); a.raw("  .amdhsa_user_sgpr_count 2")
    a.raw("  .amdhsa_user_sgpr_kernarg_segment_ptr 1"); a.raw("  .amdhsa_system_sgpr_workgroup_id_x 1"); a.raw(".end_amdhsa_kernel")
    return a.text()

if __name__ == "__main__":
    for spec in sys.argv[1:]:
        nm, _, kv = spec.partition(":")
        kw = {}
        for p in kv.split(","):
            if p:
                k, v = p.split("="); kw[k] = int(v)
        open(nm + ".s", "w").write(gen(**kw))
        open(nm + "_st.s", "w").write(gen(stamps=True, **kw))
```

```python
import sys, struct
from asmlib import Asm
NAME = "parallel_sum__sliding_block_cached__glu_gated_geglu__decode"
def f32(x): return "0x%08x" % struct.unpack("<I", struct.pack("<f", x))[0]

MQ = 0x10000; MML = 0x20000; MH = 0x30000; MO = 0x40000; GD = 0xC0000; M3 = 0x180000
STAMP = 128 << 20
L_K = 0; L_V = 32768; B = 65536
XN = 0; GP = 1024; QBI = 3072; SCX = 5120; OV = 7168; CO = 7296
LDS_BYTES = B + 7360
C_G, C_K, C_V, C_QB, C_REC, C_SC, C_OV, C_TQ, C_TO = 0, 4, 8, 12, 16, 32, 36, 40, 44
LOG2E = 1.4426950408889634
SPIN_MAX = 200000

def gen(nt=True, stamps=False, wa=6, wf=6, sleep=2, dq=0, do=0, dh=0, dr=12, rsleep=1, local=1, gper=4, cst=10, wkv=None, ww=None, rot=1, tq=21, to=36, th=35, tcq=4, tco=4, redf=0, wwf=None, nog=0, pl1=0, w0=None, n0=8, w0f=None, n0f=8, wn=2, rk=1, rgap=5):
    a = Asm()
    NT = " nt" if nt else ""
    hdr = open("cdna_kernels/" + NAME + ".s.ref").read().split("\n")
    for l in hdr:
        if l.startswith("; @launch"): break
        a.raw(l)
    a.raw(f"; @launch grid=(256,1,1) block=(512,1,1) lds={LDS_BYTES}")
    a.raw('.amdgcn_target "amdgcn-amd-amdhsa--gfx950"')
    a.raw(".text"); a.raw(f".globl {NAME}_kernel"); a.raw(".p2align 8"); a.raw(f".type {NAME}_kernel,@function"); a.raw(f"{NAME}_kernel:")
    NST = 15
    uid = [0]
    def stamp(i):
        if stamps: a(f"s_memrealtime s[{64+2*i}:{65+2*i}]")
    def stamp_out():
        if not stamps: return
        a("s_mov_b64 exec, -1")
        a("s_waitcnt lgkmcnt(0)")
        for i in range(2 * NST): a(f"v_writelane_b32 v3, s{64+i}, {i}")
        a(f"s_lshl_b32 s40, s2, 3\ns_add_u32 s40, s40, s3\ns_mul_i32 s40, s40, {NST*8}\ns_add_u32 s40, s40, {STAMP}")
        a(f"v_lshlrev_b32 v4, 2, v1\nv_cmp_gt_u32 vcc, {2*NST}, v1\ns_and_saveexec_b64 s[42:43], vcc")
        a("buffer_store_dword v3, v4, s[4:7], s40 offen")
    def swapred(op, kind, regs, tmp):
        for i, r in enumerate(regs): a(f"v_mov_b32 v{tmp+i}, v{r}")
        for i, r in enumerate(regs): a(f"v_permlane{kind}_swap_b32 v{r}, v{tmp+i}")
        for i, r in enumerate(regs): a(f"{op} v{r}, v{r}, v{tmp+i}")
    def allreduce(op, v, t, lo=(8, 4, 2, 1)):
        for k in lo: a(f"{op}_dpp v{v}, v{v}, v{v} row_ror:{k} row_mask:0xf bank_mask:0xf")
        swapred(op, 16, [v], t); swapred(op, 32, [v], t)
    def tred4(r):
        a(f"v_permlane32_swap_b32 v{r}, v{r+1}\nv_permlane32_swap_b32 v{r+2}, v{r+3}")
        a(f"v_add_f32 v{r}, v{r}, v{r+1}\nv_add_f32 v{r+2}, v{r+2}, v{r+3}")
        a(f"v_permlane16_swap_b32 v{r}, v{r+2}")
        a(f"v_add_f32 v{r}, v{r}, v{r+2}")
    def unpack(dst, src):
        a(f"v_lshlrev_b32 v{dst}, 16, v{src}\nv_and_b32 v{dst+1}, 0xffff0000, v{src}")
    def mk_tags():
        a("s_and_b32 s30, s38, 0xfff\ns_bfe_u32 s31, s38, 0xc000c\ns_and_b32 s32, s39, 0xfff\ns_bfe_u32 s33, s39, 0xc000c")
    def tag_regs(regs, vmask, bits, rn=True):
        if rn:
            for r in regs: a(f"v_add_u32 v{r}, {1 << (bits-1)}, v{r}")
        for i, r in enumerate(regs): a(f"v_bfi_b32 v{r}, v{vmask}, s{30 + i % 4}, v{r}")
    def backoff(n):
        while n > 0:
            k = min(n, 127); a(f"s_sleep {k}"); n -= k
    def publish(vd, voff, soff):
        if local:
            a(f"buffer_store_dwordx4 v[{vd}:{vd+3}], v{voff}, s[4:7], s{soff} offen")
        if nog: return
        a(f"s_add_u32 s45, s{soff}, {GD}")
        a(f"buffer_store_dwordx4 v[{vd}:{vd+3}], v{voff}, s[4:7], s45 offen sc1")
    def poll(loads, bases, regs, bits, t, lanemask=None, pre=None, delay=0, slot=13, slp=None, dual=True, wk0=46, first_wait=0, parts=None):
        uid[0] += 1
        L = f"L_poll{uid[0]}"
        slp = sleep if slp is None else slp
        m = (1 << bits) - 1
        for i in range(4): a(f"s_and_b32 s{34+i}, s{30+i}, {m}")
        def issue(first=False):
            for vd, vo, bi, imm in loads:
                a(f"buffer_load_dwordx4 v[{vd}:{vd+3}], v{vo}, s[4:7], s{wk[bi]} offen offset:{imm}" + ("" if (first and pl1) else " sc1"))
        if dual:
            wk = [wk0 + i for i in range(len(bases))]
            for i, b in enumerate(bases):
                a(f"s_mov_b32 s{wk[i]}, s{b}" if local else f"s_add_u32 s{wk[i]}, s{b}, {GD}")
        else: wk = bases
        if parts == "issue":
            if slot == 13: stamp(14)
            issue(True); uid[0] -= 1
            return
        backoff(delay)
        if slot == 13 and parts is None: stamp(14)
        if lanemask is not None: a(f"s_mov_b64 exec, {lanemask}")
        if parts == "check":
            a("s_mov_b32 s44, 0")
            a(f"s_branch {L}_w")
        elif pre is not None:
            issue(True); pre()
            a("s_mov_b32 s44, 0")
            if first_wait:
                a(f"s_waitcnt vmcnt({first_wait})")
                a(f"s_branch {L}_c")
            else:
                a(f"s_branch {L}_w")
        else:
            a("s_mov_b32 s44, 0")
        a.label(L)
        issue()
        a.label(L + "_w")
        a("s_waitcnt vmcnt(0)")
        a.label(L + "_c")
        for i, r in enumerate(regs): a(f"v_xor_b32 v{r}, s{34 + i % 4}, v{r}")
        a(f"v_or3_b32 v{t}, v{regs[0]}, v{regs[1]}, v{regs[2]}")
        rest = regs[3:]
        while len(rest) >= 2:
            a(f"v_or3_b32 v{t}, v{t}, v{rest[0]}, v{rest[1]}"); rest = rest[2:]
        if rest: a(f"v_or_b32 v{t}, v{t}, v{rest[0]}")
        a(f"v_and_b32 v{t}, {m}, v{t}")
        a(f"v_cmp_ne_u32 vcc, 0, v{t}")
        a("s_and_b64 exec, vcc, exec")
        a(f"s_cbranch_scc0 {L}_ok")
        if slp: a(f"s_sleep {slp}")
        a("s_add_u32 s44, s44, 1")
        if dual and local:
            a(f"s_and_b32 s45, s44, {gper-1}\ns_cmp_eq_u32 s45, {gper-1}\ns_cselect_b32 s45, {GD}, 0")
            for i, b in enumerate(bases): a(f"s_add_u32 s{wk[i]}, s{b}, s45")
        a(f"s_cmp_lt_u32 s44, {SPIN_MAX}\ns_cbranch_scc1 {L}")
        a.label(L + "_ok")
        a("s_mov_b64 exec, -1")
        if stamps: a(f"s_mul_i32 s{64+2*slot}, s44, 100\ns_add_u32 s{64+2*slot}, s{64+2*slot}, s64\ns_addc_u32 s{65+2*slot}, s65, 0")
    def lds_wait(off, val, t, slp=1, extra=None):
        uid[0] += 1
        L = f"L_lw{uid[0]}"
        a("s_mov_b32 s44, 0")
        a.label(L)
        a(f"ds_read_b32 v{t}, v8 offset:{CO + off}")
        if extra: a(extra)
        a("s_waitcnt lgkmcnt(0)")
        a(f"v_readfirstlane_b32 s45, v{t}")
        a(f"s_cmp_ge_u32 s45, {val}\ns_cbranch_scc1 {L}_ok")
        if slp: a(f"s_sleep {slp}")
        a(f"s_add_u32 s44, s44, 1\ns_cmp_lt_u32 s44, {SPIN_MAX*8}\ns_cbranch_scc1 {L}")
        a.label(L + "_ok")
    def signal(off):
        a("s_mov_b64 exec, 1")
        a(f"ds_add_u32 v8, v9 offset:{CO+off}")
        a("s_mov_b64 exec, -1")
    def get_rec(r):
        uid[0] += 1
        L = f"L_tg{uid[0]}"
        a("s_mov_b32 s44, 0")
        a.label(L)
        a(f"ds_read_b128 v[{r}:{r+3}], v8 offset:{CO+C_REC}")
        a("s_waitcnt lgkmcnt(0)")
        a(f"v_readfirstlane_b32 s45, v{r+2}\nv_readfirstlane_b32 s38, v{r}\nv_readfirstlane_b32 s39, v{r+1}")
        a(f"s_bitcmp1_b32 s45, 0\ns_cbranch_scc1 {L}_ok")
        a(f"s_sleep 1\ns_add_u32 s44, s44, 1\ns_cmp_lt_u32 s44, {SPIN_MAX*8}\ns_cbranch_scc1 {L}")
        a.label(L + "_ok")
        mk_tags()
    def f_ids():
        a("s_sub_u32 s40, s62, 24\ns_lshr_b32 s40, s40, 1\ns_add_u32 s40, s40, 24\ns_cmp_lt_u32 s62, 24\ns_cselect_b32 s55, s62, s40")
        a("s_and_b32 s40, s62, 25\ns_cmp_eq_u32 s40, 24\ns_cselect_b32 s54, 1, 0")

    stamp(0)
    a("s_cmp_ge_u32 s2, 256\ns_cbranch_scc1 L_end")
    a("v_lshrrev_b32 v2, 6, v0\nv_and_b32 v1, 63, v0")
    a("s_load_dwordx2 s[4:5], s[0:1], 88\ns_load_dwordx2 s[8:9], s[0:1], 0")
    a("v_readfirstlane_b32 s3, v2")
    a("s_and_b32 s61, s2, 7\ns_lshr_b32 s62, s2, 3")
    a("v_lshrrev_b32 v6, 4, v1\nv_and_b32 v7, 15, v1\nv_lshlrev_b32 v4, 4, v1")
    a("s_cmp_ge_u32 s3, 4\ns_cbranch_scc1 L_S")
    def common():
        if stamps:
            for i in range(1, NST): a(f"s_mov_b64 s[{64+2*i}:{65+2*i}], 0")
        a("s_mov_b32 s6, 0x10000000\ns_mov_b32 s7, 0x20000\ns_mov_b32 s10, 2048\ns_mov_b32 s11, 0x20000")
        a("s_lshl_b32 s60, s61, 5\ns_add_u32 s60, s60, s62")
        a(f"v_mov_b32 v8, {B}\nv_mov_b32 v9, 1")
    a("s_setprio 3")
    common()
    a("s_cmp_lg_u32 s3, 0\ns_cbranch_scc1 L_Cn0")
    X, F, EV = 16, 28, 24
    a("s_waitcnt lgkmcnt(0)")
    a(f"buffer_load_dwordx4 v[{X}:{X+3}], v4, s[8:11], 0 offen")
    a(f"buffer_load_dwordx4 v[{X+4}:{X+7}], v4, s[8:11], 0 offen offset:1024")
    a(f"buffer_load_dwordx2 v[{EV}:{EV+1}], off, s[4:7], 0 sc0 sc1")
    a("s_barrier")
    a("s_waitcnt vmcnt(1)")
    stamp(2)
    for i in range(8): unpack(F + 2*i, X + i)
    S, T = F + 16, F + 17
    for i in range(4): a(f"v_pk_add_f32 v[{X+2*i}:{X+2*i+1}], v[{F+4*i}:{F+4*i+1}], v[{F+4*i+2}:{F+4*i+3}]")
    a(f"v_pk_add_f32 v[{X}:{X+1}], v[{X}:{X+1}], v[{X+2}:{X+3}]\nv_pk_add_f32 v[{X+4}:{X+5}], v[{X+4}:{X+5}], v[{X+6}:{X+7}]")
    a(f"v_pk_add_f32 v[{X}:{X+1}], v[{X}:{X+1}], v[{X+4}:{X+5}]\nv_add_f32 v{S}, v{X}, v{X+1}")
    allreduce("v_add_f32", S, T)
    a(f"v_mul_f32 v{S}, {f32(1/1024)}, v{S}")
    M = X + 2
    a(f"v_mov_b32 v{M}, v{S}\nv_mov_b32 v{M+1}, v{S}")
    for i in range(8): a(f"v_pk_add_f32 v[{F+2*i}:{F+2*i+1}], v[{F+2*i}:{F+2*i+1}], v[{M}:{M+1}] neg_lo:[0,1] neg_hi:[0,1]")
    a(f"v_pk_mul_f32 v[{X}:{X+1}], v[{F}:{F+1}], v[{F}:{F+1}]\nv_pk_mul_f32 v[{X+4}:{X+5}], v[{F+2}:{F+3}], v[{F+2}:{F+3}]")
    for i in range(2, 8):
        d = X if i % 2 == 0 else X + 4
        a(f"v_pk_fma_f32 v[{d}:{d+1}], v[{F+2*i}:{F+2*i+1}], v[{F+2*i}:{F+2*i+1}], v[{d}:{d+1}]")
    V = X + 6
    a(f"v_pk_add_f32 v[{X}:{X+1}], v[{X}:{X+1}], v[{X+4}:{X+5}]\nv_add_f32 v{V}, v{X}, v{X+1}")
    allreduce("v_add_f32", V, T)
    a(f"v_mul_f32 v{V}, {f32(1/1024)}, v{V}")
    a(f"v_cvt_pk_bf16_f32 v{T}, v{S}, v{V}")
    a(f"v_lshl_or_b32 v{EV+2}, v{T}, 16, 1")
    a(f"v_and_b32 v{V}, 0xffff0000, v{T}\nv_add_f32 v{V}, {f32(1e-5)}, v{V}")
    a(f"v_cvt_pk_bf16_f32 v{V}, v{V}, v{V}\nv_and_b32 v{V}, 0xffff0000, v{V}\nv_sqrt_f32 v{V}, v{V}")
    a(f"v_cvt_pk_bf16_f32 v{V}, v{V}, v{V}\nv_and_b32 v{V}, 0xffff0000, v{V}\nv_rcp_f32 v{EV+3}, v{V}")
    a("s_waitcnt vmcnt(0)")
    a(f"v_add_u32 v{EV}, 0x7f4a7c15, v{EV}\nv_add_u32 v{EV+1}, 0x9e3779b9, v{EV+1}")
    a("s_mov_b64 exec, 1")
    a(f"ds_write_b128 v8, v[{EV}:{EV+3}] offset:{CO+C_REC}")
    a("s_mov_b64 exec, -1")
    stamp(3)
    a("s_branch L_Cj")
    a.label("L_Cn0")
    a("v_mov_b32 v16, 0\nv_mov_b32 v17, 0\nv_mov_b32 v18, 0\nv_mov_b32 v19, 0")
    a(f"ds_write_b128 v8, v[16:19] offset:{CO}\nds_write_b128 v8, v[16:19] offset:{CO+16}\nds_write_b128 v8, v[16:19] offset:{CO+32}")
    a("s_waitcnt lgkmcnt(0)")
    a("s_barrier")
    a.label("L_Cj")
    a("s_cmp_ge_u32 s61, 4\ns_cbranch_scc1 L_CF")

    GPRD = "\n".join(f"ds_read_b128 v[{16+4*i}:{19+4*i}], v12 offset:{512*i}" for i in range(4))
    def gemv1_reduce(voff, soff, bits, vmask):
        a("s_mov_b32 exec_hi, 0")
        a("v_pk_add_f32 v[16:17], v[16:17], v[20:21]\nv_pk_add_f32 v[18:19], v[18:19], v[22:23]")
        a("v_pk_add_f32 v[24:25], v[24:25], v[28:29]\nv_pk_add_f32 v[26:27], v[26:27], v[30:31]")
        a("v_pk_add_f32 v[32:33], v[16:17], v[24:25]\nv_pk_add_f32 v[34:35], v[18:19], v[26:27]")
        tag_regs([32, 33, 34, 35], vmask, bits)
        publish(32, voff, soff)
        a("s_mov_b64 exec, -1")
    KF = 64; VF = 96; QR = 40; QB = 16
    a(f"s_lshl_b32 s50, s61, 14\ns_add_u32 s50, s50, {MQ}")
    a("s_and_b32 s40, s62, 3\ns_lshl_b32 s40, s40, 10\ns_add_u32 s51, s50, s40\ns_lshr_b32 s40, s62, 2\ns_lshl_b32 s40, s40, 7\ns_add_u32 s51, s51, s40")
    a("s_lshl_b32 s40, s3, 12\ns_add_u32 s50, s50, s40")
    a("v_lshrrev_b32 v11, 3, v1\nv_lshlrev_b32 v11, 12, v11\nv_and_b32 v10, 7, v1\nv_lshl_or_b32 v11, v10, 4, v11\nv_mov_b32 v13, 0xff")
    get_rec(16)
    a("s_cmp_lg_u32 s3, 1\ns_cbranch_scc1 L_Aq")
    a(f"v_and_b32 v12, 0x1f0, v4\nv_add_u32 v12, {B+GP}, v12")
    lds_wait(C_G, 4, 10, extra=GPRD)
    gemv1_reduce(11, 51, 8, 13)
    stamp(9)
    a.label("L_Aq")
    if True:
        a("v_bfe_u32 v2, v1, 1, 2\nv_lshlrev_b32 v2, 7, v2\nv_lshrrev_b32 v3, 3, v1\nv_lshl_or_b32 v2, v3, 4, v2\nv_and_b32 v3, 1, v1\nv_lshl_or_b32 v2, v3, 3, v2")
        a(f"s_lshl_b32 s40, s3, 9\ns_add_u32 s40, s40, {B}\nv_add_u32 v2, s40, v2")
        a("v_and_b32 v10, 7, v7\nv_lshlrev_b32 v12, 7, v6\nv_lshl_or_b32 v12, v10, 4, v12")
        a("v_lshrrev_b32 v5, 3, v7")
        a("v_lshl_add_u32 v3, v5, 3, v12\nv_add_u32 v3, s40, v3")
        a(f"v_add_u32 v12, {B}, v12\nv_lshl_add_u32 v0, v5, 10, v12")
        a("v_lshlrev_b32 v11, 14, v10\nv_lshl_or_b32 v11, v5, 6, v11\nv_lshl_or_b32 v11, v6, 4, v11")
        a(f"s_lshl_b32 s53, s61, 17\ns_lshl_b32 s40, s3, 12\ns_add_u32 s53, s53, s40\ns_and_b32 s40, s62, 3\ns_lshl_b32 s40, s40, 10\ns_add_u32 s53, s53, s40\ns_lshr_b32 s40, s62, 2\ns_lshl_b32 s40, s40, 7\ns_add_u32 s53, s53, s40\ns_add_u32 s53, s53, {MO}")
        a(f"s_lshl_b32 s52, s60, 7\ns_add_u32 s52, s52, {MML}")
        a("v_mov_b32 v13, 0xfff\nv_cmp_gt_u32 s[54:55], 8, v7")
        a("v_lshrrev_b32 v14, 2, v1\nv_lshlrev_b32 v14, 8, v14\nv_bfe_u32 v15, v1, 1, 4\nv_lshl_or_b32 v14, v15, 4, v14\nv_and_b32 v15, 1, v1\nv_lshl_or_b32 v14, v15, 3, v14")
        a("s_lshl_b32 s40, s3, 6\nv_xor_b32 v14, s40, v14\nv_xor_b32 v15, 32, v14")
        a("v_xor_b32 v56, v6, v7\nv_lshlrev_b32 v56, 4, v56\nv_lshl_or_b32 v56, v7, 8, v56\ns_lshl_b32 s40, s3, 13\nv_add_u32 v56, s40, v56")
        for s in range(1, 4): a(f"v_xor_b32 v{56+s}, {64*s}, v56")
        a(f"s_mov_b32 s40, {f32(128**-0.5)}\ns_mov_b32 s41, {f32(LOG2E)}")
    def pre_k():
        lds_wait(C_K, 4, 10)
        stamp(4)
        for T in range(2):
            for s in range(4):
                r = KF + 16*T + 4*s
                a(f"ds_read_b128 v[{r}:{r+3}], v{56+s} offset:{L_K + 4096*T}")
    lds_wait(C_TQ, tcq, 10)
    poll([(QR + 4*p, 4, 0, 1024*p) for p in range(4)], [50], list(range(QR, QR+16)), 8, 10, pre=pre_k, delay=dq, slot=12)
    stamp(5)
    a(f"v_pk_add_f32 v[{QR}:{QR+1}], v[{QR}:{QR+1}], v[{QR+4}:{QR+5}]\nv_pk_add_f32 v[{QR+2}:{QR+3}], v[{QR+2}:{QR+3}], v[{QR+6}:{QR+7}]")
    a(f"v_pk_add_f32 v[{QR+8}:{QR+9}], v[{QR+8}:{QR+9}], v[{QR+12}:{QR+13}]\nv_pk_add_f32 v[{QR+10}:{QR+11}], v[{QR+10}:{QR+11}], v[{QR+14}:{QR+15}]")
    a(f"v_pk_add_f32 v[{QR}:{QR+1}], v[{QR}:{QR+1}], v[{QR+8}:{QR+9}]\nv_pk_add_f32 v[{QR+2}:{QR+3}], v[{QR+2}:{QR+3}], v[{QR+10}:{QR+11}]")
    a(f"v_cvt_pk_bf16_f32 v16, v{QR}, v{QR+1}\nv_cvt_pk_bf16_f32 v17, v{QR+2}, v{QR+3}")
    a(f"ds_write_b64 v2, v[16:17] offset:{QBI}")
    signal(C_QB)
    lds_wait(C_QB, 4, 10, slp=0, extra="\n".join(f"ds_read_b128 v[{QB+4*s}:{QB+4*s+3}], v12 offset:{QBI + 512*s}" for s in range(4)))
    SC = 32
    for s in range(4):
        for T in range(2):
            c = "0" if s == 0 else f"v[{SC+4*T}:{SC+4*T+3}]"
            a(f"v_mfma_f32_16x16x32_bf16 v[{SC+4*T}:{SC+4*T+3}], v[{KF+16*T+4*s}:{KF+16*T+4*s+3}], v[{QB+4*s}:{QB+4*s+3}], {c}")
    for i in range(4): a(f"v_cndmask_b32 v{40+i}, v{SC+4+i}, v{SC+i}, s[54:55]")
    a("v_cvt_pk_bf16_f32 v44, v40, v41\nv_cvt_pk_bf16_f32 v45, v42, v43")
    unpack(40, 44); unpack(42, 45)
    for i in range(4): a(f"v_mul_f32 v{40+i}, s40, v{40+i}")
    a("v_cvt_pk_bf16_f32 v44, v40, v41\nv_cvt_pk_bf16_f32 v45, v42, v43")
    a(f"ds_write_b64 v3, v[44:45] offset:{SCX}")
    signal(C_SC)
    lds_wait(C_SC, 4, 10, slp=0, extra=f"ds_read_b128 v[16:19], v0 offset:{SCX}\nds_read_b128 v[20:23], v0 offset:{SCX+512}")
    P = 32
    for i in range(8): unpack(P + 2*i, 16 + i)
    ML = 60
    a(f"v_max3_f32 v{ML}, v{P}, v{P+1}, v{P+2}\nv_max3_f32 v24, v{P+3}, v{P+4}, v{P+5}\nv_max3_f32 v25, v{P+6}, v{P+7}, v{P+8}\nv_max3_f32 v26, v{P+9}, v{P+10}, v{P+11}")
    a(f"v_max3_f32 v{ML}, v{ML}, v{P+12}, v{P+13}\nv_max3_f32 v24, v24, v{P+14}, v{P+15}\nv_max3_f32 v{ML}, v{ML}, v25, v26\nv_max_f32 v{ML}, v{ML}, v24")
    allreduce("v_max_f32", ML, 24, lo=(8,))
    a(f"v_mul_f32 v24, s41, v{ML}")
    for i in range(16): a(f"v_fma_f32 v{P+i}, v{P+i}, s41, -v24")
    for i in range(16): a(f"v_exp_f32 v{P+i}, v{P+i}")
    PA = 16; PB = 24
    for i in range(8): a(f"v_cvt_pk_bf16_f32 v{PA+i}, v{P+2*i}, v{P+2*i+1}")
    for i in range(8): a(f"v_mov_b32 v{PB+i}, v{PA+i}")
    for i in range(8): a(f"v_mov_b32_dpp v{PB+i}, v{PA+i} row_ror:8 row_mask:0xf bank_mask:0x3")
    for i in range(8): a(f"v_mov_b32_dpp v{PA+i}, v{PA+i} row_ror:8 row_mask:0xf bank_mask:0xc")
    a("s_cmp_lg_u32 s3, 3\ns_cbranch_scc1 L_Apv")
    for i in range(4): a(f"v_pk_add_f32 v[{P+4*i}:{P+4*i+1}], v[{P+4*i}:{P+4*i+1}], v[{P+4*i+2}:{P+4*i+3}]")
    a(f"v_pk_add_f32 v[{P}:{P+1}], v[{P}:{P+1}], v[{P+4}:{P+5}]\nv_pk_add_f32 v[{P+8}:{P+9}], v[{P+8}:{P+9}], v[{P+12}:{P+13}]")
    a(f"v_pk_add_f32 v[{P}:{P+1}], v[{P}:{P+1}], v[{P+8}:{P+9}]\nv_add_f32 v{ML+1}, v{P}, v{P+1}")
    allreduce("v_add_f32", ML+1, 48, lo=(8,))
    a(f"v_mov_b32 v{ML+2}, v{ML}\nv_mov_b32 v{ML+3}, v{ML+1}")
    tag_regs([ML, ML+1, ML+2, ML+3], 13, 12, rn=False)
    a("s_mov_b64 exec, 0xff")
    publish(ML, 4, 52)
    a("s_mov_b64 exec, -1")
    a.label("L_Apv")
    stamp(1)
    lds_wait(C_V, 4, 10, slp=0)
    stamp(10)
    OA = 64
    for u in range(4):
        for dt in range(2):
            for e in range(2):
                r = VF + 8*u + 4*dt + 2*e
                a(f"ds_read_b64_tr_b16 v[{r}:{r+1}], v{14+dt} offset:{L_V + 4096*(2*u+e)}")
        if u == 2: a("s_waitcnt lgkmcnt(8)")
        if u >= 2:
            pass
    for u in range(4):
        a(f"s_waitcnt lgkmcnt({12-4*u})")
        for dt in range(2):
            c = "0" if u == 0 else f"v[{OA+4*dt}:{OA+4*dt+3}]"
            a(f"v_mfma_f32_16x16x32_bf16 v[{OA+4*dt}:{OA+4*dt+3}], v[{VF+8*u+4*dt}:{VF+8*u+4*dt+3}], v[{PA+4*u}:{PA+4*u+3}], {c}")
    for r in range(4): a(f"v_cndmask_b32 v{OA+r}, v{OA+4+r}, v{OA+r}, s[54:55]")
    tag_regs([OA+r for r in range(4)], 13, 12, rn=False)
    publish(OA, 11, 53)
    stamp(6)
    if redf: a("s_cmp_ge_u32 s3, 2\ns_cbranch_scc1 L_fin")
    else: a("s_cmp_eq_u32 s3, 2\ns_cbranch_scc1 L_RED\ns_cmp_eq_u32 s3, 3\ns_cbranch_scc1 L_fin")
    a(f"s_lshr_b32 s50, s60, 1\ns_lshl_b32 s50, s50, 13\ns_lshl_b32 s40, s3, 12\ns_add_u32 s50, s50, s40\ns_add_u32 s50, s50, {MO}")
    a(f"s_lshl_b32 s51, s61, 12\ns_lshr_b32 s40, s62, 2\ns_lshl_b32 s40, s40, 4\ns_add_u32 s51, s51, s40\ns_add_u32 s51, s51, {MML}")
    a("v_lshrrev_b32 v2, 3, v1\nv_lshlrev_b32 v2, 2, v2\nv_and_b32 v3, 3, v1\nv_or_b32 v2, v2, v3\nv_lshlrev_b32 v2, 7, v2")
    a("v_and_b32 v12, 7, v1\nv_lshlrev_b32 v12, 3, v12\nv_lshrrev_b32 v3, 5, v1\nv_lshl_or_b32 v12, v3, 1, v12\nv_bfe_u32 v3, v1, 4, 1\nv_lshl_or_b32 v12, v3, 2, v12")
    a(f"s_lshl_b32 s40, s3, 6\ns_add_u32 s40, s40, {B+OV}\nv_add_u32 v12, s40, v12")
    MLR = 16; OR_ = 20
    oloads = [(OR_ + 4*i, 4, 0, 1024*i) for i in range(4)]
    lds_wait(C_TO, tco, 10)
    def pre_o():
        poll(oloads, [50], None, 12, 10, parts="issue")
    poll([(MLR, 2, 0, 0)], [51], list(range(MLR, MLR+4)), 12, 10, pre=pre_o, first_wait=4, wk0=47, slot=12)
    allreduce("v_max_f32", MLR+2, 10, lo=(8, 2, 1))
    a(f"v_sub_f32 v{MLR}, v{MLR}, v{MLR+2}\nv_mul_f32 v{MLR}, s41, v{MLR}\nv_exp_f32 v{MLR}, v{MLR}")
    a(f"v_mul_f32 v{MLR+1}, v{MLR}, v{MLR+1}")
    allreduce("v_add_f32", MLR+1, 10, lo=(8, 2, 1))
    a(f"v_rcp_f32 v{MLR+1}, v{MLR+1}")
    a(f"v_mul_f32 v{MLR}, v{MLR}, v{MLR+1}")
    poll(oloads, [50], list(range(OR_, OR_+16)), 12, 10, parts="check")
    stamp(7)
    for r in range(4): a(f"v_mul_f32_dpp v{40+r}, v{MLR}, v{OR_+r} quad_perm:[0,0,0,0] row_mask:0xf bank_mask:0xf")
    for i in range(1, 4):
        for r in range(4): a(f"v_fmac_f32_dpp v{40+r}, v{MLR}, v{OR_+4*i+r} quad_perm:[{i},{i},{i},{i}] row_mask:0xf bank_mask:0xf")
    tred4(40)
    a("v_add_f32_dpp v40, v40, v40 row_ror:8 row_mask:0xf bank_mask:0xf")
    a("v_cvt_pk_bf16_f32 v40, v40, v40")
    a("ds_write_b16 v12, v40")
    signal(C_OV)
    stamp(8)
    a("s_branch L_fin")

    a.label("L_CF")
    a("s_cmp_eq_u32 s3, 0\ns_cbranch_scc1 L_fin")
    if not redf: a("s_cmp_eq_u32 s3, 3\ns_cbranch_scc1 L_fin")
    get_rec(16)
    a("s_cmp_ge_u32 s3, 2\ns_cbranch_scc1 L_RED")
    f_ids()
    a("s_lshr_b32 s40, s55, 2\ns_lshl_b32 s40, s40, 5\nv_add_u32 v11, s40, v1")
    a("v_mul_u32_u24 v12, 4682, v11\nv_lshrrev_b32 v12, 16, v12\nv_mul_u32_u24 v13, 14, v12\nv_sub_u32 v11, v11, v13")
    a("v_lshlrev_b32 v12, 10, v12\nv_lshl_or_b32 v11, v11, 4, v12\nv_mov_b32 v13, 0x3ff")
    a(f"s_sub_u32 s50, s61, 4\ns_lshl_b32 s50, s50, 14\ns_add_u32 s50, s50, {MH}")
    a("s_and_b32 s40, s55, 1\ns_lshl_b32 s40, s40, 9\ns_add_u32 s51, s50, s40\ns_bfe_u32 s40, s55, 0x10001\ns_lshl_b32 s40, s40, 8\ns_add_u32 s51, s51, s40")
    a("s_lshr_b32 s40, s62, 1\ns_lshl_b32 s40, s40, 10\ns_add_u32 s50, s50, s40")
    a("s_mov_b32 s52, 0x3fff3fff\ns_mov_b32 s53, 0x3fff3fff")
    a("s_cmp_eq_u32 s54, 1\ns_cbranch_scc1 L_Fh")
    a(f"v_and_b32 v12, 0x1f0, v4\nv_add_u32 v12, {B+GP}, v12")
    lds_wait(C_G, 4, 10, extra=GPRD)
    gemv1_reduce(11, 51, 10, 13)
    a.label("L_Fh")
    stamp(9)
    lds_wait(C_TO, tco, 10)
    poll([(16, 4, 0, 0)], [50], [16, 17, 18, 19], 10, 10, lanemask="s[52:53]", delay=dh, slp=4)
    stamp(7)
    swapred("v_add_f32", 32, [16, 17, 18, 19], 20)
    a("v_cvt_pk_bf16_f32 v20, v16, v17\nv_cvt_pk_bf16_f32 v21, v18, v19")
    a("v_mov_b32 v30, v20\nv_mov_b32 v31, v21")
    a("v_permlane16_swap_b32 v20, v30\nv_permlane16_swap_b32 v21, v31")
    unpack(16, 20); unpack(18, 21)
    k0 = 0.7978845608028654; k1 = 0.044715
    a(f"s_mov_b32 s40, {f32(-2*LOG2E*k0*k1)}\nv_mov_b32 v28, {f32(-2*LOG2E*k0)}")
    for r in range(4): a(f"v_mul_f32 v{20+r}, v{16+r}, v{16+r}")
    for r in range(4): a(f"v_fma_f32 v{20+r}, v{20+r}, s40, v28")
    for r in range(4): a(f"v_mul_f32 v{20+r}, v{20+r}, v{16+r}")
    for r in range(4): a(f"v_exp_f32 v{20+r}, v{20+r}")
    unpack(32, 30); unpack(34, 31)
    for r in range(4): a(f"v_add_f32 v{20+r}, 1.0, v{20+r}")
    for r in range(4): a(f"v_rcp_f32 v{20+r}, v{20+r}")
    a(f"v_lshlrev_b32 v12, 3, v1\nv_add_u32 v12, {B+OV}, v12\nv_cmp_gt_u32 vcc, 14, v1\nv_mov_b32 v9, 2")
    for r in range(4): a(f"v_mul_f32 v{20+r}, v{20+r}, v{16+r}")
    a("v_cvt_pk_bf16_f32 v24, v20, v21\nv_cvt_pk_bf16_f32 v25, v22, v23")
    unpack(20, 24); unpack(22, 25)
    for r in range(4): a(f"v_mul_f32 v{20+r}, v{20+r}, v{32+r}")
    a("v_cvt_pk_bf16_f32 v24, v20, v21\nv_cvt_pk_bf16_f32 v25, v22, v23")
    a("v_cndmask_b32 v24, 0, v24, vcc\nv_cndmask_b32 v25, 0, v25, vcc")
    a("s_mov_b64 exec, 0xffff")
    a("ds_write_b64 v12, v[24:25]")
    signal(C_OV)
    stamp(8)
    a("s_branch L_fin")

    a.label("L_RED")
    a("s_load_dwordx2 s[24:25], s[0:1], 72\ns_mov_b32 s26, 2048\ns_mov_b32 s27, 0x20000")
    if redf: a("s_lshl_b32 s60, s60, 1\ns_add_u32 s60, s60, s3\ns_sub_u32 s60, s60, 258")
    a("s_lshl_b32 s52, s60, 3")
    a("v_lshrrev_b32 v3, 5, v1\nv_bfe_u32 v5, v1, 4, 1\nv_lshl_or_b32 v3, v5, 1, v3\nv_lshlrev_b32 v3, 1, v3")
    a("v_mov_b32 v24, 0\nbuffer_load_short_d16_hi v24, v3, s[8:11], s52 offen")
    a("v_mov_b32 v26, s38\nv_mov_b32 v27, s39")
    a(f"s_lshl_b32 s50, s60, 4\ns_add_u32 s50, s50, {M3}\ns_add_u32 s51, s50, 0x40000\nv_lshlrev_b32 v2, 12, v1")
    a("s_waitcnt lgkmcnt(0)")
    a("s_barrier")
    stamp(9)
    if rk == 1:
        poll([(16, 2, 0, 0), (20, 2, 1, 0)], [50, 51], list(range(16, 24)), 10, 10, delay=dr, slp=rsleep, dual=False)
    else:
        for i in range(4): a(f"s_and_b32 s{34+i}, s{30+i}, 0x3ff")
        def rissue(k):
            a(f"buffer_load_dwordx4 v[{32+8*k}:{35+8*k}], v2, s[4:7], s50 offen sc1")
            a(f"buffer_load_dwordx4 v[{36+8*k}:{39+8*k}], v2, s[4:7], s51 offen sc1")
        backoff(dr)
        stamp(14)
        for k in range(rk):
            if k: backoff(rgap)
            rissue(k)
        a("s_mov_b32 s44, 0")
        a.label("L_rp")
        for k in range(rk):
            a(f"s_waitcnt vmcnt({2*(rk-1)})")
            for i in range(8): a(f"v_xor_b32 v{16+i}, s{34 + i % 4}, v{32+8*k+i}")
            a("v_or3_b32 v10, v16, v17, v18\nv_or3_b32 v10, v10, v19, v20\nv_or3_b32 v10, v10, v21, v22\nv_or_b32 v10, v10, v23\nv_and_b32 v10, 0x3ff, v10")
            a("v_cmp_ne_u32 vcc, 0, v10\ns_and_b64 exec, vcc, exec\ns_cbranch_scc0 L_rp_ok")
            rissue(k)
        a(f"s_add_u32 s44, s44, 1\ns_cmp_lt_u32 s44, {SPIN_MAX}\ns_cbranch_scc1 L_rp")
        a.label("L_rp_ok")
        a("s_mov_b64 exec, -1")
    stamp(10)
    a("v_pk_add_f32 v[16:17], v[16:17], v[20:21]\nv_pk_add_f32 v[18:19], v[18:19], v[22:23]")
    tred4(16)
    for k in (8, 4, 2, 1): a(f"v_add_f32_dpp v16, v16, v16 row_ror:{k} row_mask:0xf bank_mask:0xf")
    a("v_add_f32 v16, v16, v24\nv_cvt_pk_bf16_f32 v16, v16, v16")
    a("s_mov_b32 exec_lo, 0x10001\ns_mov_b32 exec_hi, 0x10001")
    a("buffer_store_short v16, v3, s[24:27], s52 offen")
    a("s_mov_b64 exec, 1")
    a("s_cmp_lg_u32 s60, 0\ns_cbranch_scc1 L_fin")
    a("buffer_store_dwordx2 v[26:27], off, s[4:7], 0 sc0 sc1")
    a("s_branch L_fin")

    G1 = 64; W2 = 128; SEL = 48; ACC = 56; AT = 40; XR = 16; OWN = 32
    AC2 = 52
    def mk_sel():
        a("v_and_b32 v60, 8, v7\nv_cmp_eq_u32 vcc, 0, v60")
        a("v_mov_b32 v60, 0x0c0c0302\nv_mov_b32 v61, 0x0c0c0100\nv_cndmask_b32 v60, v60, v61, vcc")
        a("v_and_b32 v61, 1, v7\nv_lshlrev_b32 v61, 4, v61\nv_alignbit_b32 v60, v60, v60, v61")
        a("v_bfe_u32 v62, v7, 1, 2\nv_mov_b32 v63, 0x0c0c0c0c")
        for d in range(4):
            a(f"v_cmp_eq_u32 vcc, {d}, v62")
            a(f"v_cndmask_b32 v{SEL+d}, v63, v60, vcc")
    def sp_perm(n):
        if n & 1: return
        at = AT + 4 * ((n >> 1) & 1)
        for d in range(4): a(f"v_perm_b32 v{at+d}, v{XR + n // 2}, v{XR + n // 2}, v{SEL+d}")
    def sp_mfma(breg, n, first):
        at = AT + 4 * ((n >> 1) & 1)
        ac = AC2 if n & 1 else ACC
        c = "0" if n < 2 else f"v[{ac}:{ac+3}]"
        a(f"v_mfma_f32_16x16x32_bf16 v[{ac}:{ac+3}], v[{at}:{at+3}], v[{breg}:{breg+3}], {c}")
    def sp_merge():
        a(f"v_permlane32_swap_b32 v{AC2}, v{AC2+1}\nv_permlane32_swap_b32 v{AC2+2}, v{AC2+3}")
        a(f"v_add_f32 v{ACC}, v{ACC}, v{AC2+1}\nv_add_f32 v{ACC+2}, v{ACC+2}, v{AC2+3}")
        a(f"v_permlane32_swap_b32 v{AC2+1}, v{AC2}\nv_permlane32_swap_b32 v{AC2+3}, v{AC2+2}")
        a(f"v_add_f32 v{ACC+1}, v{ACC+1}, v{AC2}\nv_add_f32 v{ACC+3}, v{ACC+3}, v{AC2+2}")
    def stream(kind, win):
        NG = {"A": 16, "F": 32, "N": 0}[kind]
        stride = 8192 if kind == "A" else 7168
        ops = [("G", n) for n in range(NG)]
        if kind == "A": ops += [("K", n) for n in range(8)] + [("V", n) for n in range(8)]
        ops += [("W", n) for n in range(16)]
        def issue(op):
            k, n = op
            if k == "G":
                if n: a(f"s_add_u32 s51, s51, {stride}")
                r = G1 + 4 * (n % 16)
                a(f"buffer_load_dwordx4 v[{r}:{r+3}], v2, s[12:15], s51 offen{NT}")
            elif k in "KV":
                a(f"s_add_u32 s53, s53, 1024\ns_and_b32 s53, s53, 0x1c00")
                if k == "K": a("s_bfe_u32 s40, s53, 0x2000a\ns_lshl_b32 s40, s40, 6")
                else: a("s_bfe_u32 s40, s53, 0x1000a\ns_lshl_b32 s40, s40, 7")
                a("s_or_b32 s40, s40, s53")
                a(f"v_xor_b32 v{12+(n&1)}, s40, v{10 if k == 'K' else 11}")
                a(f"s_add_u32 m0, s53, s{54 if k == 'K' else 55}")
                srd = 20 if k == "K" else 24
                a(f"buffer_load_dwordx4 v{12+(n&1)}, s[{srd}:{srd+3}], s50 offen{NT} lds")
            else:
                if n and n % 2 == 0: a("s_add_u32 s52, s52, 4096")
                a(f"buffer_load_dwordx4 v[{W2+4*n}:{W2+4*n+3}], v{3 if n < 8 else 0}, s[16:19], s52 offen offset:{2048*(n&1)}{NT}")
        def setup_rest():
            common()
            a("v_mov_b32 v5, 0x3ff")
            a("v_lshlrev_b32 v3, 15, v6\nv_lshl_or_b32 v3, v7, 4, v3")
            a("s_and_b32 s40, s62, 1\ns_lshl_b32 s40, s40, 10\ns_lshl_b32 s41, s46, 8\ns_add_u32 s40, s40, s41\ns_lshr_b32 s41, s60, 1")
            if kind == "A":
                a("v_mov_b32 v0, v3\ns_lshl_b32 s52, s41, 17\ns_add_u32 s52, s52, s40")
                a("v_xor_b32 v10, v7, v6\nv_lshlrev_b32 v10, 4, v10\nv_lshl_or_b32 v10, v6, 8, v10")
                a("v_lshlrev_b32 v11, 1, v6\nv_xor_b32 v11, v7, v11\nv_lshlrev_b32 v11, 4, v11\nv_lshl_or_b32 v11, v6, 8, v11")
                a(f"s_lshl_b32 s50, s61, 23\ns_lshl_b32 s40, s62, 15\ns_add_u32 s50, s50, s40\ns_lshl_b32 s54, s46, 13\ns_add_u32 s50, s50, s54\ns_add_u32 s50, s50, {28672*256}\ns_add_u32 s55, s54, {L_V}")
                a("s_lshl_b32 s53, s62, 10" if rot else "s_mov_b32 s53, 0x1c00")
            else:
                a(f"s_sub_u32 s41, s41, 64\ns_mul_i32 s52, s41, {56*2048}\ns_add_u32 s52, s52, s40")
                a("v_mov_b32 v60, 0x40000000\nv_cmp_eq_u32 vcc, 3, v6\nv_cndmask_b32 v0, v3, v60, vcc")
            mk_sel()
        def get_x():
            get_rec(60)
            a("v_and_b32 v62, 0xffff0000, v62")
            unpack(34, OWN)
            a("v_sub_f32 v34, v34, v62\nv_sub_f32 v35, v35, v62\nv_cvt_pk_bf16_f32 v36, v34, v35")
            unpack(34, 36)
            a("v_mul_f32 v34, v34, v63\nv_mul_f32 v35, v35, v63\nv_cvt_pk_bf16_f32 v36, v34, v35")
            a(f"s_lshl_b32 s40, s46, 8\ns_add_u32 s40, s40, {B+XN}\nv_lshl_add_u32 v37, v1, 2, s40\nds_write_b32 v37, v36")
            a(f"v_lshl_add_u32 v37, v6, {5 if kind == 'A' else 6}, s40")
            for i in range(NG // 8): a(f"ds_read_b128 v[{XR+4*i}:{XR+4*i+3}], v37 offset:{16*i}")
            a(f"s_lshl_b32 s40, s46, 9\ns_add_u32 s40, s40, {B+GP}\nv_lshl_add_u32 v33, v7, 1, v6\nv_lshl_add_u32 v33, v33, 4, s40")
            a("s_waitcnt lgkmcnt(0)")
            stamp(2)
        def consume(n):
            if n == 0: get_x()
            sp_perm(n); sp_mfma(G1 + 4 * (n % 16), n, n == 0)
            if n == NG - 1:
                sp_merge()
                a("s_mov_b32 exec_hi, 0")
                a(f"ds_write_b128 v33, v[{ACC}:{ACC+3}]")
                signal(C_G)
                stamp(4)
        nc = 0
        nl = -1
        if kind == "N": setup_rest(); a("s_barrier")
        for i, op in enumerate(ops):
            w = win
            if kind == "A" and w0 and i < n0 + w0: w = max(win, min(w0, n0 + w0 - i + win))
            if kind == "F" and w0f and i < n0f + w0f: w = max(win, min(w0f, n0f + w0f - i + win))
            if op[0] in "KV" and wkv: w = wkv
            if op[0] == "W" and ww and kind == "A": w = ww
            if op[0] == "W" and wwf and kind == "F": w = wwf
            newl = max(nl, i - w)
            if newl > nl or (newl == nl and i - w >= 0 and False):
                a(f"s_waitcnt vmcnt({i - 1 - newl})")
            evs = list(range(nl + 1, newl + 1)); nl = newl
            if op[0] == "G" and op[1] >= 16:
                while nc <= op[1] - 16: consume(nc); nc += 1
            issue(op)
            if i == max(win, (w0 if kind == "A" else w0f) or 0) - 1 and kind != "N":
                setup_rest(); a("s_barrier")
            for e in evs:
                if ops[e] == ("K", 7): signal(C_K); stamp(3)
                if ops[e] == ("V", 7): signal(C_V); stamp(6)
                if kind == "A" and e == tq: signal(C_TQ)
                if (kind == "A" and e == to) or (kind == "F" and e == th): signal(C_TO)
            k = 0
            while i >= cst and nc < NG and nc <= nl and k < 2:
                consume(nc); nc += 1; k += 1
        assert nc == NG
        if kind == "N":
            get_rec(60)
            a("s_waitcnt vmcnt(0)")
            signal(C_TO)
    a.label("L_S")
    a("s_sub_u32 s46, s3, 4")
    a("s_mov_b32 s15, 0x20000\ns_mov_b32 s19, 0x20000\ns_mov_b32 s10, 2048\ns_mov_b32 s11, 0x20000\nv_lshlrev_b32 v60, 2, v1")
    a("s_cmp_ge_u32 s61, 4\ns_cbranch_scc1 L_SF")
    a("s_load_dwordx2 s[12:13], s[0:1], 24\ns_load_dwordx2 s[16:17], s[0:1], 32\ns_load_dwordx2 s[20:21], s[0:1], 8\ns_load_dwordx2 s[24:25], s[0:1], 16")
    a("s_mov_b32 s14, 0x800000\ns_mov_b32 s18, 0x800000\ns_mov_b32 s22, 0x2000000\ns_mov_b32 s23, 0x20000\ns_mov_b32 s26, 0x2000000\ns_mov_b32 s27, 0x20000")
    a("v_lshlrev_b32 v2, 17, v6\nv_lshl_or_b32 v2, v7, 4, v2")
    a("s_and_b32 s40, s62, 3\ns_lshl_b32 s40, s40, 2\ns_add_u32 s40, s40, s46\ns_lshl_b32 s51, s40, 19\ns_lshl_b32 s49, s40, 7")
    a("s_lshl_b32 s40, s61, 3\ns_lshr_b32 s41, s62, 2\ns_add_u32 s40, s40, s41\ns_lshl_b32 s40, s40, 8\ns_add_u32 s51, s51, s40")
    a("s_waitcnt lgkmcnt(0)")
    a(f"buffer_load_dword v{OWN}, v60, s[8:11], s49 offen")
    stream("A", wa)
    a("s_branch L_Sfin")
    a.label("L_SF")
    a("s_load_dwordx2 s[12:13], s[0:1], 48\ns_load_dwordx2 s[28:29], s[0:1], 56\ns_load_dwordx2 s[16:17], s[0:1], 64")
    a("s_mov_b32 s14, 0x700000\ns_mov_b32 s18, 0x700000")
    f_ids()
    a(f"v_mul_u32_u24 v2, {32*7168}, v6\nv_lshl_add_u32 v2, v7, 4, v2")
    a(f"s_and_b32 s40, s55, 1\ns_lshl_b32 s40, s40, 2\ns_add_u32 s40, s40, s46\ns_mul_i32 s51, s40, {128*7168}\ns_lshl_b32 s49, s40, 8")
    a("s_sub_u32 s40, s61, 4\ns_mul_i32 s40, s40, 7\ns_lshr_b32 s41, s55, 2\ns_add_u32 s40, s40, s41\ns_lshl_b32 s40, s40, 8\ns_add_u32 s51, s51, s40")
    a("s_bitcmp1_b32 s55, 1")
    a("s_waitcnt lgkmcnt(0)")
    a("s_cselect_b32 s12, s28, s12\ns_cselect_b32 s13, s29, s13")
    a("s_cmp_eq_u32 s54, 1\ns_cbranch_scc1 L_SN")
    a(f"buffer_load_dword v{OWN}, v60, s[8:11], s49 offen")
    stream("F", wf)
    a("s_branch L_Sfin")
    a.label("L_SN")
    stream("N", wn)
    a.label("L_Sfin")
    stamp(5)
    a("v_lshl_add_u32 v11, v7, 1, v6\nv_lshlrev_b32 v11, 4, v11")
    a(f"s_lshl_b32 s50, s60, 11\ns_lshl_b32 s41, s46, 9\ns_add_u32 s50, s50, s41\ns_add_u32 s50, s50, {M3}")
    a(f"v_lshlrev_b32 v12, 5, v6\nv_add_u32 v12, {B+OV}, v12")
    lds_wait(C_OV, 2, 13, slp=0, extra=f"ds_read_b128 v[{XR}:{XR+3}], v12\nds_read_b128 v[{XR+4}:{XR+7}], v12 offset:16")
    stamp(8)
    sp_perm(0)
    for k in range(16):
        if 15 - k < 8: a(f"s_waitcnt vmcnt({15-k})")
        sp_mfma(W2 + 4*k, k, k == 0)
        if k % 2 == 0 and k + 2 < 16: sp_perm(k + 2)
    stamp(9)
    sp_merge()
    tag_regs([ACC, ACC+1, ACC+2, ACC+3], 5, 10)
    a("s_mov_b32 exec_hi, 0")
    a(f"buffer_store_dwordx4 v[{ACC}:{ACC+3}], v11, s[4:7], s50 offen sc1")
    a("s_barrier")
    a.label("L_fin")
    stamp(11)
    stamp_out()
    a.label("L_end")
    a("s_endpgm")
    a.raw('.section .rodata,"a"'); a.raw(".p2align 6"); a.raw(f".amdhsa_kernel {NAME}_kernel")
    a.raw("  .amdhsa_next_free_vgpr 192"); a.raw("  .amdhsa_next_free_sgpr 100"); a.raw("  .amdhsa_accum_offset 192")
    a.raw("  .amdhsa_group_segment_fixed_size 0"); a.raw("  .amdhsa_kernarg_size 96"); a.raw("  .amdhsa_user_sgpr_count 2")
    a.raw("  .amdhsa_user_sgpr_kernarg_segment_ptr 1"); a.raw("  .amdhsa_system_sgpr_workgroup_id_x 1"); a.raw(".end_amdhsa_kernel")
    return a.text()

if __name__ == "__main__":
    for spec in sys.argv[1:]:
        nm, _, kv = spec.partition(":")
        kw = {}
        for p in kv.split(","):
            if p:
                k, v = p.split("="); kw[k] = int(v)
        open(nm + ".s", "w").write(gen(**kw))
        open(nm + "_st.s", "w").write(gen(stamps=True, **kw))
```

```python
import sys, struct
from asmlib import Asm
NAME = "parallel_sum__sliding_block_cached__glu_gated_geglu__decode"
def f32(x): return "0x%08x" % struct.unpack("<I", struct.pack("<f", x))[0]

MQ = 0x10000; MML = 0x20000; MH = 0x30000; MO = 0x40000; GD = 0xC0000; M3 = 0x180000
STAMP = 128 << 20
L_K = 0; L_V = 32768; B = 65536
XN = 0; GP = 1024; QBI = 3072; SCX = 5120; OV = 7168; CO = 7296
LDS_BYTES = B + 7360
C_G, C_K, C_V, C_QB, C_REC, C_SC, C_OV, C_TQ, C_TO = 0, 4, 8, 12, 16, 32, 36, 40, 44
LOG2E = 1.4426950408889634
SPIN_MAX = 200000

def gen(nt=True, stamps=False, wa=6, wf=6, sleep=2, dq=0, do=0, dh=0, dr=12, rsleep=1, local=1, gper=4, cst=10, wkv=None, ww=None, rot=1, tq=21, to=36, th=35, tcq=4, tco=4, redf=0, wwf=None, nog=0, pl1=0, w0=None, n0=8, w0f=None, n0f=8, wn=2, rk=1, rgap=5, dw=None, ds=0, dx=-1):
    a = Asm()
    NT = " nt" if nt else ""
    hdr = open("cdna_kernels/" + NAME + ".s.ref").read().split("\n")
    for l in hdr:
        if l.startswith("; @launch"): break
        a.raw(l)
    a.raw(f"; @launch grid=(256,1,1) block=(512,1,1) lds={LDS_BYTES}")
    a.raw('.amdgcn_target "amdgcn-amd-amdhsa--gfx950"')
    a.raw(".text"); a.raw(f".globl {NAME}_kernel"); a.raw(".p2align 8"); a.raw(f".type {NAME}_kernel,@function"); a.raw(f"{NAME}_kernel:")
    NST = 15
    uid = [0]
    def stamp(i):
        if stamps or (dw is not None and i in (0, ds)): a(f"s_memrealtime s[{64+2*i}:{65+2*i}]")
    def stamp_out():
        if not stamps: return
        a("s_mov_b64 exec, -1")
        a("s_waitcnt lgkmcnt(0)")
        for i in range(2 * NST): a(f"v_writelane_b32 v3, s{64+i}, {i}")
        a(f"s_lshl_b32 s40, s2, 3\ns_add_u32 s40, s40, s3\ns_mul_i32 s40, s40, {NST*8}\ns_add_u32 s40, s40, {STAMP}")
        a(f"v_lshlrev_b32 v4, 2, v1\nv_cmp_gt_u32 vcc, {2*NST}, v1\ns_and_saveexec_b64 s[42:43], vcc")
        a("buffer_store_dword v3, v4, s[4:7], s40 offen")
    def swapred(op, kind, regs, tmp):
        for i, r in enumerate(regs): a(f"v_mov_b32 v{tmp+i}, v{r}")
        for i, r in enumerate(regs): a(f"v_permlane{kind}_swap_b32 v{r}, v{tmp+i}")
        for i, r in enumerate(regs): a(f"{op} v{r}, v{r}, v{tmp+i}")
    def allreduce(op, v, t, lo=(8, 4, 2, 1)):
        for k in lo: a(f"{op}_dpp v{v}, v{v}, v{v} row_ror:{k} row_mask:0xf bank_mask:0xf")
        swapred(op, 16, [v], t); swapred(op, 32, [v], t)
    def tred4(r):
        a(f"v_permlane32_swap_b32 v{r}, v{r+1}\nv_permlane32_swap_b32 v{r+2}, v{r+3}")
        a(f"v_add_f32 v{r}, v{r}, v{r+1}\nv_add_f32 v{r+2}, v{r+2}, v{r+3}")
        a(f"v_permlane16_swap_b32 v{r}, v{r+2}")
        a(f"v_add_f32 v{r}, v{r}, v{r+2}")
    def unpack(dst, src):
        a(f"v_lshlrev_b32 v{dst}, 16, v{src}\nv_and_b32 v{dst+1}, 0xffff0000, v{src}")
    def mk_tags():
        a("s_and_b32 s30, s38, 0xfff\ns_bfe_u32 s31, s38, 0xc000c\ns_and_b32 s32, s39, 0xfff\ns_bfe_u32 s33, s39, 0xc000c")
    def tag_regs(regs, vmask, bits, rn=True):
        if rn:
            for r in regs: a(f"v_add_u32 v{r}, {1 << (bits-1)}, v{r}")
        for i, r in enumerate(regs): a(f"v_bfi_b32 v{r}, v{vmask}, s{30 + i % 4}, v{r}")
    def backoff(n):
        while n > 0:
            k = min(n, 127); a(f"s_sleep {k}"); n -= k
    def publish(vd, voff, soff):
        if local:
            a(f"buffer_store_dwordx4 v[{vd}:{vd+3}], v{voff}, s[4:7], s{soff} offen")
        if nog: return
        a(f"s_add_u32 s45, s{soff}, {GD}")
        a(f"buffer_store_dwordx4 v[{vd}:{vd+3}], v{voff}, s[4:7], s45 offen sc1")
    def poll(loads, bases, regs, bits, t, lanemask=None, pre=None, delay=0, slot=13, slp=None, dual=True, wk0=46, first_wait=0, parts=None):
        uid[0] += 1
        L = f"L_poll{uid[0]}"
        slp = sleep if slp is None else slp
        m = (1 << bits) - 1
        for i in range(4): a(f"s_and_b32 s{34+i}, s{30+i}, {m}")
        def issue(first=False):
            for vd, vo, bi, imm in loads:
                a(f"buffer_load_dwordx4 v[{vd}:{vd+3}], v{vo}, s[4:7], s{wk[bi]} offen offset:{imm}" + ("" if (first and pl1) else " sc1"))
        if dual:
            wk = [wk0 + i for i in range(len(bases))]
            for i, b in enumerate(bases):
                a(f"s_mov_b32 s{wk[i]}, s{b}" if local else f"s_add_u32 s{wk[i]}, s{b}, {GD}")
        else: wk = bases
        if parts == "issue":
            if slot == 13: stamp(14)
            issue(True); uid[0] -= 1
            return
        backoff(delay)
        if slot == 13 and parts is None: stamp(14)
        if lanemask is not None: a(f"s_mov_b64 exec, {lanemask}")
        if parts == "check":
            a("s_mov_b32 s44, 0")
            a(f"s_branch {L}_w")
        elif pre is not None:
            issue(True); pre()
            a("s_mov_b32 s44, 0")
            if first_wait:
                a(f"s_waitcnt vmcnt({first_wait})")
                a(f"s_branch {L}_c")
            else:
                a(f"s_branch {L}_w")
        else:
            a("s_mov_b32 s44, 0")
        a.label(L)
        issue()
        a.label(L + "_w")
        a("s_waitcnt vmcnt(0)")
        a.label(L + "_c")
        for i, r in enumerate(regs): a(f"v_xor_b32 v{r}, s{34 + i % 4}, v{r}")
        a(f"v_or3_b32 v{t}, v{regs[0]}, v{regs[1]}, v{regs[2]}")
        rest = regs[3:]
        while len(rest) >= 2:
            a(f"v_or3_b32 v{t}, v{t}, v{rest[0]}, v{rest[1]}"); rest = rest[2:]
        if rest: a(f"v_or_b32 v{t}, v{t}, v{rest[0]}")
        a(f"v_and_b32 v{t}, {m}, v{t}")
        a(f"v_cmp_ne_u32 vcc, 0, v{t}")
        a("s_and_b64 exec, vcc, exec")
        a(f"s_cbranch_scc0 {L}_ok")
        if slp: a(f"s_sleep {slp}")
        a("s_add_u32 s44, s44, 1")
        if dual and local:
            a(f"s_and_b32 s45, s44, {gper-1}\ns_cmp_eq_u32 s45, {gper-1}\ns_cselect_b32 s45, {GD}, 0")
            for i, b in enumerate(bases): a(f"s_add_u32 s{wk[i]}, s{b}, s45")
        a(f"s_cmp_lt_u32 s44, {SPIN_MAX}\ns_cbranch_scc1 {L}")
        a.label(L + "_ok")
        a("s_mov_b64 exec, -1")
        if stamps: a(f"s_mul_i32 s{64+2*slot}, s44, 100\ns_add_u32 s{64+2*slot}, s{64+2*slot}, s64\ns_addc_u32 s{65+2*slot}, s65, 0")
    def lds_wait(off, val, t, slp=1, extra=None):
        uid[0] += 1
        L = f"L_lw{uid[0]}"
        a("s_mov_b32 s44, 0")
        a.label(L)
        a(f"ds_read_b32 v{t}, v8 offset:{CO + off}")
        if extra: a(extra)
        a("s_waitcnt lgkmcnt(0)")
        a(f"v_readfirstlane_b32 s45, v{t}")
        a(f"s_cmp_ge_u32 s45, {val}\ns_cbranch_scc1 {L}_ok")
        if slp: a(f"s_sleep {slp}")
        a(f"s_add_u32 s44, s44, 1\ns_cmp_lt_u32 s44, {SPIN_MAX*8}\ns_cbranch_scc1 {L}")
        a.label(L + "_ok")
    def signal(off):
        a("s_mov_b64 exec, 1")
        a(f"ds_add_u32 v8, v9 offset:{CO+off}")
        a("s_mov_b64 exec, -1")
    def get_rec(r):
        uid[0] += 1
        L = f"L_tg{uid[0]}"
        a("s_mov_b32 s44, 0")
        a.label(L)
        a(f"ds_read_b128 v[{r}:{r+3}], v8 offset:{CO+C_REC}")
        a("s_waitcnt lgkmcnt(0)")
        a(f"v_readfirstlane_b32 s45, v{r+2}\nv_readfirstlane_b32 s38, v{r}\nv_readfirstlane_b32 s39, v{r+1}")
        a(f"s_bitcmp1_b32 s45, 0\ns_cbranch_scc1 {L}_ok")
        a(f"s_sleep 1\ns_add_u32 s44, s44, 1\ns_cmp_lt_u32 s44, {SPIN_MAX*8}\ns_cbranch_scc1 {L}")
        a.label(L + "_ok")
        mk_tags()
    def f_ids():
        a("s_sub_u32 s40, s62, 24\ns_lshr_b32 s40, s40, 1\ns_add_u32 s40, s40, 24\ns_cmp_lt_u32 s62, 24\ns_cselect_b32 s55, s62, s40")
        a("s_and_b32 s40, s62, 25\ns_cmp_eq_u32 s40, 24\ns_cselect_b32 s54, 1, 0")

    stamp(0)
    a("s_cmp_ge_u32 s2, 256\ns_cbranch_scc1 L_end")
    a("v_lshrrev_b32 v2, 6, v0\nv_and_b32 v1, 63, v0")
    a("s_load_dwordx2 s[4:5], s[0:1], 88\ns_load_dwordx2 s[8:9], s[0:1], 0")
    a("v_readfirstlane_b32 s3, v2")
    a("s_and_b32 s61, s2, 7\ns_lshr_b32 s62, s2, 3")
    a("v_lshrrev_b32 v6, 4, v1\nv_and_b32 v7, 15, v1\nv_lshlrev_b32 v4, 4, v1")
    a("s_cmp_ge_u32 s3, 4\ns_cbranch_scc1 L_S")
    def common():
        if stamps:
            for i in range(1, NST): a(f"s_mov_b64 s[{64+2*i}:{65+2*i}], 0")
        a("s_mov_b32 s6, 0x10000000\ns_mov_b32 s7, 0x20000\ns_mov_b32 s10, 2048\ns_mov_b32 s11, 0x20000")
        a("s_lshl_b32 s60, s61, 5\ns_add_u32 s60, s60, s62")
        a(f"v_mov_b32 v8, {B}\nv_mov_b32 v9, 1")
    a("s_setprio 3")
    common()
    a("s_cmp_lg_u32 s3, 0\ns_cbranch_scc1 L_Cn0")
    X, F, EV = 16, 28, 24
    a("s_waitcnt lgkmcnt(0)")
    a(f"buffer_load_dwordx4 v[{X}:{X+3}], v4, s[8:11], 0 offen")
    a(f"buffer_load_dwordx4 v[{X+4}:{X+7}], v4, s[8:11], 0 offen offset:1024")
    a(f"buffer_load_dwordx2 v[{EV}:{EV+1}], off, s[4:7], 0 sc0 sc1")
    a("s_barrier")
    a("s_waitcnt vmcnt(1)")
    stamp(2)
    for i in range(8): unpack(F + 2*i, X + i)
    S, T = F + 16, F + 17
    for i in range(4): a(f"v_pk_add_f32 v[{X+2*i}:{X+2*i+1}], v[{F+4*i}:{F+4*i+1}], v[{F+4*i+2}:{F+4*i+3}]")
    a(f"v_pk_add_f32 v[{X}:{X+1}], v[{X}:{X+1}], v[{X+2}:{X+3}]\nv_pk_add_f32 v[{X+4}:{X+5}], v[{X+4}:{X+5}], v[{X+6}:{X+7}]")
    a(f"v_pk_add_f32 v[{X}:{X+1}], v[{X}:{X+1}], v[{X+4}:{X+5}]\nv_add_f32 v{S}, v{X}, v{X+1}")
    allreduce("v_add_f32", S, T)
    a(f"v_mul_f32 v{S}, {f32(1/1024)}, v{S}")
    M = X + 2
    a(f"v_mov_b32 v{M}, v{S}\nv_mov_b32 v{M+1}, v{S}")
    for i in range(8): a(f"v_pk_add_f32 v[{F+2*i}:{F+2*i+1}], v[{F+2*i}:{F+2*i+1}], v[{M}:{M+1}] neg_lo:[0,1] neg_hi:[0,1]")
    a(f"v_pk_mul_f32 v[{X}:{X+1}], v[{F}:{F+1}], v[{F}:{F+1}]\nv_pk_mul_f32 v[{X+4}:{X+5}], v[{F+2}:{F+3}], v[{F+2}:{F+3}]")
    for i in range(2, 8):
        d = X if i % 2 == 0 else X + 4
        a(f"v_pk_fma_f32 v[{d}:{d+1}], v[{F+2*i}:{F+2*i+1}], v[{F+2*i}:{F+2*i+1}], v[{d}:{d+1}]")
    V = X + 6
    a(f"v_pk_add_f32 v[{X}:{X+1}], v[{X}:{X+1}], v[{X+4}:{X+5}]\nv_add_f32 v{V}, v{X}, v{X+1}")
    allreduce("v_add_f32", V, T)
    a(f"v_mul_f32 v{V}, {f32(1/1024)}, v{V}")
    a(f"v_cvt_pk_bf16_f32 v{T}, v{S}, v{V}")
    a(f"v_lshl_or_b32 v{EV+2}, v{T}, 16, 1")
    a(f"v_and_b32 v{V}, 0xffff0000, v{T}\nv_add_f32 v{V}, {f32(1e-5)}, v{V}")
    a(f"v_cvt_pk_bf16_f32 v{V}, v{V}, v{V}\nv_and_b32 v{V}, 0xffff0000, v{V}\nv_sqrt_f32 v{V}, v{V}")
    a(f"v_cvt_pk_bf16_f32 v{V}, v{V}, v{V}\nv_and_b32 v{V}, 0xffff0000, v{V}\nv_rcp_f32 v{EV+3}, v{V}")
    a("s_waitcnt vmcnt(0)")
    a(f"v_add_u32 v{EV}, 0x7f4a7c15, v{EV}\nv_add_u32 v{EV+1}, 0x9e3779b9, v{EV+1}")
    a("s_mov_b64 exec, 1")
    a(f"ds_write_b128 v8, v[{EV}:{EV+3}] offset:{CO+C_REC}")
    a("s_mov_b64 exec, -1")
    stamp(3)
    a("s_branch L_Cj")
    a.label("L_Cn0")
    a("v_mov_b32 v16, 0\nv_mov_b32 v17, 0\nv_mov_b32 v18, 0\nv_mov_b32 v19, 0")
    a(f"ds_write_b128 v8, v[16:19] offset:{CO}\nds_write_b128 v8, v[16:19] offset:{CO+16}\nds_write_b128 v8, v[16:19] offset:{CO+32}")
    a("s_waitcnt lgkmcnt(0)")
    a("s_barrier")
    a.label("L_Cj")
    a("s_cmp_ge_u32 s61, 4\ns_cbranch_scc1 L_CF")

    GPRD = "\n".join(f"ds_read_b128 v[{16+4*i}:{19+4*i}], v12 offset:{512*i}" for i in range(4))
    def gemv1_reduce(voff, soff, bits, vmask):
        a("s_mov_b32 exec_hi, 0")
        a("v_pk_add_f32 v[16:17], v[16:17], v[20:21]\nv_pk_add_f32 v[18:19], v[18:19], v[22:23]")
        a("v_pk_add_f32 v[24:25], v[24:25], v[28:29]\nv_pk_add_f32 v[26:27], v[26:27], v[30:31]")
        a("v_pk_add_f32 v[32:33], v[16:17], v[24:25]\nv_pk_add_f32 v[34:35], v[18:19], v[26:27]")
        tag_regs([32, 33, 34, 35], vmask, bits)
        publish(32, voff, soff)
        a("s_mov_b64 exec, -1")
    KF = 64; VF = 96; QR = 40; QB = 16
    a(f"s_lshl_b32 s50, s61, 14\ns_add_u32 s50, s50, {MQ}")
    a("s_and_b32 s40, s62, 3\ns_lshl_b32 s40, s40, 10\ns_add_u32 s51, s50, s40\ns_lshr_b32 s40, s62, 2\ns_lshl_b32 s40, s40, 7\ns_add_u32 s51, s51, s40")
    a("s_lshl_b32 s40, s3, 12\ns_add_u32 s50, s50, s40")
    a("v_lshrrev_b32 v11, 3, v1\nv_lshlrev_b32 v11, 12, v11\nv_and_b32 v10, 7, v1\nv_lshl_or_b32 v11, v10, 4, v11\nv_mov_b32 v13, 0xff")
    get_rec(16)
    a("s_cmp_lg_u32 s3, 1\ns_cbranch_scc1 L_Aq")
    a(f"v_and_b32 v12, 0x1f0, v4\nv_add_u32 v12, {B+GP}, v12")
    lds_wait(C_G, 4, 10, extra=GPRD)
    gemv1_reduce(11, 51, 8, 13)
    stamp(9)
    a.label("L_Aq")
    if True:
        a("v_bfe_u32 v2, v1, 1, 2\nv_lshlrev_b32 v2, 7, v2\nv_lshrrev_b32 v3, 3, v1\nv_lshl_or_b32 v2, v3, 4, v2\nv_and_b32 v3, 1, v1\nv_lshl_or_b32 v2, v3, 3, v2")
        a(f"s_lshl_b32 s40, s3, 9\ns_add_u32 s40, s40, {B}\nv_add_u32 v2, s40, v2")
        a("v_and_b32 v10, 7, v7\nv_lshlrev_b32 v12, 7, v6\nv_lshl_or_b32 v12, v10, 4, v12")
        a("v_lshrrev_b32 v5, 3, v7")
        a("v_lshl_add_u32 v3, v5, 3, v12\nv_add_u32 v3, s40, v3")
        a(f"v_add_u32 v12, {B}, v12\nv_lshl_add_u32 v0, v5, 10, v12")
        a("v_lshlrev_b32 v11, 14, v10\nv_lshl_or_b32 v11, v5, 6, v11\nv_lshl_or_b32 v11, v6, 4, v11")
        a(f"s_lshl_b32 s53, s61, 17\ns_lshl_b32 s40, s3, 12\ns_add_u32 s53, s53, s40\ns_and_b32 s40, s62, 3\ns_lshl_b32 s40, s40, 10\ns_add_u32 s53, s53, s40\ns_lshr_b32 s40, s62, 2\ns_lshl_b32 s40, s40, 7\ns_add_u32 s53, s53, s40\ns_add_u32 s53, s53, {MO}")
        a(f"s_lshl_b32 s52, s60, 7\ns_add_u32 s52, s52, {MML}")
        a("v_mov_b32 v13, 0xfff\nv_cmp_gt_u32 s[54:55], 8, v7")
        a("v_lshrrev_b32 v14, 2, v1\nv_lshlrev_b32 v14, 8, v14\nv_bfe_u32 v15, v1, 1, 4\nv_lshl_or_b32 v14, v15, 4, v14\nv_and_b32 v15, 1, v1\nv_lshl_or_b32 v14, v15, 3, v14")
        a("s_lshl_b32 s40, s3, 6\nv_xor_b32 v14, s40, v14\nv_xor_b32 v15, 32, v14")
        a("v_xor_b32 v56, v6, v7\nv_lshlrev_b32 v56, 4, v56\nv_lshl_or_b32 v56, v7, 8, v56\ns_lshl_b32 s40, s3, 13\nv_add_u32 v56, s40, v56")
        for s in range(1, 4): a(f"v_xor_b32 v{56+s}, {64*s}, v56")
        a(f"s_mov_b32 s40, {f32(128**-0.5)}\ns_mov_b32 s41, {f32(LOG2E)}")
    def pre_k():
        lds_wait(C_K, 4, 10)
        stamp(4)
        for T in range(2):
            for s in range(4):
                r = KF + 16*T + 4*s
                a(f"ds_read_b128 v[{r}:{r+3}], v{56+s} offset:{L_K + 4096*T}")
    lds_wait(C_TQ, tcq, 10)
    poll([(QR + 4*p, 4, 0, 1024*p) for p in range(4)], [50], list(range(QR, QR+16)), 8, 10, pre=pre_k, delay=dq, slot=12)
    stamp(5)
    a(f"v_pk_add_f32 v[{QR}:{QR+1}], v[{QR}:{QR+1}], v[{QR+4}:{QR+5}]\nv_pk_add_f32 v[{QR+2}:{QR+3}], v[{QR+2}:{QR+3}], v[{QR+6}:{QR+7}]")
    a(f"v_pk_add_f32 v[{QR+8}:{QR+9}], v[{QR+8}:{QR+9}], v[{QR+12}:{QR+13}]\nv_pk_add_f32 v[{QR+10}:{QR+11}], v[{QR+10}:{QR+11}], v[{QR+14}:{QR+15}]")
    a(f"v_pk_add_f32 v[{QR}:{QR+1}], v[{QR}:{QR+1}], v[{QR+8}:{QR+9}]\nv_pk_add_f32 v[{QR+2}:{QR+3}], v[{QR+2}:{QR+3}], v[{QR+10}:{QR+11}]")
    a(f"v_cvt_pk_bf16_f32 v16, v{QR}, v{QR+1}\nv_cvt_pk_bf16_f32 v17, v{QR+2}, v{QR+3}")
    a(f"ds_write_b64 v2, v[16:17] offset:{QBI}")
    signal(C_QB)
    lds_wait(C_QB, 4, 10, slp=0, extra="\n".join(f"ds_read_b128 v[{QB+4*s}:{QB+4*s+3}], v12 offset:{QBI + 512*s}" for s in range(4)))
    SC = 32
    for s in range(4):
        for T in range(2):
            c = "0" if s == 0 else f"v[{SC+4*T}:{SC+4*T+3}]"
            a(f"v_mfma_f32_16x16x32_bf16 v[{SC+4*T}:{SC+4*T+3}], v[{KF+16*T+4*s}:{KF+16*T+4*s+3}], v[{QB+4*s}:{QB+4*s+3}], {c}")
    for i in range(4): a(f"v_cndmask_b32 v{40+i}, v{SC+4+i}, v{SC+i}, s[54:55]")
    a("v_cvt_pk_bf16_f32 v44, v40, v41\nv_cvt_pk_bf16_f32 v45, v42, v43")
    unpack(40, 44); unpack(42, 45)
    for i in range(4): a(f"v_mul_f32 v{40+i}, s40, v{40+i}")
    a("v_cvt_pk_bf16_f32 v44, v40, v41\nv_cvt_pk_bf16_f32 v45, v42, v43")
    a(f"ds_write_b64 v3, v[44:45] offset:{SCX}")
    signal(C_SC)
    lds_wait(C_SC, 4, 10, slp=0, extra=f"ds_read_b128 v[16:19], v0 offset:{SCX}\nds_read_b128 v[20:23], v0 offset:{SCX+512}")
    P = 32
    for i in range(8): unpack(P + 2*i, 16 + i)
    ML = 60
    a(f"v_max3_f32 v{ML}, v{P}, v{P+1}, v{P+2}\nv_max3_f32 v24, v{P+3}, v{P+4}, v{P+5}\nv_max3_f32 v25, v{P+6}, v{P+7}, v{P+8}\nv_max3_f32 v26, v{P+9}, v{P+10}, v{P+11}")
    a(f"v_max3_f32 v{ML}, v{ML}, v{P+12}, v{P+13}\nv_max3_f32 v24, v24, v{P+14}, v{P+15}\nv_max3_f32 v{ML}, v{ML}, v25, v26\nv_max_f32 v{ML}, v{ML}, v24")
    allreduce("v_max_f32", ML, 24, lo=(8,))
    a(f"v_mul_f32 v24, s41, v{ML}")
    for i in range(16): a(f"v_fma_f32 v{P+i}, v{P+i}, s41, -v24")
    for i in range(16): a(f"v_exp_f32 v{P+i}, v{P+i}")
    PA = 16; PB = 24
    for i in range(8): a(f"v_cvt_pk_bf16_f32 v{PA+i}, v{P+2*i}, v{P+2*i+1}")
    for i in range(8): a(f"v_mov_b32 v{PB+i}, v{PA+i}")
    for i in range(8): a(f"v_mov_b32_dpp v{PB+i}, v{PA+i} row_ror:8 row_mask:0xf bank_mask:0x3")
    for i in range(8): a(f"v_mov_b32_dpp v{PA+i}, v{PA+i} row_ror:8 row_mask:0xf bank_mask:0xc")
    a("s_cmp_lg_u32 s3, 3\ns_cbranch_scc1 L_Apv")
    for i in range(4): a(f"v_pk_add_f32 v[{P+4*i}:{P+4*i+1}], v[{P+4*i}:{P+4*i+1}], v[{P+4*i+2}:{P+4*i+3}]")
    a(f"v_pk_add_f32 v[{P}:{P+1}], v[{P}:{P+1}], v[{P+4}:{P+5}]\nv_pk_add_f32 v[{P+8}:{P+9}], v[{P+8}:{P+9}], v[{P+12}:{P+13}]")
    a(f"v_pk_add_f32 v[{P}:{P+1}], v[{P}:{P+1}], v[{P+8}:{P+9}]\nv_add_f32 v{ML+1}, v{P}, v{P+1}")
    allreduce("v_add_f32", ML+1, 48, lo=(8,))
    a(f"v_mov_b32 v{ML+2}, v{ML}\nv_mov_b32 v{ML+3}, v{ML+1}")
    tag_regs([ML, ML+1, ML+2, ML+3], 13, 12, rn=False)
    a("s_mov_b64 exec, 0xff")
    publish(ML, 4, 52)
    a("s_mov_b64 exec, -1")
    a.label("L_Apv")
    stamp(1)
    lds_wait(C_V, 4, 10, slp=0)
    stamp(10)
    OA = 64
    for u in range(4):
        for dt in range(2):
            for e in range(2):
                r = VF + 8*u + 4*dt + 2*e
                a(f"ds_read_b64_tr_b16 v[{r}:{r+1}], v{14+dt} offset:{L_V + 4096*(2*u+e)}")
        if u == 2: a("s_waitcnt lgkmcnt(8)")
        if u >= 2:
            pass
    for u in range(4):
        a(f"s_waitcnt lgkmcnt({12-4*u})")
        for dt in range(2):
            c = "0" if u == 0 else f"v[{OA+4*dt}:{OA+4*dt+3}]"
            a(f"v_mfma_f32_16x16x32_bf16 v[{OA+4*dt}:{OA+4*dt+3}], v[{VF+8*u+4*dt}:{VF+8*u+4*dt+3}], v[{PA+4*u}:{PA+4*u+3}], {c}")
    for r in range(4): a(f"v_cndmask_b32 v{OA+r}, v{OA+4+r}, v{OA+r}, s[54:55]")
    tag_regs([OA+r for r in range(4)], 13, 12, rn=False)
    publish(OA, 11, 53)
    stamp(6)
    if redf: a("s_cmp_ge_u32 s3, 2\ns_cbranch_scc1 L_fin")
    else: a("s_cmp_eq_u32 s3, 2\ns_cbranch_scc1 L_RED\ns_cmp_eq_u32 s3, 3\ns_cbranch_scc1 L_fin")
    a(f"s_lshr_b32 s50, s60, 1\ns_lshl_b32 s50, s50, 13\ns_lshl_b32 s40, s3, 12\ns_add_u32 s50, s50, s40\ns_add_u32 s50, s50, {MO}")
    a(f"s_lshl_b32 s51, s61, 12\ns_lshr_b32 s40, s62, 2\ns_lshl_b32 s40, s40, 4\ns_add_u32 s51, s51, s40\ns_add_u32 s51, s51, {MML}")
    a("v_lshrrev_b32 v2, 3, v1\nv_lshlrev_b32 v2, 2, v2\nv_and_b32 v3, 3, v1\nv_or_b32 v2, v2, v3\nv_lshlrev_b32 v2, 7, v2")
    a("v_and_b32 v12, 7, v1\nv_lshlrev_b32 v12, 3, v12\nv_lshrrev_b32 v3, 5, v1\nv_lshl_or_b32 v12, v3, 1, v12\nv_bfe_u32 v3, v1, 4, 1\nv_lshl_or_b32 v12, v3, 2, v12")
    a(f"s_lshl_b32 s40, s3, 6\ns_add_u32 s40, s40, {B+OV}\nv_add_u32 v12, s40, v12")
    MLR = 16; OR_ = 20
    oloads = [(OR_ + 4*i, 4, 0, 1024*i) for i in range(4)]
    lds_wait(C_TO, tco, 10)
    def pre_o():
        poll(oloads, [50], None, 12, 10, parts="issue")
    poll([(MLR, 2, 0, 0)], [51], list(range(MLR, MLR+4)), 12, 10, pre=pre_o, first_wait=4, wk0=47, slot=12)
    allreduce("v_max_f32", MLR+2, 10, lo=(8, 2, 1))
    a(f"v_sub_f32 v{MLR}, v{MLR}, v{MLR+2}\nv_mul_f32 v{MLR}, s41, v{MLR}\nv_exp_f32 v{MLR}, v{MLR}")
    a(f"v_mul_f32 v{MLR+1}, v{MLR}, v{MLR+1}")
    allreduce("v_add_f32", MLR+1, 10, lo=(8, 2, 1))
    a(f"v_rcp_f32 v{MLR+1}, v{MLR+1}")
    a(f"v_mul_f32 v{MLR}, v{MLR}, v{MLR+1}")
    poll(oloads, [50], list(range(OR_, OR_+16)), 12, 10, parts="check")
    stamp(7)
    for r in range(4): a(f"v_mul_f32_dpp v{40+r}, v{MLR}, v{OR_+r} quad_perm:[0,0,0,0] row_mask:0xf bank_mask:0xf")
    for i in range(1, 4):
        for r in range(4): a(f"v_fmac_f32_dpp v{40+r}, v{MLR}, v{OR_+4*i+r} quad_perm:[{i},{i},{i},{i}] row_mask:0xf bank_mask:0xf")
    tred4(40)
    a("v_add_f32_dpp v40, v40, v40 row_ror:8 row_mask:0xf bank_mask:0xf")
    a("v_cvt_pk_bf16_f32 v40, v40, v40")
    a("ds_write_b16 v12, v40")
    signal(C_OV)
    stamp(8)
    a("s_branch L_fin")

    a.label("L_CF")
    a("s_cmp_eq_u32 s3, 0\ns_cbranch_scc1 L_fin")
    if not redf: a("s_cmp_eq_u32 s3, 3\ns_cbranch_scc1 L_fin")
    get_rec(16)
    a("s_cmp_ge_u32 s3, 2\ns_cbranch_scc1 L_RED")
    f_ids()
    a("s_lshr_b32 s40, s55, 2\ns_lshl_b32 s40, s40, 5\nv_add_u32 v11, s40, v1")
    a("v_mul_u32_u24 v12, 4682, v11\nv_lshrrev_b32 v12, 16, v12\nv_mul_u32_u24 v13, 14, v12\nv_sub_u32 v11, v11, v13")
    a("v_lshlrev_b32 v12, 10, v12\nv_lshl_or_b32 v11, v11, 4, v12\nv_mov_b32 v13, 0x3ff")
    a(f"s_sub_u32 s50, s61, 4\ns_lshl_b32 s50, s50, 14\ns_add_u32 s50, s50, {MH}")
    a("s_and_b32 s40, s55, 1\ns_lshl_b32 s40, s40, 9\ns_add_u32 s51, s50, s40\ns_bfe_u32 s40, s55, 0x10001\ns_lshl_b32 s40, s40, 8\ns_add_u32 s51, s51, s40")
    a("s_lshr_b32 s40, s62, 1\ns_lshl_b32 s40, s40, 10\ns_add_u32 s50, s50, s40")
    a("s_mov_b32 s52, 0x3fff3fff\ns_mov_b32 s53, 0x3fff3fff")
    a("s_cmp_eq_u32 s54, 1\ns_cbranch_scc1 L_Fh")
    a(f"v_and_b32 v12, 0x1f0, v4\nv_add_u32 v12, {B+GP}, v12")
    lds_wait(C_G, 4, 10, extra=GPRD)
    gemv1_reduce(11, 51, 10, 13)
    a.label("L_Fh")
    stamp(9)
    lds_wait(C_TO, tco, 10)
    poll([(16, 4, 0, 0)], [50], [16, 17, 18, 19], 10, 10, lanemask="s[52:53]", delay=dh, slp=4)
    stamp(7)
    swapred("v_add_f32", 32, [16, 17, 18, 19], 20)
    a("v_cvt_pk_bf16_f32 v20, v16, v17\nv_cvt_pk_bf16_f32 v21, v18, v19")
    a("v_mov_b32 v30, v20\nv_mov_b32 v31, v21")
    a("v_permlane16_swap_b32 v20, v30\nv_permlane16_swap_b32 v21, v31")
    unpack(16, 20); unpack(18, 21)
    k0 = 0.7978845608028654; k1 = 0.044715
    a(f"s_mov_b32 s40, {f32(-2*LOG2E*k0*k1)}\nv_mov_b32 v28, {f32(-2*LOG2E*k0)}")
    for r in range(4): a(f"v_mul_f32 v{20+r}, v{16+r}, v{16+r}")
    for r in range(4): a(f"v_fma_f32 v{20+r}, v{20+r}, s40, v28")
    for r in range(4): a(f"v_mul_f32 v{20+r}, v{20+r}, v{16+r}")
    for r in range(4): a(f"v_exp_f32 v{20+r}, v{20+r}")
    unpack(32, 30); unpack(34, 31)
    for r in range(4): a(f"v_add_f32 v{20+r}, 1.0, v{20+r}")
    for r in range(4): a(f"v_rcp_f32 v{20+r}, v{20+r}")
    a(f"v_lshlrev_b32 v12, 3, v1\nv_add_u32 v12, {B+OV}, v12\nv_cmp_gt_u32 vcc, 14, v1\nv_mov_b32 v9, 2")
    for r in range(4): a(f"v_mul_f32 v{20+r}, v{20+r}, v{16+r}")
    a("v_cvt_pk_bf16_f32 v24, v20, v21\nv_cvt_pk_bf16_f32 v25, v22, v23")
    unpack(20, 24); unpack(22, 25)
    for r in range(4): a(f"v_mul_f32 v{20+r}, v{20+r}, v{32+r}")
    a("v_cvt_pk_bf16_f32 v24, v20, v21\nv_cvt_pk_bf16_f32 v25, v22, v23")
    a("v_cndmask_b32 v24, 0, v24, vcc\nv_cndmask_b32 v25, 0, v25, vcc")
    a("s_mov_b64 exec, 0xffff")
    a("ds_write_b64 v12, v[24:25]")
    signal(C_OV)
    stamp(8)
    a("s_branch L_fin")

    a.label("L_RED")
    a("s_load_dwordx2 s[24:25], s[0:1], 72\ns_mov_b32 s26, 2048\ns_mov_b32 s27, 0x20000")
    if redf: a("s_lshl_b32 s60, s60, 1\ns_add_u32 s60, s60, s3\ns_sub_u32 s60, s60, 258")
    a("s_lshl_b32 s52, s60, 3")
    a("v_lshrrev_b32 v3, 5, v1\nv_bfe_u32 v5, v1, 4, 1\nv_lshl_or_b32 v3, v5, 1, v3\nv_lshlrev_b32 v3, 1, v3")
    a("v_mov_b32 v24, 0\nbuffer_load_short_d16_hi v24, v3, s[8:11], s52 offen")
    a("v_mov_b32 v26, s38\nv_mov_b32 v27, s39")
    a(f"s_lshl_b32 s50, s60, 4\ns_add_u32 s50, s50, {M3}\ns_add_u32 s51, s50, 0x40000\nv_lshlrev_b32 v2, 12, v1")
    a("s_waitcnt lgkmcnt(0)")
    a("s_barrier")
    stamp(9)
    if rk == 1:
        poll([(16, 2, 0, 0), (20, 2, 1, 0)], [50, 51], list(range(16, 24)), 10, 10, delay=dr, slp=rsleep, dual=False)
    else:
        for i in range(4): a(f"s_and_b32 s{34+i}, s{30+i}, 0x3ff")
        def rissue(k):
            a(f"buffer_load_dwordx4 v[{32+8*k}:{35+8*k}], v2, s[4:7], s50 offen sc1")
            a(f"buffer_load_dwordx4 v[{36+8*k}:{39+8*k}], v2, s[4:7], s51 offen sc1")
        backoff(dr)
        stamp(14)
        for k in range(rk):
            if k: backoff(rgap)
            rissue(k)
        a("s_mov_b32 s44, 0")
        a.label("L_rp")
        for k in range(rk):
            a(f"s_waitcnt vmcnt({2*(rk-1)})")
            for i in range(8): a(f"v_xor_b32 v{16+i}, s{34 + i % 4}, v{32+8*k+i}")
            a("v_or3_b32 v10, v16, v17, v18\nv_or3_b32 v10, v10, v19, v20\nv_or3_b32 v10, v10, v21, v22\nv_or_b32 v10, v10, v23\nv_and_b32 v10, 0x3ff, v10")
            a("v_cmp_ne_u32 vcc, 0, v10\ns_and_b64 exec, vcc, exec\ns_cbranch_scc0 L_rp_ok")
            rissue(k)
        a(f"s_add_u32 s44, s44, 1\ns_cmp_lt_u32 s44, {SPIN_MAX}\ns_cbranch_scc1 L_rp")
        a.label("L_rp_ok")
        a("s_mov_b64 exec, -1")
    stamp(10)
    a("v_pk_add_f32 v[16:17], v[16:17], v[20:21]\nv_pk_add_f32 v[18:19], v[18:19], v[22:23]")
    tred4(16)
    for k in (8, 4, 2, 1): a(f"v_add_f32_dpp v16, v16, v16 row_ror:{k} row_mask:0xf bank_mask:0xf")
    a("v_add_f32 v16, v16, v24\nv_cvt_pk_bf16_f32 v16, v16, v16")
    a("s_mov_b32 exec_lo, 0x10001\ns_mov_b32 exec_hi, 0x10001")
    a("buffer_store_short v16, v3, s[24:27], s52 offen")
    a("s_mov_b64 exec, 1")
    a("s_cmp_lg_u32 s60, 0\ns_cbranch_scc1 L_fin")
    a("buffer_store_dwordx2 v[26:27], off, s[4:7], 0 sc0 sc1")
    a("s_branch L_fin")

    G1 = 64; W2 = 128; SEL = 48; ACC = 56; AT = 40; XR = 16; OWN = 32
    AC2 = 52
    def mk_sel():
        a("v_and_b32 v60, 8, v7\nv_cmp_eq_u32 vcc, 0, v60")
        a("v_mov_b32 v60, 0x0c0c0302\nv_mov_b32 v61, 0x0c0c0100\nv_cndmask_b32 v60, v60, v61, vcc")
        a("v_and_b32 v61, 1, v7\nv_lshlrev_b32 v61, 4, v61\nv_alignbit_b32 v60, v60, v60, v61")
        a("v_bfe_u32 v62, v7, 1, 2\nv_mov_b32 v63, 0x0c0c0c0c")
        for d in range(4):
            a(f"v_cmp_eq_u32 vcc, {d}, v62")
            a(f"v_cndmask_b32 v{SEL+d}, v63, v60, vcc")
    def sp_perm(n):
        if n & 1: return
        at = AT + 4 * ((n >> 1) & 1)
        for d in range(4): a(f"v_perm_b32 v{at+d}, v{XR + n // 2}, v{XR + n // 2}, v{SEL+d}")
    def sp_mfma(breg, n, first):
        at = AT + 4 * ((n >> 1) & 1)
        ac = AC2 if n & 1 else ACC
        c = "0" if n < 2 else f"v[{ac}:{ac+3}]"
        a(f"v_mfma_f32_16x16x32_bf16 v[{ac}:{ac+3}], v[{at}:{at+3}], v[{breg}:{breg+3}], {c}")
    def sp_merge():
        a(f"v_permlane32_swap_b32 v{AC2}, v{AC2+1}\nv_permlane32_swap_b32 v{AC2+2}, v{AC2+3}")
        a(f"v_add_f32 v{ACC}, v{ACC}, v{AC2+1}\nv_add_f32 v{ACC+2}, v{ACC+2}, v{AC2+3}")
        a(f"v_permlane32_swap_b32 v{AC2+1}, v{AC2}\nv_permlane32_swap_b32 v{AC2+3}, v{AC2+2}")
        a(f"v_add_f32 v{ACC+1}, v{ACC+1}, v{AC2}\nv_add_f32 v{ACC+3}, v{ACC+3}, v{AC2+2}")
    def stream(kind, win):
        NG = {"A": 16, "F": 32, "N": 0}[kind]
        stride = 8192 if kind == "A" else 7168
        ops = [("G", n) for n in range(NG)]
        if kind == "A": ops += [("K", n) for n in range(8)] + [("V", n) for n in range(8)]
        ops += [("W", n) for n in range(16)]
        def issue(op):
            k, n = op
            if k == "G":
                if n: a(f"s_add_u32 s51, s51, {stride}")
                r = G1 + 4 * (n % 16)
                a(f"buffer_load_dwordx4 v[{r}:{r+3}], v2, s[12:15], s51 offen{NT}")
            elif k in "KV":
                a(f"s_add_u32 s53, s53, 1024\ns_and_b32 s53, s53, 0x1c00")
                if k == "K": a("s_bfe_u32 s40, s53, 0x2000a\ns_lshl_b32 s40, s40, 6")
                else: a("s_bfe_u32 s40, s53, 0x1000a\ns_lshl_b32 s40, s40, 7")
                a("s_or_b32 s40, s40, s53")
                a(f"v_xor_b32 v{12+(n&1)}, s40, v{10 if k == 'K' else 11}")
                a(f"s_add_u32 m0, s53, s{54 if k == 'K' else 55}")
                srd = 20 if k == "K" else 24
                a(f"buffer_load_dwordx4 v{12+(n&1)}, s[{srd}:{srd+3}], s50 offen{NT} lds")
            else:
                if n and n % 2 == 0: a("s_add_u32 s52, s52, 4096")
                a(f"buffer_load_dwordx4 v[{W2+4*n}:{W2+4*n+3}], v{3 if n < 8 else 0}, s[16:19], s52 offen offset:{2048*(n&1)}{NT}")
        def setup_rest():
            common()
            a("v_mov_b32 v5, 0x3ff")
            a("v_lshlrev_b32 v3, 15, v6\nv_lshl_or_b32 v3, v7, 4, v3")
            a("s_and_b32 s40, s62, 1\ns_lshl_b32 s40, s40, 10\ns_lshl_b32 s41, s46, 8\ns_add_u32 s40, s40, s41\ns_lshr_b32 s41, s60, 1")
            if kind == "A":
                a("v_mov_b32 v0, v3\ns_lshl_b32 s52, s41, 17\ns_add_u32 s52, s52, s40")
                a("v_xor_b32 v10, v7, v6\nv_lshlrev_b32 v10, 4, v10\nv_lshl_or_b32 v10, v6, 8, v10")
                a("v_lshlrev_b32 v11, 1, v6\nv_xor_b32 v11, v7, v11\nv_lshlrev_b32 v11, 4, v11\nv_lshl_or_b32 v11, v6, 8, v11")
                a(f"s_lshl_b32 s50, s61, 23\ns_lshl_b32 s40, s62, 15\ns_add_u32 s50, s50, s40\ns_lshl_b32 s54, s46, 13\ns_add_u32 s50, s50, s54\ns_add_u32 s50, s50, {28672*256}\ns_add_u32 s55, s54, {L_V}")
                a("s_lshl_b32 s53, s62, 10" if rot else "s_mov_b32 s53, 0x1c00")
            else:
                a(f"s_sub_u32 s41, s41, 64\ns_mul_i32 s52, s41, {56*2048}\ns_add_u32 s52, s52, s40")
                a("v_mov_b32 v60, 0x40000000\nv_cmp_eq_u32 vcc, 3, v6\nv_cndmask_b32 v0, v3, v60, vcc")
            mk_sel()
        def get_x():
            get_rec(60)
            a("v_and_b32 v62, 0xffff0000, v62")
            unpack(34, OWN)
            a("v_sub_f32 v34, v34, v62\nv_sub_f32 v35, v35, v62\nv_cvt_pk_bf16_f32 v36, v34, v35")
            unpack(34, 36)
            a("v_mul_f32 v34, v34, v63\nv_mul_f32 v35, v35, v63\nv_cvt_pk_bf16_f32 v36, v34, v35")
            a(f"s_lshl_b32 s40, s46, 8\ns_add_u32 s40, s40, {B+XN}\nv_lshl_add_u32 v37, v1, 2, s40\nds_write_b32 v37, v36")
            a(f"v_lshl_add_u32 v37, v6, {5 if kind == 'A' else 6}, s40")
            for i in range(NG // 8): a(f"ds_read_b128 v[{XR+4*i}:{XR+4*i+3}], v37 offset:{16*i}")
            a(f"s_lshl_b32 s40, s46, 9\ns_add_u32 s40, s40, {B+GP}\nv_lshl_add_u32 v33, v7, 1, v6\nv_lshl_add_u32 v33, v33, 4, s40")
            a("s_waitcnt lgkmcnt(0)")
            stamp(2)
        def consume(n):
            if n == 0: get_x()
            sp_perm(n); sp_mfma(G1 + 4 * (n % 16), n, n == 0)
            if n == NG - 1:
                sp_merge()
                a("s_mov_b32 exec_hi, 0")
                a(f"ds_write_b128 v33, v[{ACC}:{ACC+3}]")
                signal(C_G)
                stamp(4)
        nc = 0
        nl = -1
        if kind == "N": setup_rest(); a("s_barrier")
        for i, op in enumerate(ops):
            w = win
            if kind == "A" and w0 and i < n0 + w0: w = max(win, min(w0, n0 + w0 - i + win))
            if kind == "F" and w0f and i < n0f + w0f: w = max(win, min(w0f, n0f + w0f - i + win))
            if op[0] in "KV" and wkv: w = wkv
            if op[0] == "W" and ww and kind == "A": w = ww
            if op[0] == "W" and wwf and kind == "F": w = wwf
            newl = max(nl, i - w)
            if newl > nl or (newl == nl and i - w >= 0 and False):
                a(f"s_waitcnt vmcnt({i - 1 - newl})")
            evs = list(range(nl + 1, newl + 1)); nl = newl
            if op[0] == "G" and op[1] >= 16:
                while nc <= op[1] - 16: consume(nc); nc += 1
            issue(op)
            if i == max(win, (w0 if kind == "A" else w0f) or 0) - 1 and kind != "N":
                setup_rest(); a("s_barrier")
            for e in evs:
                if ops[e] == ("K", 7): signal(C_K); stamp(3)
                if ops[e] == ("V", 7): signal(C_V); stamp(6)
                if kind == "A" and e == tq: signal(C_TQ)
                if (kind == "A" and e == to) or (kind == "F" and e == th): signal(C_TO)
            k = 0
            while i >= cst and nc < NG and nc <= nl and k < 2:
                consume(nc); nc += 1; k += 1
        assert nc == NG
        if kind == "N":
            get_rec(60)
            a("s_waitcnt vmcnt(0)")
            signal(C_TO)
    a.label("L_S")
    a("s_sub_u32 s46, s3, 4")
    a("s_mov_b32 s15, 0x20000\ns_mov_b32 s19, 0x20000\ns_mov_b32 s10, 2048\ns_mov_b32 s11, 0x20000\nv_lshlrev_b32 v60, 2, v1")
    a("s_cmp_ge_u32 s61, 4\ns_cbranch_scc1 L_SF")
    a("s_load_dwordx2 s[12:13], s[0:1], 24\ns_load_dwordx2 s[16:17], s[0:1], 32\ns_load_dwordx2 s[20:21], s[0:1], 8\ns_load_dwordx2 s[24:25], s[0:1], 16")
    a("s_mov_b32 s14, 0x800000\ns_mov_b32 s18, 0x800000\ns_mov_b32 s22, 0x2000000\ns_mov_b32 s23, 0x20000\ns_mov_b32 s26, 0x2000000\ns_mov_b32 s27, 0x20000")
    a("v_lshlrev_b32 v2, 17, v6\nv_lshl_or_b32 v2, v7, 4, v2")
    a("s_and_b32 s40, s62, 3\ns_lshl_b32 s40, s40, 2\ns_add_u32 s40, s40, s46\ns_lshl_b32 s51, s40, 19\ns_lshl_b32 s49, s40, 7")
    a("s_lshl_b32 s40, s61, 3\ns_lshr_b32 s41, s62, 2\ns_add_u32 s40, s40, s41\ns_lshl_b32 s40, s40, 8\ns_add_u32 s51, s51, s40")
    a("s_waitcnt lgkmcnt(0)")
    a(f"buffer_load_dword v{OWN}, v60, s[8:11], s49 offen")
    stream("A", wa)
    a("s_branch L_Sfin")
    a.label("L_SF")
    a("s_load_dwordx2 s[12:13], s[0:1], 48\ns_load_dwordx2 s[28:29], s[0:1], 56\ns_load_dwordx2 s[16:17], s[0:1], 64")
    a("s_mov_b32 s14, 0x700000\ns_mov_b32 s18, 0x700000")
    f_ids()
    a(f"v_mul_u32_u24 v2, {32*7168}, v6\nv_lshl_add_u32 v2, v7, 4, v2")
    a(f"s_and_b32 s40, s55, 1\ns_lshl_b32 s40, s40, 2\ns_add_u32 s40, s40, s46\ns_mul_i32 s51, s40, {128*7168}\ns_lshl_b32 s49, s40, 8")
    a("s_sub_u32 s40, s61, 4\ns_mul_i32 s40, s40, 7\ns_lshr_b32 s41, s55, 2\ns_add_u32 s40, s40, s41\ns_lshl_b32 s40, s40, 8\ns_add_u32 s51, s51, s40")
    a("s_bitcmp1_b32 s55, 1")
    a("s_waitcnt lgkmcnt(0)")
    a("s_cselect_b32 s12, s28, s12\ns_cselect_b32 s13, s29, s13")
    a("s_cmp_eq_u32 s54, 1\ns_cbranch_scc1 L_SN")
    a(f"buffer_load_dword v{OWN}, v60, s[8:11], s49 offen")
    stream("F", wf)
    a("s_branch L_Sfin")
    a.label("L_SN")
    stream("N", wn)
    a.label("L_Sfin")
    stamp(5)
    a("v_lshl_add_u32 v11, v7, 1, v6\nv_lshlrev_b32 v11, 4, v11")
    a(f"s_lshl_b32 s50, s60, 11\ns_lshl_b32 s41, s46, 9\ns_add_u32 s50, s50, s41\ns_add_u32 s50, s50, {M3}")
    a(f"v_lshlrev_b32 v12, 5, v6\nv_add_u32 v12, {B+OV}, v12")
    lds_wait(C_OV, 2, 13, slp=0, extra=f"ds_read_b128 v[{XR}:{XR+3}], v12\nds_read_b128 v[{XR+4}:{XR+7}], v12 offset:16")
    stamp(8)
    sp_perm(0)
    for k in range(16):
        if 15 - k < 8: a(f"s_waitcnt vmcnt({15-k})")
        sp_mfma(W2 + 4*k, k, k == 0)
        if k % 2 == 0 and k + 2 < 16: sp_perm(k + 2)
    stamp(9)
    sp_merge()
    tag_regs([ACC, ACC+1, ACC+2, ACC+3], 5, 10)
    a("s_mov_b32 exec_hi, 0")
    a(f"buffer_store_dwordx4 v[{ACC}:{ACC+3}], v11, s[4:7], s50 offen sc1")
    a("s_barrier")
    a.label("L_fin")
    stamp(11)
    if dw is not None:
        a(f"s_cmp_lg_u32 s3, {dw}\ns_cbranch_scc1 L_end")
        if dx >= 0: a(f"s_cmp_lg_u32 s61, {dx}\ns_cbranch_scc1 L_end")
        a("s_waitcnt lgkmcnt(0)")
        a(f"s_sub_u32 s40, s{64+2*ds}, s64\ns_min_u32 s40, s40, 3000\ns_mul_i32 s40, s40, 10\ns_add_u32 s40, s40, 4000")
        a.label("L_hold")
        a("s_memrealtime s[42:43]\ns_waitcnt lgkmcnt(0)\ns_sub_u32 s42, s42, s64\ns_cmp_lt_u32 s42, s40\ns_cbranch_scc1 L_hold")
    stamp_out()
    a.label("L_end")
    a("s_endpgm")
    a.raw('.section .rodata,"a"'); a.raw(".p2align 6"); a.raw(f".amdhsa_kernel {NAME}_kernel")
    a.raw("  .amdhsa_next_free_vgpr 192"); a.raw("  .amdhsa_next_free_sgpr 100"); a.raw("  .amdhsa_accum_offset 192")
    a.raw("  .amdhsa_group_segment_fixed_size 0"); a.raw("  .amdhsa_kernarg_size 96"); a.raw("  .amdhsa_user_sgpr_count 2")
    a.raw("  .amdhsa_user_sgpr_kernarg_segment_ptr 1"); a.raw("  .amdhsa_system_sgpr_workgroup_id_x 1"); a.raw(".end_amdhsa_kernel")
    return a.text()

if __name__ == "__main__":
    for spec in sys.argv[1:]:
        nm, _, kv = spec.partition(":")
        kw = {}
        for p in kv.split(","):
            if p:
                k, v = p.split("="); kw[k] = int(v)
        open(nm + ".s", "w").write(gen(**kw))
        open(nm + "_st.s", "w").write(gen(stamps=True, **kw))
```

```python
import sys, struct
from asmlib import Asm
NAME = "parallel_sum__sliding_block_cached__glu_gated_geglu__decode"
def f32(x): return "0x%08x" % struct.unpack("<I", struct.pack("<f", x))[0]

MQ = 0x10000; MML = 0x20000; MH = 0x30000; MO = 0x40000; GD = 0xC0000; MQ2 = 0x24000; MH2 = 0x28000; M3 = 0x180000
STAMP = 128 << 20
L_K = 0; L_V = 32768; B = 65536
XN = 0; GP = 1024; QBI = 3072; SCX = 5120; OV = 7168; CO = 7296
LDS_BYTES = B + 7360
C_G, C_K, C_V, C_QB, C_REC, C_SC, C_OV, C_TQ, C_TO = 0, 4, 8, 12, 16, 32, 36, 40, 44
LOG2E = 1.4426950408889634
SPIN_MAX = 200000

def gen(nt=True, stamps=False, wa=6, wf=6, sleep=2, dq=0, do=0, dh=0, dr=12, rsleep=1, local=1, gper=4, cst=10, wkv=None, ww=None, rot=1, tq=6, to=4, th=1, thm=8, wm=8, xm=1, tcq=4, tco=4, redf=0, wwf=None, nog=0, pl1=0, w0=None, n0=8, w0f=None, n0f=8, wn=2, rk=1, rgap=5, hk=3, hgap=10, ok=2, ogap=14, bare=0, bump=0, fw=5, na=12, cstm=10):
    a = Asm()
    NT = " nt" if nt else ""
    hdr = open("cdna_kernels/" + NAME + ".s.ref").read().split("\n")
    for l in hdr:
        if l.startswith("; @launch"): break
        a.raw(l)
    a.raw(f"; @launch grid=(256,1,1) block=(512,1,1) lds={LDS_BYTES}")
    a.raw('.amdgcn_target "amdgcn-amd-amdhsa--gfx950"')
    a.raw(".text"); a.raw(f".globl {NAME}_kernel"); a.raw(".p2align 8"); a.raw(f".type {NAME}_kernel,@function"); a.raw(f"{NAME}_kernel:")
    NST = 15
    uid = [0]
    def stamp(i):
        if stamps: a(f"s_memrealtime s[{64+2*i}:{65+2*i}]")
    def stamp_out():
        if not stamps: return
        a("s_mov_b64 exec, -1")
        a("s_waitcnt lgkmcnt(0)")
        for i in range(2 * NST): a(f"v_writelane_b32 v3, s{64+i}, {i}")
        a(f"s_lshl_b32 s40, s2, 3\ns_add_u32 s40, s40, s3\ns_mul_i32 s40, s40, {NST*8}\ns_add_u32 s40, s40, {STAMP}")
        a(f"v_lshlrev_b32 v4, 2, v1\nv_cmp_gt_u32 vcc, {2*NST}, v1\ns_and_saveexec_b64 s[42:43], vcc")
        a("buffer_store_dword v3, v4, s[4:7], s40 offen")
    def swapred(op, kind, regs, tmp):
        for i, r in enumerate(regs): a(f"v_mov_b32 v{tmp+i}, v{r}")
        for i, r in enumerate(regs): a(f"v_permlane{kind}_swap_b32 v{r}, v{tmp+i}")
        for i, r in enumerate(regs): a(f"{op} v{r}, v{r}, v{tmp+i}")
    def allreduce(op, v, t, lo=(8, 4, 2, 1)):
        for k in lo: a(f"{op}_dpp v{v}, v{v}, v{v} row_ror:{k} row_mask:0xf bank_mask:0xf")
        swapred(op, 16, [v], t); swapred(op, 32, [v], t)
    def tred4(r):
        a(f"v_permlane32_swap_b32 v{r}, v{r+1}\nv_permlane32_swap_b32 v{r+2}, v{r+3}")
        a(f"v_add_f32 v{r}, v{r}, v{r+1}\nv_add_f32 v{r+2}, v{r+2}, v{r+3}")
        a(f"v_permlane16_swap_b32 v{r}, v{r+2}")
        a(f"v_add_f32 v{r}, v{r}, v{r+2}")
    def unpack(dst, src):
        a(f"v_lshlrev_b32 v{dst}, 16, v{src}\nv_and_b32 v{dst+1}, 0xffff0000, v{src}")
    def mk_tags():
        a("s_and_b32 s30, s38, 0xfff\ns_bfe_u32 s31, s38, 0xc000c\ns_and_b32 s32, s39, 0xfff\ns_bfe_u32 s33, s39, 0xc000c")
    def tag_regs(regs, vmask, bits, rn=True):
        if rn:
            for r in regs: a(f"v_add_u32 v{r}, {1 << (bits-1)}, v{r}")
        for i, r in enumerate(regs): a(f"v_bfi_b32 v{r}, v{vmask}, s{30 + i % 4}, v{r}")
    def backoff(n):
        while n > 0:
            k = min(n, 127); a(f"s_sleep {k}"); n -= k
    def publish(vd, voff, soff, gonly=False):
        if gonly:
            a(f"buffer_store_dwordx4 v[{vd}:{vd+3}], v{voff}, s[4:7], s{soff} offen sc1"); return
        if local:
            a(f"buffer_store_dwordx4 v[{vd}:{vd+3}], v{voff}, s[4:7], s{soff} offen")
        if nog: return
        a(f"s_add_u32 s45, s{soff}, {GD}")
        a(f"buffer_store_dwordx4 v[{vd}:{vd+3}], v{voff}, s[4:7], s45 offen sc1")
    def poll(loads, bases, regs, bits, t, lanemask=None, pre=None, delay=0, slot=13, slp=None, dual=True, wk0=46, first_wait=0, parts=None):
        uid[0] += 1
        L = f"L_poll{uid[0]}"
        slp = sleep if slp is None else slp
        m = (1 << bits) - 1
        for i in range(4): a(f"s_and_b32 s{34+i}, s{30+i}, {m}")
        def issue(first=False):
            for ld in loads:
                if isinstance(ld, str): a(ld); continue
                vd, vo, bi, imm = ld
                a(f"buffer_load_dwordx4 v[{vd}:{vd+3}], v{vo}, s[4:7], {bi if isinstance(bi, str) else 's%d' % wk[bi]} offen offset:{imm} sc1")
        if dual:
            wk = [wk0 + i for i in range(len(bases))]
            for i, b in enumerate(bases):
                a(f"s_mov_b32 s{wk[i]}, s{b}" if local else f"s_add_u32 s{wk[i]}, s{b}, {GD}")
        else: wk = bases
        if parts == "issue":
            if slot == 13: stamp(14)
            issue(True); uid[0] -= 1
            return
        backoff(delay)
        if slot == 13 and parts is None: stamp(14)
        if lanemask is not None: a(f"s_mov_b64 exec, {lanemask}")
        if parts == "check":
            a("s_mov_b32 s44, 0")
            a(f"s_branch {L}_w")
        elif pre is not None:
            issue(True); pre()
            a("s_mov_b32 s44, 0")
            if first_wait:
                a(f"s_waitcnt vmcnt({first_wait})")
                a(f"s_branch {L}_c")
            else:
                a(f"s_branch {L}_w")
        else:
            a("s_mov_b32 s44, 0")
        a.label(L)
        issue()
        a.label(L + "_w")
        a("s_waitcnt vmcnt(0)")
        a.label(L + "_c")
        for i, r in enumerate(regs): a(f"v_xor_b32 v{r}, s{34 + i % 4}, v{r}")
        a(f"v_or3_b32 v{t}, v{regs[0]}, v{regs[1]}, v{regs[2]}")
        rest = regs[3:]
        while len(rest) >= 2:
            a(f"v_or3_b32 v{t}, v{t}, v{rest[0]}, v{rest[1]}"); rest = rest[2:]
        if rest: a(f"v_or_b32 v{t}, v{t}, v{rest[0]}")
        a(f"v_and_b32 v{t}, {m}, v{t}")
        a(f"v_cmp_ne_u32 vcc, 0, v{t}")
        a("s_and_b64 exec, vcc, exec")
        a(f"s_cbranch_scc0 {L}_ok")
        if slp: a(f"s_sleep {slp}")
        a("s_add_u32 s44, s44, 1")
        if dual and local:
            a(f"s_and_b32 s45, s44, {gper-1}\ns_cmp_eq_u32 s45, {gper-1}\ns_cselect_b32 s45, {GD}, 0")
            for i, b in enumerate(bases): a(f"s_add_u32 s{wk[i]}, s{b}, s45")
        a(f"s_cmp_lt_u32 s44, {SPIN_MAX}\ns_cbranch_scc1 {L}")
        a.label(L + "_ok")
        a("s_mov_b64 exec, -1")
        if stamps: a(f"s_mul_i32 s{64+2*slot}, s44, 100\ns_add_u32 s{64+2*slot}, s{64+2*slot}, s64\ns_addc_u32 s{65+2*slot}, s65, 0")
    def ppoll(mk, nld, nreg, bases, R, S, k, gap, bits, t, lanemask=None):
        uid[0] += 1
        L = f"L_pp{uid[0]}"
        m = (1 << bits) - 1
        for i in range(4): a(f"s_and_b32 s{34+i}, s{30+i}, {m}")
        wk = [46 + i for i in range(len(bases))]
        for i, b in enumerate(bases): a(f"s_mov_b32 s{wk[i]}, s{b}")
        if lanemask is not None: a(f"s_mov_b64 exec, {lanemask}")
        stamp(14)
        a("s_waitcnt vmcnt(0)") if False else None
        for j in range(k):
            if j: backoff(gap)
            mk(S + j * nreg, wk)
        a("s_mov_b32 s44, 0")
        a.label(L)
        regs = list(range(R, R + nreg))
        for j in range(k):
            a(f"s_waitcnt vmcnt({nld*(k-1)})")
            for i in range(nreg): a(f"v_xor_b32 v{R+i}, s{34 + i % 4}, v{S + j*nreg + i}")
            a(f"v_or3_b32 v{t}, v{regs[0]}, v{regs[1]}, v{regs[2]}")
            rest = regs[3:]
            while len(rest) >= 2:
                a(f"v_or3_b32 v{t}, v{t}, v{rest[0]}, v{rest[1]}"); rest = rest[2:]
            if rest: a(f"v_or_b32 v{t}, v{t}, v{rest[0]}")
            a(f"v_and_b32 v{t}, {m}, v{t}\nv_cmp_ne_u32 vcc, 0, v{t}\ns_and_b64 exec, vcc, exec\ns_cbranch_scc0 {L}_ok")
            if stamps: a("s_add_u32 s43, s43, 1")
            mk(S + j * nreg, wk)
        a("s_add_u32 s44, s44, 1")
        a(f"s_and_b32 s45, s44, 1\ns_cselect_b32 s45, {GD}, 0")
        for i, b in enumerate(bases): a(f"s_add_u32 s{wk[i]}, s{b}, s45")
        a(f"s_cmp_lt_u32 s44, {SPIN_MAX}\ns_cbranch_scc1 {L}")
        a.label(L + "_ok")
        a("s_mov_b64 exec, -1")
        if stamps: a(f"s_mul_i32 s90, s43, 100\ns_add_u32 s90, s90, s64\ns_addc_u32 s91, s65, 0")
    def lds_wait(off, val, t, slp=1, extra=None):
        uid[0] += 1
        L = f"L_lw{uid[0]}"
        a("s_mov_b32 s44, 0")
        a.label(L)
        a(f"ds_read_b32 v{t}, v8 offset:{CO + off}")
        if extra: a(extra)
        a("s_waitcnt lgkmcnt(0)")
        a(f"v_readfirstlane_b32 s45, v{t}")
        a(f"s_cmp_ge_u32 s45, {val}\ns_cbranch_scc1 {L}_ok")
        if slp: a(f"s_sleep {slp}")
        a(f"s_add_u32 s44, s44, 1\ns_cmp_lt_u32 s44, {SPIN_MAX*8}\ns_cbranch_scc1 {L}")
        a.label(L + "_ok")
    def signal(off):
        a("s_mov_b64 exec, 1")
        a(f"ds_add_u32 v8, v9 offset:{CO+off}")
        a("s_mov_b64 exec, -1")
    def get_rec(r):
        uid[0] += 1
        L = f"L_tg{uid[0]}"
        a("s_mov_b32 s44, 0")
        a.label(L)
        a(f"ds_read_b128 v[{r}:{r+3}], v8 offset:{CO+C_REC}")
        a("s_waitcnt lgkmcnt(0)")
        a(f"v_readfirstlane_b32 s45, v{r+2}\nv_readfirstlane_b32 s38, v{r}\nv_readfirstlane_b32 s39, v{r+1}")
        a(f"s_bitcmp1_b32 s45, 0\ns_cbranch_scc1 {L}_ok")
        a(f"s_sleep 1\ns_add_u32 s44, s44, 1\ns_cmp_lt_u32 s44, {SPIN_MAX*8}\ns_cbranch_scc1 {L}")
        a.label(L + "_ok")
        mk_tags()
    def f_ids():
        a("s_cmp_ge_u32 s62, 24\ns_cselect_b32 s54, 1, 0")
        a("s_lshr_b32 s55, s62, 2\ns_min_u32 s55, s55, 6")
        a("s_add_u32 s40, s54, 1\ns_lshr_b32 s56, s62, s40\ns_and_b32 s56, s56, 1")
        a("s_lshl_b32 s40, s54, 1\ns_add_u32 s40, s40, 1\ns_and_b32 s57, s62, s40")

    def common():
        if stamps:
            for i in range(1, NST): a(f"s_mov_b64 s[{64+2*i}:{65+2*i}], 0")
        a("s_mov_b32 s6, 0x10000000\ns_mov_b32 s7, 0x20000\ns_mov_b32 s10, 2048\ns_mov_b32 s11, 0x20000")
        a("s_lshl_b32 s60, s61, 5\ns_add_u32 s60, s60, s62")
        a(f"v_mov_b32 v8, {B}\nv_mov_b32 v9, 1")
    FW = fw
    NM = 64 - 4 * na
    G1 = 64; W2 = 128; SEL = 48; ACC = 56; AT = 40; XR = 16; OWN = 32
    AC2 = 52
    def mk_sel():
        a("v_and_b32 v60, 8, v7\nv_cmp_eq_u32 vcc, 0, v60")
        a("v_mov_b32 v60, 0x0c0c0302\nv_mov_b32 v61, 0x0c0c0100\nv_cndmask_b32 v60, v60, v61, vcc")
        a("v_and_b32 v61, 1, v7\nv_lshlrev_b32 v61, 4, v61\nv_alignbit_b32 v60, v60, v60, v61")
        a("v_bfe_u32 v62, v7, 1, 2\nv_mov_b32 v63, 0x0c0c0c0c")
        for d in range(4):
            a(f"v_cmp_eq_u32 vcc, {d}, v62")
            a(f"v_cndmask_b32 v{SEL+d}, v63, v60, vcc")
    def sp_perm(n):
        if n & 1: return
        at = AT + 4 * ((n >> 1) & 1)
        for d in range(4): a(f"v_perm_b32 v{at+d}, v{XR + n // 2}, v{XR + n // 2}, v{SEL+d}")
    def sp_mfma(breg, n, first):
        at = AT + 4 * ((n >> 1) & 1)
        ac = AC2 if n & 1 else ACC
        c = "0" if (n < 2 or first) else f"v[{ac}:{ac+3}]"
        a(f"v_mfma_f32_16x16x32_bf16 v[{ac}:{ac+3}], v[{at}:{at+3}], v[{breg}:{breg+3}], {c}")
    def sp_merge():
        a(f"v_permlane32_swap_b32 v{AC2}, v{AC2+1}\nv_permlane32_swap_b32 v{AC2+2}, v{AC2+3}")
        a(f"v_add_f32 v{ACC}, v{ACC}, v{AC2+1}\nv_add_f32 v{ACC+2}, v{ACC+2}, v{AC2+3}")
        a(f"v_permlane32_swap_b32 v{AC2+1}, v{AC2}\nv_permlane32_swap_b32 v{AC2+3}, v{AC2+2}")
        a(f"v_add_f32 v{ACC+1}, v{ACC+1}, v{AC2}\nv_add_f32 v{ACC+3}, v{ACC+3}, v{AC2+2}")
    def stream(kind, win):
        NG = {"A": na, "F": 32, "M": NM + 16}[kind]
        stride = 8192 if kind == "A" else 7168
        ops = [("G", n) for n in range(NG)]
        ops.insert(FW, ("X", 0))
        if kind == "A": ops += [("K", n) for n in range(8)] + [("V", n) for n in range(8)]
        ops += [("W", n) for n in range(16)]
        def issue(op):
            k, n = op
            if k == "G":
                r = G1 + 4 * (n % 16)
                if kind == "M" and n >= NM:
                    if n > NM: a("s_add_u32 s50, s50, 7168")
                    a(f"buffer_load_dwordx4 v[{r}:{r+3}], v10, s[20:23], s50 offen{NT}")
                else:
                    a("s_add_u32 s51, s51, s47")
                    a(f"buffer_load_dwordx4 v[{r}:{r+3}], v2, s[12:15], s51 offen{NT}")
            elif k == "X":
                a("v_lshlrev_b32 v60, 2, v1")
                if kind == "M":
                    a("s_lshl_b32 s42, s57, 2\ns_add_u32 s42, s42, s46")
                    a(f"s_sub_u32 s41, s61, 4\ns_mul_i32 s50, s41, 7\ns_add_u32 s50, s50, 6\ns_lshl_b32 s50, s50, 8\ns_mul_i32 s40, s42, {64*7168}\ns_add_u32 s50, s50, s40")
                    a("s_lshl_b32 s42, s42, 7\ns_sub_u32 s42, s42, 128\ns_sub_u32 s42, s42, s49")
                    a("v_mov_b32 v62, s42\nv_cmp_gt_u32 vcc, 32, v1\nv_cndmask_b32 v61, v62, 0, vcc\nv_add_u32 v60, v60, v61\nv_add_u32 v60, s49, v60")
                    a(f"buffer_load_dword v{OWN}, v60, s[8:11], 0 offen")
                    a(f"v_mul_u32_u24 v10, {16*7168}, v6\nv_lshl_add_u32 v10, v7, 4, v10")
                    a("s_cmp_eq_u32 s56, 1\ns_cselect_b32 s20, s26, s24\ns_cselect_b32 s21, s27, s25\ns_mov_b32 s22, 0x700000\ns_mov_b32 s23, 0x20000")
                else:
                    a(f"buffer_load_dword v{OWN}, v60, s[8:11], s49 offen")
            elif k in "KV":
                a(f"s_add_u32 s53, s53, 1024\ns_and_b32 s53, s53, 0x1c00")
                if k == "K": a("s_bfe_u32 s40, s53, 0x2000a\ns_lshl_b32 s40, s40, 6")
                else: a("s_bfe_u32 s40, s53, 0x1000a\ns_lshl_b32 s40, s40, 7")
                a("s_or_b32 s40, s40, s53")
                a(f"v_xor_b32 v{12+(n&1)}, s40, v{10 if k == 'K' else 11}")
                a(f"s_add_u32 m0, s53, s{54 if k == 'K' else 55}")
                srd = 20 if k == "K" else 24
                a(f"buffer_load_dwordx4 v{12+(n&1)}, s[{srd}:{srd+3}], s50 offen{NT} lds")
            else:
                if n and n % 2 == 0: a("s_add_u32 s52, s52, 4096")
                a(f"buffer_load_dwordx4 v[{W2+4*n}:{W2+4*n+3}], v{3 if n < 8 else 0}, s[16:19], s52 offen offset:{2048*(n&1)}{NT}")
        def setup_rest():
            common()
            if kind == "A":
                a("s_load_dwordx2 s[16:17], s[0:1], 32\ns_load_dwordx2 s[20:21], s[0:1], 8\ns_load_dwordx2 s[24:25], s[0:1], 16")
                a("s_mov_b32 s18, 0x800000\ns_mov_b32 s22, 0x2000000\ns_mov_b32 s23, 0x20000\ns_mov_b32 s26, 0x2000000\ns_mov_b32 s27, 0x20000")
            else:
                a("s_load_dwordx2 s[16:17], s[0:1], 64\ns_mov_b32 s18, 0x700000")
            a("s_mov_b32 s19, 0x20000")
            a("v_mov_b32 v5, 0x3ff")
            a("v_lshlrev_b32 v3, 15, v6\nv_lshl_or_b32 v3, v7, 4, v3")
            a("s_and_b32 s40, s62, 1\ns_lshl_b32 s40, s40, 10\ns_lshl_b32 s41, s46, 8\ns_add_u32 s40, s40, s41\ns_lshr_b32 s41, s60, 1")
            if kind == "A":
                a("v_mov_b32 v0, v3\ns_lshl_b32 s52, s41, 17\ns_add_u32 s52, s52, s40")
                a("v_xor_b32 v10, v7, v6\nv_lshlrev_b32 v10, 4, v10\nv_lshl_or_b32 v10, v6, 8, v10")
                a("v_lshlrev_b32 v11, 1, v6\nv_xor_b32 v11, v7, v11\nv_lshlrev_b32 v11, 4, v11\nv_lshl_or_b32 v11, v6, 8, v11")
                a(f"s_lshl_b32 s50, s61, 23\ns_lshl_b32 s40, s62, 15\ns_add_u32 s50, s50, s40\ns_lshl_b32 s54, s46, 13\ns_add_u32 s50, s50, s54\ns_add_u32 s50, s50, {28672*256}\ns_add_u32 s55, s54, {L_V}")
                a("s_lshl_b32 s53, s62, 10" if rot else "s_mov_b32 s53, 0x1c00")
            else:
                a(f"s_sub_u32 s41, s41, 64\ns_mul_i32 s52, s41, {56*2048}\ns_add_u32 s52, s52, s40")
                a("v_mov_b32 v60, 0x40000000\nv_cmp_eq_u32 vcc, 3, v6\nv_cndmask_b32 v0, v3, v60, vcc")
            mk_sel()
            a("s_waitcnt lgkmcnt(0)")
        def get_x():
            get_rec(60)
            a("v_and_b32 v62, 0xffff0000, v62")
            unpack(34, OWN)
            a("v_sub_f32 v34, v34, v62\nv_sub_f32 v35, v35, v62\nv_cvt_pk_bf16_f32 v36, v34, v35")
            unpack(34, 36)
            a("v_mul_f32 v34, v34, v63\nv_mul_f32 v35, v35, v63\nv_cvt_pk_bf16_f32 v36, v34, v35")
            a(f"s_lshl_b32 s40, s46, 8\ns_add_u32 s40, s40, {B+XN}\nv_lshl_add_u32 v37, v1, 2, s40\nds_write_b32 v37, v36")
            if kind == "A":
                a(f"v_mul_u32_u24 v37, {2*na}, v6\nv_add_u32 v37, s40, v37")
                if na == 12:
                    for i in range(3): a(f"ds_read_b64 v[{XR+2*i}:{XR+2*i+1}], v37 offset:{8*i}")
                else:
                    for i in range(0, na // 2 - 1, 2): a(f"ds_read2_b32 v[{XR+i}:{XR+i+1}], v37 offset0:{i} offset1:{i+1}")
                    if (na // 2) % 2: a(f"ds_read_b32 v{XR+na//2-1}, v37 offset:{4*(na//2-1)}")
            elif kind == "F":
                a("v_lshl_add_u32 v37, v6, 6, s40")
                for i in range(4): a(f"ds_read_b128 v[{XR+4*i}:{XR+4*i+3}], v37 offset:{16*i}")
            else:
                a(f"v_lshl_add_u32 v37, v6, 5, s40\nv_lshl_add_u32 v38, v6, {5 if NM == 16 else 4}, s40")
                for i in range(NM // 8): a(f"ds_read_b128 v[{XR+4*i}:{XR+4*i+3}], v38 offset:{16*i}")
                for i in range(2): a(f"ds_read_b128 v[{XR+NM//2+4*i}:{XR+NM//2+4*i+3}], v37 offset:{16*i + 128}")
            a(f"s_lshl_b32 s40, s46, 9\ns_add_u32 s40, s40, {B+GP}\nv_lshl_add_u32 v33, v7, 1, v6\nv_lshl_add_u32 v33, v33, 4, s40")
            a("s_waitcnt lgkmcnt(0)")
            stamp(2)
        def consume(n):
            if n == 0: get_x()
            sp_perm(n); sp_mfma(G1 + 4 * (n % 16), n, kind == "M" and n in (NM, NM + 1))
            if kind == "M" and n == NM - 1:
                sp_merge()
                a("s_mov_b32 exec_hi, 0")
                a(f"ds_write_b128 v33, v[{ACC}:{ACC+3}] offset:{QBI-GP}")
                signal(C_K)
                stamp(3)
            if n == NG - 1:
                sp_merge()
                a("s_mov_b32 exec_hi, 0")
                a(f"ds_write_b128 v33, v[{ACC}:{ACC+3}]")
                signal(C_G)
                stamp(4)
        nc = 0
        nl = -1
        gidx = {op[1]: i for i, op in enumerate(ops) if op[0] == "G"}
        first = {"A": max(win, w0 or 0), "F": win, "M": wm}[kind]
        for i, op in enumerate(ops):
            if i < FW: continue
            w = win
            if kind == "A" and w0 and i < n0 + w0: w = max(win, min(w0, n0 + w0 - i + win))
            if kind == "F" and w0f and i < n0f: w = w0f
            if kind == "M" and i < NM + 1: w = wm
            if op[0] in "KV" and wkv: w = wkv
            if op[0] == "W" and ww and kind == "A": w = ww
            if op[0] == "W" and wwf and kind != "A": w = wwf
            if i - w <= FW <= i: w += 1
            newl = max(nl, i - w)
            if op[0] == "X": newl = nl
            if newl > nl:
                a(f"s_waitcnt vmcnt({i - 1 - newl})")
            evs = list(range(nl + 1, newl + 1)); nl = newl
            if op[0] == "G" and op[1] >= 16:
                while nc <= op[1] - 16: consume(nc); nc += 1
            issue(op)
            if i == max(first, FW):
                setup_rest(); a("s_barrier")
            for e in evs:
                if ops[e] == ("K", 7): signal(C_K); stamp(3)
                if ops[e] == ("V", 7): signal(C_V); stamp(6)
                if kind == "A" and e == na + 1 + tq: signal(C_TQ)
                if ops[e] == ("W", to if kind == "A" else (th if kind == "F" or NM == 16 else thm)): signal(C_TO)
            k = 0
            while i >= (cst if kind != "M" else min(cst, cstm)) and nl >= FW and nc < NG and gidx[nc] <= nl and k < 3:
                consume(nc); nc += 1; k += 1
        assert nc == NG
    X, F, EV = 16, 28, 24
    stamp(0)
    a("s_load_dwordx2 s[12:13], s[0:1], 24\ns_load_dwordx4 s[24:27], s[0:1], 48\ns_load_dwordx2 s[8:9], s[0:1], 0\ns_load_dwordx2 s[4:5], s[0:1], 88")
    a("v_lshrrev_b32 v2, 6, v0\nv_and_b32 v1, 63, v0")
    a("s_cmp_ge_u32 s2, 256\ns_cbranch_scc1 L_end")
    a("v_readfirstlane_b32 s3, v2")
    a("s_and_b32 s61, s2, 7\ns_lshl_b32 s61, s61, 2\ns_lshr_b32 s61, " + ("0x32761054" if xm else "0x76543210") + ", s61\ns_and_b32 s61, s61, 7\ns_lshr_b32 s62, s2, 3")
    a("v_lshrrev_b32 v6, 4, v1\nv_and_b32 v7, 15, v1\nv_lshlrev_b32 v4, 4, v1\ns_mov_b32 s10, 2048\ns_mov_b32 s11, 0x20000")
    a("s_cmp_lt_u32 s3, 4\ns_cbranch_scc1 L_Cstub")
    a("s_sub_u32 s46, s3, 4\ns_mov_b32 s15, 0x20000")
    f_ids()
    a("s_and_b32 s45, s61, 3\ns_mul_i32 s42, s45, 7\ns_add_u32 s42, s42, s55\ns_mov_b32 s40, s57\ns_mov_b32 s41, 32\ns_mov_b32 s43, 1")
    a("s_lshl_b32 s45, s45, 3\ns_and_b32 s44, s62, 7\ns_add_u32 s44, s44, s45")
    a("s_cmp_eq_u32 s54, 1\ns_cselect_b32 s40, " + str(64 // NM - 1) + ", s40\ns_cselect_b32 s41, " + str(NM) + ", s41\ns_cselect_b32 s42, s44, s42\ns_cselect_b32 s43, 0, s43")
    a("s_lshr_b32 s44, s62, 2\ns_add_u32 s44, s44, s45\ns_and_b32 s45, s62, 3")
    a("s_cmp_lt_u32 s61, 4\ns_cselect_b32 s40, s45, s40\ns_cselect_b32 s41, " + str(na) + ", s41\ns_cselect_b32 s42, s44, s42\ns_cselect_b32 s43, 0, s43")
    a("s_cmp_eq_u32 s43, 0\ns_cselect_b32 s47, 0x2000, s10\ns_cselect_b32 s14, 0x800000, s10")
    a("s_cmp_eq_u32 s43, 1\ns_cselect_b32 s47, 0x1c00, s47\ns_cselect_b32 s14, 0x700000, s14")
    a("s_lshl_b32 s40, s40, 2\ns_add_u32 s40, s40, s46\ns_mul_i32 s40, s40, s41\ns_lshl_b32 s49, s40, 3")
    a("s_mul_i32 s51, s40, s47\ns_lshl_b32 s51, s51, 2\ns_lshl_b32 s42, s42, 8\ns_add_u32 s51, s51, s42\ns_mul_i32 s41, s41, s47")
    a("v_mul_u32_u24 v2, s41, v6\nv_lshl_add_u32 v2, v7, 4, v2")
    a("s_cmp_eq_u32 s56, 1")
    a("s_waitcnt lgkmcnt(0)")
    a("s_cselect_b32 s44, s26, s24\ns_cselect_b32 s45, s27, s25\ns_cmp_eq_u32 s43, 1\ns_cselect_b32 s12, s44, s12\ns_cselect_b32 s13, s45, s13")
    for n in range(FW):
        if n: a("s_add_u32 s51, s51, s47")
        a(f"buffer_load_dwordx4 v[{G1+4*n}:{G1+4*n+3}], v2, s[12:15], s51 offen{NT}")
    if stamps: a("s_memrealtime s[98:99]")
    a("s_cbranch_scc1 L_end") if False else None
    a("s_cmp_eq_u32 s43, 1\ns_cbranch_scc1 L_SF\ns_cmp_ge_u32 s61, 4\ns_cbranch_scc1 L_SM\ns_branch L_SA")
    a.label("L_Cstub")
    a("s_setprio 3")
    a("s_cmp_lg_u32 s3, 0\ns_cbranch_scc1 L_Cn0")
    a("s_mov_b32 s6, 0x10000000\ns_mov_b32 s7, 0x20000")
    a("s_waitcnt lgkmcnt(0)")
    a(f"buffer_load_dwordx4 v[{X}:{X+3}], v4, s[8:11], 0 offen")
    a(f"buffer_load_dwordx4 v[{X+4}:{X+7}], v4, s[8:11], 0 offen offset:1024")
    a(f"buffer_load_dwordx2 v[{EV}:{EV+1}], off, s[4:7], 0 sc0 sc1")
    a("s_branch L_C0")
    a.label("L_SA")
    stream("A", wa)
    a("s_branch L_Sfin")
    a.label("L_SF")
    stream("F", wf)
    a("s_branch L_Sfin")
    a.label("L_SM")
    stream("M", wf)
    a.label("L_Sfin")
    stamp(5)
    if stamps: a("s_mov_b64 s[66:67], s[98:99]")
    a("v_lshl_add_u32 v11, v7, 1, v6\nv_lshlrev_b32 v11, 4, v11")
    a(f"s_lshl_b32 s50, s60, 11\ns_lshl_b32 s41, s46, 9\ns_add_u32 s50, s50, s41\ns_add_u32 s50, s50, {M3}")
    a(f"v_lshlrev_b32 v12, 5, v6\nv_add_u32 v12, {B+OV}, v12")
    lds_wait(C_OV, 0 if bare else 2, 13, slp=0, extra=f"ds_read_b128 v[{XR}:{XR+3}], v12\nds_read_b128 v[{XR+4}:{XR+7}], v12 offset:16")
    stamp(8)
    sp_perm(0)
    for k in range(16):
        if 15 - k < 8: a(f"s_waitcnt vmcnt({15-k})")
        sp_mfma(W2 + 4*k, k, k == 0)
        if k % 2 == 0 and k + 2 < 16: sp_perm(k + 2)
    stamp(9)
    sp_merge()
    tag_regs([ACC, ACC+1, ACC+2, ACC+3], 5, 10)
    a("s_mov_b32 exec_hi, 0")
    a(f"buffer_store_dwordx4 v[{ACC}:{ACC+3}], v11, s[4:7], s50 offen sc1")
    a("s_barrier")
    a("s_branch L_fin")
    a.label("L_C0")
    common()
    a("s_barrier")
    a("s_waitcnt vmcnt(1)")
    stamp(2)
    for i in range(8): unpack(F + 2*i, X + i)
    S, T = F + 16, F + 17
    for i in range(4): a(f"v_pk_add_f32 v[{X+2*i}:{X+2*i+1}], v[{F+4*i}:{F+4*i+1}], v[{F+4*i+2}:{F+4*i+3}]")
    a(f"v_pk_add_f32 v[{X}:{X+1}], v[{X}:{X+1}], v[{X+2}:{X+3}]\nv_pk_add_f32 v[{X+4}:{X+5}], v[{X+4}:{X+5}], v[{X+6}:{X+7}]")
    a(f"v_pk_add_f32 v[{X}:{X+1}], v[{X}:{X+1}], v[{X+4}:{X+5}]\nv_add_f32 v{S}, v{X}, v{X+1}")
    allreduce("v_add_f32", S, T)
    a(f"v_mul_f32 v{S}, {f32(1/1024)}, v{S}")
    M = X + 2
    a(f"v_mov_b32 v{M}, v{S}\nv_mov_b32 v{M+1}, v{S}")
    for i in range(8): a(f"v_pk_add_f32 v[{F+2*i}:{F+2*i+1}], v[{F+2*i}:{F+2*i+1}], v[{M}:{M+1}] neg_lo:[0,1] neg_hi:[0,1]")
    a(f"v_pk_mul_f32 v[{X}:{X+1}], v[{F}:{F+1}], v[{F}:{F+1}]\nv_pk_mul_f32 v[{X+4}:{X+5}], v[{F+2}:{F+3}], v[{F+2}:{F+3}]")
    for i in range(2, 8):
        d = X if i % 2 == 0 else X + 4
        a(f"v_pk_fma_f32 v[{d}:{d+1}], v[{F+2*i}:{F+2*i+1}], v[{F+2*i}:{F+2*i+1}], v[{d}:{d+1}]")
    V = X + 6
    a(f"v_pk_add_f32 v[{X}:{X+1}], v[{X}:{X+1}], v[{X+4}:{X+5}]\nv_add_f32 v{V}, v{X}, v{X+1}")
    allreduce("v_add_f32", V, T)
    a(f"v_mul_f32 v{V}, {f32(1/1024)}, v{V}")
    a(f"v_cvt_pk_bf16_f32 v{T}, v{S}, v{V}")
    a(f"v_lshl_or_b32 v{EV+2}, v{T}, 16, 1")
    a(f"v_and_b32 v{V}, 0xffff0000, v{T}\nv_add_f32 v{V}, {f32(1e-5)}, v{V}")
    a(f"v_cvt_pk_bf16_f32 v{V}, v{V}, v{V}\nv_and_b32 v{V}, 0xffff0000, v{V}\nv_sqrt_f32 v{V}, v{V}")
    a(f"v_cvt_pk_bf16_f32 v{V}, v{V}, v{V}\nv_and_b32 v{V}, 0xffff0000, v{V}\nv_rcp_f32 v{EV+3}, v{V}")
    a("s_waitcnt vmcnt(0)")
    a(f"v_add_u32 v{EV}, 0x7f4a7c15, v{EV}\nv_add_u32 v{EV+1}, 0x9e3779b9, v{EV+1}")
    a("s_mov_b64 exec, 1")
    a(f"ds_write_b128 v8, v[{EV}:{EV+3}] offset:{CO+C_REC}")
    a("s_mov_b64 exec, -1")
    stamp(3)
    a("s_branch L_Cj")
    a.label("L_Cn0")
    common()
    a("v_mov_b32 v16, 0\nv_mov_b32 v17, 0\nv_mov_b32 v18, 0\nv_mov_b32 v19, 0")
    a(f"ds_write_b128 v8, v[16:19] offset:{CO}\nds_write_b128 v8, v[16:19] offset:{CO+16}\nds_write_b128 v8, v[16:19] offset:{CO+32}")
    a("s_waitcnt lgkmcnt(0)")
    a("s_barrier")
    a.label("L_Cj")
    if bare: a("s_branch L_fin")
    a("s_cmp_ge_u32 s61, 4\ns_cbranch_scc1 L_CF")

    GPRD = "\n".join(f"ds_read_b128 v[{16+4*i}:{19+4*i}], v12 offset:{512*i}" for i in range(4))
    def gemv1_reduce(voff, soff, bits, vmask, gonly=False):
        a("s_mov_b32 exec_hi, 0")
        a("v_pk_add_f32 v[16:17], v[16:17], v[20:21]\nv_pk_add_f32 v[18:19], v[18:19], v[22:23]")
        a("v_pk_add_f32 v[24:25], v[24:25], v[28:29]\nv_pk_add_f32 v[26:27], v[26:27], v[30:31]")
        a("v_pk_add_f32 v[32:33], v[16:17], v[24:25]\nv_pk_add_f32 v[34:35], v[18:19], v[26:27]")
        tag_regs([32, 33, 34, 35], vmask, bits)
        publish(32, voff, soff, gonly)
        a("s_mov_b64 exec, -1")
    KF = 64; VF = 96; QR = 36; QB = 16
    a(f"s_lshl_b32 s50, s61, 14\ns_add_u32 s50, s50, {MQ}")
    a("s_and_b32 s40, s62, 3\ns_lshl_b32 s40, s40, 10\ns_add_u32 s51, s50, s40\ns_lshr_b32 s40, s62, 2\ns_lshl_b32 s40, s40, 7\ns_add_u32 s51, s51, s40")
    a(f"s_lshl_b32 s49, s61, 12\ns_lshl_b32 s40, s3, 10\ns_add_u32 s49, s49, s40\ns_add_u32 s49, s49, {MQ2}")
    a("s_lshl_b32 s40, s3, 12\ns_add_u32 s50, s50, s40")
    a("v_lshrrev_b32 v11, 3, v1\nv_lshlrev_b32 v11, 12, v11\nv_and_b32 v10, 7, v1\nv_lshl_or_b32 v11, v10, 4, v11\nv_mov_b32 v13, 0xff")
    get_rec(16)
    a("s_cmp_lg_u32 s3, 1\ns_cbranch_scc1 L_Aq")
    a(f"v_and_b32 v12, 0x1f0, v4\nv_add_u32 v12, {B+GP}, v12")
    lds_wait(C_G, 4, 10, extra=GPRD)
    gemv1_reduce(11, 51, 8, 13)
    stamp(9)
    a.label("L_Aq")
    if True:
        a("v_bfe_u32 v2, v1, 1, 2\nv_lshlrev_b32 v2, 7, v2\nv_lshrrev_b32 v3, 3, v1\nv_lshl_or_b32 v2, v3, 4, v2\nv_and_b32 v3, 1, v1\nv_lshl_or_b32 v2, v3, 3, v2")
        a(f"s_lshl_b32 s40, s3, 9\ns_add_u32 s40, s40, {B}\nv_add_u32 v2, s40, v2")
        a("v_and_b32 v10, 7, v7\nv_lshlrev_b32 v12, 7, v6\nv_lshl_or_b32 v12, v10, 4, v12")
        a("v_lshrrev_b32 v5, 3, v7")
        a("v_lshl_add_u32 v3, v5, 3, v12\nv_add_u32 v3, s40, v3")
        a(f"v_add_u32 v12, {B}, v12\nv_lshl_add_u32 v0, v5, 10, v12")
        a("v_lshlrev_b32 v11, 14, v10\nv_lshl_or_b32 v11, v5, 6, v11\nv_lshl_or_b32 v11, v6, 4, v11")
        a(f"s_lshl_b32 s53, s61, 17\ns_lshl_b32 s40, s3, 12\ns_add_u32 s53, s53, s40\ns_and_b32 s40, s62, 3\ns_lshl_b32 s40, s40, 10\ns_add_u32 s53, s53, s40\ns_lshr_b32 s40, s62, 2\ns_lshl_b32 s40, s40, 7\ns_add_u32 s53, s53, s40\ns_add_u32 s53, s53, {MO}")
        a(f"s_lshl_b32 s52, s61, 12\ns_lshl_b32 s40, s62, 4\ns_add_u32 s52, s52, s40\ns_add_u32 s52, s52, {MML}")
        a("v_mov_b32 v13, 0xfff\nv_cmp_gt_u32 s[54:55], 8, v7")
        a("v_lshrrev_b32 v14, 2, v1\nv_lshlrev_b32 v14, 8, v14\nv_bfe_u32 v15, v1, 1, 4\nv_lshl_or_b32 v14, v15, 4, v14\nv_and_b32 v15, 1, v1\nv_lshl_or_b32 v14, v15, 3, v14")
        a("s_lshl_b32 s40, s3, 6\nv_xor_b32 v14, s40, v14\nv_xor_b32 v15, 32, v14")
        a("v_xor_b32 v56, v6, v7\nv_lshlrev_b32 v56, 4, v56\nv_lshl_or_b32 v56, v7, 8, v56\ns_lshl_b32 s40, s3, 13\nv_add_u32 v56, s40, v56")
        for s in range(1, 4): a(f"v_xor_b32 v{56+s}, {64*s}, v56")
        a(f"s_mov_b32 s40, {f32(128**-0.5)}\ns_mov_b32 s41, {f32(LOG2E)}")
    def pre_k():
        lds_wait(C_K, 4, 10)
        stamp(4)
        for T in range(2):
            for s in range(4):
                r = KF + 16*T + 4*s
                a(f"ds_read_b128 v[{r}:{r+3}], v{56+s} offset:{L_K + 4096*T}")
    lds_wait(C_TQ, tcq, 10)
    poll([(QR + 16, 4, "s49", 0)] + [(QR + 4*p, 4, 0, 1024*p) for p in range(4)], [50], list(range(QR, QR+20)), 8, 10, pre=pre_k, delay=dq, slot=12)
    stamp(5)
    a(f"v_pk_add_f32 v[{QR+12}:{QR+13}], v[{QR+12}:{QR+13}], v[{QR+16}:{QR+17}]\nv_pk_add_f32 v[{QR+14}:{QR+15}], v[{QR+14}:{QR+15}], v[{QR+18}:{QR+19}]")
    a(f"v_pk_add_f32 v[{QR}:{QR+1}], v[{QR}:{QR+1}], v[{QR+4}:{QR+5}]\nv_pk_add_f32 v[{QR+2}:{QR+3}], v[{QR+2}:{QR+3}], v[{QR+6}:{QR+7}]")
    a(f"v_pk_add_f32 v[{QR+8}:{QR+9}], v[{QR+8}:{QR+9}], v[{QR+12}:{QR+13}]\nv_pk_add_f32 v[{QR+10}:{QR+11}], v[{QR+10}:{QR+11}], v[{QR+14}:{QR+15}]")
    a(f"v_pk_add_f32 v[{QR}:{QR+1}], v[{QR}:{QR+1}], v[{QR+8}:{QR+9}]\nv_pk_add_f32 v[{QR+2}:{QR+3}], v[{QR+2}:{QR+3}], v[{QR+10}:{QR+11}]")
    a(f"v_cvt_pk_bf16_f32 v16, v{QR}, v{QR+1}\nv_cvt_pk_bf16_f32 v17, v{QR+2}, v{QR+3}")
    a(f"ds_write_b64 v2, v[16:17] offset:{QBI}")
    signal(C_QB)
    lds_wait(C_QB, 4, 10, slp=0, extra="\n".join(f"ds_read_b128 v[{QB+4*s}:{QB+4*s+3}], v12 offset:{QBI + 512*s}" for s in range(4)))
    SC = 32
    for s in range(4):
        for T in range(2):
            c = "0" if s == 0 else f"v[{SC+4*T}:{SC+4*T+3}]"
            a(f"v_mfma_f32_16x16x32_bf16 v[{SC+4*T}:{SC+4*T+3}], v[{KF+16*T+4*s}:{KF+16*T+4*s+3}], v[{QB+4*s}:{QB+4*s+3}], {c}")
    for i in range(4): a(f"v_cndmask_b32 v{40+i}, v{SC+4+i}, v{SC+i}, s[54:55]")
    a("v_cvt_pk_bf16_f32 v44, v40, v41\nv_cvt_pk_bf16_f32 v45, v42, v43")
    unpack(40, 44); unpack(42, 45)
    for i in range(4): a(f"v_mul_f32 v{40+i}, s40, v{40+i}")
    a("v_cvt_pk_bf16_f32 v44, v40, v41\nv_cvt_pk_bf16_f32 v45, v42, v43")
    a(f"ds_write_b64 v3, v[44:45] offset:{SCX}")
    signal(C_SC)
    lds_wait(C_SC, 4, 10, slp=0, extra=f"ds_read_b128 v[16:19], v0 offset:{SCX}\nds_read_b128 v[20:23], v0 offset:{SCX+512}")
    P = 32
    for i in range(8): unpack(P + 2*i, 16 + i)
    ML = 60
    a(f"v_max3_f32 v{ML}, v{P}, v{P+1}, v{P+2}\nv_max3_f32 v24, v{P+3}, v{P+4}, v{P+5}\nv_max3_f32 v25, v{P+6}, v{P+7}, v{P+8}\nv_max3_f32 v26, v{P+9}, v{P+10}, v{P+11}")
    a(f"v_max3_f32 v{ML}, v{ML}, v{P+12}, v{P+13}\nv_max3_f32 v24, v24, v{P+14}, v{P+15}\nv_max3_f32 v{ML}, v{ML}, v25, v26\nv_max_f32 v{ML}, v{ML}, v24")
    allreduce("v_max_f32", ML, 24, lo=(8,))
    a(f"v_mul_f32 v24, s41, v{ML}")
    for i in range(16): a(f"v_fma_f32 v{P+i}, v{P+i}, s41, -v24")
    for i in range(16): a(f"v_exp_f32 v{P+i}, v{P+i}")
    PA = 16; PB = 24
    for i in range(8): a(f"v_cvt_pk_bf16_f32 v{PA+i}, v{P+2*i}, v{P+2*i+1}")
    for i in range(8): a(f"v_mov_b32 v{PB+i}, v{PA+i}")
    for i in range(8): a(f"v_mov_b32_dpp v{PB+i}, v{PA+i} row_ror:8 row_mask:0xf bank_mask:0x3")
    for i in range(8): a(f"v_mov_b32_dpp v{PA+i}, v{PA+i} row_ror:8 row_mask:0xf bank_mask:0xc")
    a("s_cmp_lg_u32 s3, 3\ns_cbranch_scc1 L_Apv")
    for i in range(4): a(f"v_pk_add_f32 v[{P+4*i}:{P+4*i+1}], v[{P+4*i}:{P+4*i+1}], v[{P+4*i+2}:{P+4*i+3}]")
    a(f"v_pk_add_f32 v[{P}:{P+1}], v[{P}:{P+1}], v[{P+4}:{P+5}]\nv_pk_add_f32 v[{P+8}:{P+9}], v[{P+8}:{P+9}], v[{P+12}:{P+13}]")
    a(f"v_pk_add_f32 v[{P}:{P+1}], v[{P}:{P+1}], v[{P+8}:{P+9}]\nv_add_f32 v{ML+1}, v{P}, v{P+1}")
    allreduce("v_add_f32", ML+1, 48, lo=(8,))
    a(f"v_mov_b32 v{ML+2}, v{ML}\nv_mov_b32 v{ML+3}, v{ML+1}")
    tag_regs([ML, ML+1, ML+2, ML+3], 13, 12, rn=False)
    a("s_mov_b64 exec, 0xff")
    a("v_lshlrev_b32 v48, 9, v1")
    publish(ML, 48, 52)
    a("s_mov_b64 exec, -1")
    a.label("L_Apv")
    stamp(1)
    lds_wait(C_V, 4, 10, slp=0)
    stamp(10)
    OA = 64
    for u in range(4):
        for dt in range(2):
            for e in range(2):
                r = VF + 8*u + 4*dt + 2*e
                a(f"ds_read_b64_tr_b16 v[{r}:{r+1}], v{14+dt} offset:{L_V + 4096*(2*u+e)}")
        if u == 2: a("s_waitcnt lgkmcnt(8)")
        if u >= 2:
            pass
    for u in range(4):
        a(f"s_waitcnt lgkmcnt({12-4*u})")
        for dt in range(2):
            c = "0" if u == 0 else f"v[{OA+4*dt}:{OA+4*dt+3}]"
            a(f"v_mfma_f32_16x16x32_bf16 v[{OA+4*dt}:{OA+4*dt+3}], v[{VF+8*u+4*dt}:{VF+8*u+4*dt+3}], v[{PA+4*u}:{PA+4*u+3}], {c}")
    for r in range(4): a(f"v_cndmask_b32 v{OA+r}, v{OA+4+r}, v{OA+r}, s[54:55]")
    tag_regs([OA+r for r in range(4)], 13, 12, rn=False)
    publish(OA, 11, 53)
    stamp(6)
    if redf: a("s_cmp_ge_u32 s3, 2\ns_cbranch_scc1 L_fin")
    else: a("s_cmp_eq_u32 s3, 2\ns_cbranch_scc1 L_RED\ns_cmp_eq_u32 s3, 3\ns_cbranch_scc1 L_fin")
    a(f"s_lshr_b32 s50, s60, 1\ns_lshl_b32 s50, s50, 13\ns_lshl_b32 s40, s3, 12\ns_add_u32 s50, s50, s40\ns_add_u32 s50, s50, {MO}")
    a(f"s_lshl_b32 s51, s61, 12\ns_lshr_b32 s40, s62, 2\ns_lshl_b32 s40, s40, 9\ns_add_u32 s51, s51, s40\ns_add_u32 s51, s51, {MML}")
    a("v_lshrrev_b32 v2, 3, v1\nv_lshlrev_b32 v2, 2, v2\nv_and_b32 v3, 3, v1\nv_or_b32 v2, v2, v3\nv_lshlrev_b32 v2, 4, v2")
    a("v_and_b32 v12, 7, v1\nv_lshlrev_b32 v12, 3, v12\nv_lshrrev_b32 v3, 5, v1\nv_lshl_or_b32 v12, v3, 1, v12\nv_bfe_u32 v3, v1, 4, 1\nv_lshl_or_b32 v12, v3, 2, v12")
    a(f"s_lshl_b32 s40, s3, 6\ns_add_u32 s40, s40, {B+OV}\nv_add_u32 v12, s40, v12")
    MLR = 16; OR_ = 20
    oloads = [(OR_ + 4*i, 4, 0, 1024*i) for i in range(4)]
    lds_wait(C_TO, tco, 10)
    if ok > 1:
        def mko(sb, wk):
            a(f"buffer_load_dwordx4 v[{sb}:{sb+3}], v2, s[4:7], s{wk[1]} offen sc1")
            for i in range(4): a(f"buffer_load_dwordx4 v[{sb+4+4*i}:{sb+7+4*i}], v4, s[4:7], s{wk[0]} offen offset:{1024*i} sc1")
        a("s_mov_b32 s43, 0")
        ppoll(mko, 5, 20, [50, 51], MLR, 72, ok, ogap, 12, 10)
        stamp(7)
    else:
        def pre_o():
            poll(oloads, [50], None, 12, 10, parts="issue")
        poll([(MLR, 2, 0, 0)], [51], list(range(MLR, MLR+4)), 12, 10, pre=pre_o, first_wait=4, wk0=47, slot=12)
    allreduce("v_max_f32", MLR+2, 10, lo=(8, 2, 1))
    a(f"v_sub_f32 v{MLR}, v{MLR}, v{MLR+2}\nv_mul_f32 v{MLR}, s41, v{MLR}\nv_exp_f32 v{MLR}, v{MLR}")
    a(f"v_mul_f32 v{MLR+1}, v{MLR}, v{MLR+1}")
    allreduce("v_add_f32", MLR+1, 10, lo=(8, 2, 1))
    a(f"v_rcp_f32 v{MLR+1}, v{MLR+1}")
    a(f"v_mul_f32 v{MLR}, v{MLR}, v{MLR+1}")
    if ok == 1:
        poll(oloads, [50], list(range(OR_, OR_+16)), 12, 10, parts="check")
        stamp(7)
    for r in range(4): a(f"v_mul_f32_dpp v{40+r}, v{MLR}, v{OR_+r} quad_perm:[0,0,0,0] row_mask:0xf bank_mask:0xf")
    for i in range(1, 4):
        for r in range(4): a(f"v_fmac_f32_dpp v{40+r}, v{MLR}, v{OR_+4*i+r} quad_perm:[{i},{i},{i},{i}] row_mask:0xf bank_mask:0xf")
    tred4(40)
    a("v_add_f32_dpp v40, v40, v40 row_ror:8 row_mask:0xf bank_mask:0xf")
    a("v_cvt_pk_bf16_f32 v40, v40, v40")
    a("ds_write_b16 v12, v40")
    signal(C_OV)
    stamp(8)
    a("s_branch L_fin")

    a.label("L_CF")
    if not redf: a("s_cmp_eq_u32 s3, 3\ns_cbranch_scc1 L_fin")
    get_rec(16)
    a("s_cmp_ge_u32 s3, 2\ns_cbranch_scc1 L_RED")
    f_ids()
    a("s_cmp_eq_u32 s3, 1\ns_cbranch_scc1 L_CF1")
    a("s_cmp_eq_u32 s54, 0\ns_cbranch_scc1 L_fin")
    a("v_lshrrev_b32 v11, 3, v1\nv_lshlrev_b32 v11, 10, v11\nv_and_b32 v10, 7, v1\nv_lshl_or_b32 v11, v10, 4, v11\nv_mov_b32 v13, 0xff")
    a(f"s_sub_u32 s51, s61, 4\ns_lshl_b32 s51, s51, 12\ns_and_b32 s40, s62, 7\ns_lshl_b32 s40, s40, 7\ns_add_u32 s51, s51, s40\ns_add_u32 s51, s51, {MQ2}")
    a(f"v_and_b32 v12, 0x1f0, v4\nv_add_u32 v12, {B+QBI}, v12")
    lds_wait(C_K, 4, 10, extra=GPRD)
    gemv1_reduce(11, 51, 8, 13, gonly=True)
    stamp(6)
    a("s_branch L_fin")
    a.label("L_CF1")
    a("s_lshl_b32 s40, s55, 5\nv_add_u32 v11, s40, v1")
    a("v_mul_u32_u24 v12, 4682, v11\nv_lshrrev_b32 v12, 16, v12\nv_mul_u32_u24 v13, 14, v12\nv_sub_u32 v11, v11, v13")
    a("v_lshlrev_b32 v12, 10, v12\nv_lshl_or_b32 v11, v11, 4, v12\nv_mov_b32 v13, 0x3ff")
    a(f"s_sub_u32 s40, s61, 4\ns_lshl_b32 s50, s40, 14\ns_add_u32 s50, s50, {MH}\ns_lshl_b32 s49, s40, 12\ns_add_u32 s49, s49, {MH2 - 13*1024}")
    a("s_cmp_ge_u32 s57, 2\ns_cselect_b32 s51, s49, s50")
    a("s_and_b32 s40, s57, 1\ns_lshl_b32 s40, s40, 9\ns_add_u32 s51, s51, s40\ns_lshl_b32 s40, s56, 8\ns_add_u32 s51, s51, s40")
    a("s_lshr_b32 s41, s62, 1\ns_lshl_b32 s40, s41, 10\ns_add_u32 s50, s50, s40\ns_add_u32 s49, s49, s40")
    a("s_mov_b32 s52, 0x3fff3fff\ns_mov_b32 s53, 0x3fff3fff")
    a("s_mul_i32 s41, s41, 14\nv_add_u32 v10, s41, v7\nv_cmp_lt_u32 vcc, 191, v10\ns_mov_b64 s[56:57], vcc")
    a(f"v_and_b32 v12, 0x1f0, v4\nv_add_u32 v12, {B+GP}, v12")
    lds_wait(C_G, 4, 10, extra=GPRD)
    gemv1_reduce(11, 51, 10, 13)
    stamp(9)
    lds_wait(C_TO, tco, 10)
    hl = [(16, 4, 0, 0), "\n".join(f"v_mov_b32 v{20+i}, s{34+i}" for i in range(4)), "s_and_saveexec_b64 s[58:59], s[56:57]\ns_cbranch_execz 2", (20, 4, 1, 0), "s_mov_b64 exec, s[58:59]"]
    if hk > 1:
        a("s_sub_u32 s40, s50, s49\nv_add_u32 v14, s40, v4\nv_cndmask_b32 v14, v14, v4, s[56:57]")
        def mkh(sb, wk):
            a(f"buffer_load_dwordx4 v[{sb}:{sb+3}], v4, s[4:7], s{wk[0]} offen sc1")
            a(f"buffer_load_dwordx4 v[{sb+4}:{sb+7}], v14, s[4:7], s{wk[1]} offen sc1")
        a("s_mov_b32 s43, 0")
        ppoll(mkh, 2, 8, [50, 49], 16, 40, hk, hgap, 10, 10, lanemask="s[52:53]")
        a("s_mov_b64 exec, s[56:57]")
    else:
        poll(hl, [50, 49], list(range(16, 24)), 10, 10, lanemask="s[52:53]", delay=dh, slp=4)
    a("v_pk_add_f32 v[16:17], v[16:17], v[20:21]\nv_pk_add_f32 v[18:19], v[18:19], v[22:23]")
    a("s_mov_b64 exec, -1")
    stamp(7)
    swapred("v_add_f32", 32, [16, 17, 18, 19], 20)
    a("v_cvt_pk_bf16_f32 v20, v16, v17\nv_cvt_pk_bf16_f32 v21, v18, v19")
    a("v_mov_b32 v30, v20\nv_mov_b32 v31, v21")
    a("v_permlane16_swap_b32 v20, v30\nv_permlane16_swap_b32 v21, v31")
    unpack(16, 20); unpack(18, 21)
    k0 = 0.7978845608028654; k1 = 0.044715
    a(f"s_mov_b32 s40, {f32(-2*LOG2E*k0*k1)}\nv_mov_b32 v28, {f32(-2*LOG2E*k0)}")
    for r in range(4): a(f"v_mul_f32 v{20+r}, v{16+r}, v{16+r}")
    for r in range(4): a(f"v_fma_f32 v{20+r}, v{20+r}, s40, v28")
    for r in range(4): a(f"v_mul_f32 v{20+r}, v{20+r}, v{16+r}")
    for r in range(4): a(f"v_exp_f32 v{20+r}, v{20+r}")
    unpack(32, 30); unpack(34, 31)
    for r in range(4): a(f"v_add_f32 v{20+r}, 1.0, v{20+r}")
    for r in range(4): a(f"v_rcp_f32 v{20+r}, v{20+r}")
    a(f"v_lshlrev_b32 v12, 3, v1\nv_add_u32 v12, {B+OV}, v12\nv_cmp_gt_u32 vcc, 14, v1\nv_mov_b32 v9, 2")
    for r in range(4): a(f"v_mul_f32 v{20+r}, v{20+r}, v{16+r}")
    a("v_cvt_pk_bf16_f32 v24, v20, v21\nv_cvt_pk_bf16_f32 v25, v22, v23")
    unpack(20, 24); unpack(22, 25)
    for r in range(4): a(f"v_mul_f32 v{20+r}, v{20+r}, v{32+r}")
    a("v_cvt_pk_bf16_f32 v24, v20, v21\nv_cvt_pk_bf16_f32 v25, v22, v23")
    a("v_cndmask_b32 v24, 0, v24, vcc\nv_cndmask_b32 v25, 0, v25, vcc")
    a("s_mov_b64 exec, 0xffff")
    a("ds_write_b64 v12, v[24:25]")
    signal(C_OV)
    stamp(8)
    a("s_branch L_fin")

    a.label("L_RED")
    a("s_load_dwordx2 s[24:25], s[0:1], 72\ns_mov_b32 s26, 2048\ns_mov_b32 s27, 0x20000")
    if redf: a("s_lshl_b32 s60, s60, 1\ns_add_u32 s60, s60, s3\ns_sub_u32 s60, s60, 258")
    a("s_lshl_b32 s52, s60, 3")
    a("v_lshrrev_b32 v3, 5, v1\nv_bfe_u32 v5, v1, 4, 1\nv_lshl_or_b32 v3, v5, 1, v3\nv_lshlrev_b32 v3, 1, v3")
    a("v_mov_b32 v24, 0\nbuffer_load_short_d16_hi v24, v3, s[8:11], s52 offen")
    a("v_mov_b32 v26, s38\nv_mov_b32 v27, s39")
    a(f"s_lshl_b32 s50, s60, 4\ns_add_u32 s50, s50, {M3}\ns_add_u32 s51, s50, 0x40000\nv_lshlrev_b32 v2, 12, v1")
    a("s_waitcnt lgkmcnt(0)")
    a("s_barrier")
    stamp(9)
    if rk == 1:
        poll([(16, 2, 0, 0), (20, 2, 1, 0)], [50, 51], list(range(16, 24)), 10, 10, delay=dr, slp=rsleep, dual=False)
    else:
        for i in range(4): a(f"s_and_b32 s{34+i}, s{30+i}, 0x3ff")
        def rissue(k):
            a(f"buffer_load_dwordx4 v[{32+8*k}:{35+8*k}], v2, s[4:7], s50 offen sc1")
            a(f"buffer_load_dwordx4 v[{36+8*k}:{39+8*k}], v2, s[4:7], s51 offen sc1")
        backoff(dr)
        stamp(14)
        for k in range(rk):
            if k: backoff(rgap)
            rissue(k)
        a("s_mov_b32 s44, 0")
        a.label("L_rp")
        for k in range(rk):
            a(f"s_waitcnt vmcnt({2*(rk-1)})")
            for i in range(8): a(f"v_xor_b32 v{16+i}, s{34 + i % 4}, v{32+8*k+i}")
            a("v_or3_b32 v10, v16, v17, v18\nv_or3_b32 v10, v10, v19, v20\nv_or3_b32 v10, v10, v21, v22\nv_or_b32 v10, v10, v23\nv_and_b32 v10, 0x3ff, v10")
            a("v_cmp_ne_u32 vcc, 0, v10\ns_and_b64 exec, vcc, exec\ns_cbranch_scc0 L_rp_ok")
            rissue(k)
        a(f"s_add_u32 s44, s44, 1\ns_cmp_lt_u32 s44, {SPIN_MAX}\ns_cbranch_scc1 L_rp")
        a.label("L_rp_ok")
        a("s_mov_b64 exec, -1")
    stamp(10)
    a("v_pk_add_f32 v[16:17], v[16:17], v[20:21]\nv_pk_add_f32 v[18:19], v[18:19], v[22:23]")
    tred4(16)
    for k in (8, 4, 2, 1): a(f"v_add_f32_dpp v16, v16, v16 row_ror:{k} row_mask:0xf bank_mask:0xf")
    a("v_add_f32 v16, v16, v24\nv_cvt_pk_bf16_f32 v16, v16, v16")
    a("s_mov_b32 exec_lo, 0x10001\ns_mov_b32 exec_hi, 0x10001")
    a("buffer_store_short v16, v3, s[24:27], s52 offen")
    a("s_mov_b64 exec, 1")
    a("s_cmp_lg_u32 s60, 0\ns_cbranch_scc1 L_fin")
    a("buffer_store_dwordx2 v[26:27], off, s[4:7], 0 sc0 sc1")
    a("s_branch L_fin")

    a.label("L_fin")
    stamp(11)
    stamp_out()
    a.label("L_end")
    a("s_endpgm")
    a.raw('.section .rodata,"a"'); a.raw(".p2align 6"); a.raw(f".amdhsa_kernel {NAME}_kernel")
    a.raw("  .amdhsa_next_free_vgpr 192"); a.raw("  .amdhsa_next_free_sgpr 100"); a.raw("  .amdhsa_accum_offset 192")
    a.raw("  .amdhsa_group_segment_fixed_size 0"); a.raw("  .amdhsa_kernarg_size 96"); a.raw("  .amdhsa_user_sgpr_count 2")
    a.raw("  .amdhsa_user_sgpr_kernarg_segment_ptr 1"); a.raw("  .amdhsa_system_sgpr_workgroup_id_x 1"); a.raw(".end_amdhsa_kernel")
    return a.text()

if __name__ == "__main__":
    for spec in sys.argv[1:]:
        nm, _, kv = spec.partition(":")
        kw = {}
        for p in kv.split(","):
            if p:
                k, v = p.split("="); kw[k] = int(v)
        open(nm + ".s", "w").write(gen(**kw))
        open(nm + "_st.s", "w").write(gen(stamps=True, **kw))
```

```python
import sys, struct
from asmlib import Asm
NAME = "parallel_sum__sliding_block_cached__glu_gated_geglu__decode"
def f32(x): return "0x%08x" % struct.unpack("<I", struct.pack("<f", x))[0]

MQ = 0x10000; MML = 0x20000; MH = 0x30000; MO = 0x40000; GD = 0xC0000; MQ2 = 0x24000; MH2 = 0x28000; M3 = 0x180000
STAMP = 128 << 20
L_K = 0; L_V = 32768; B = 65536
XN = 0; GP = 1024; QBI = 3072; SCX = 5120; OV = 7168; CO = 7296
LDS_BYTES = B + 7360
C_G, C_K, C_V, C_QB, C_REC, C_SC, C_OV, C_TQ, C_TO = 0, 4, 8, 12, 16, 32, 36, 40, 44
LOG2E = 1.4426950408889634
SPIN_MAX = 200000

def gen(nt=True, stamps=False, wa=6, wf=6, sleep=2, dq=0, do=0, dh=0, dr=12, rsleep=1, local=1, gper=4, cst=10, wkv=None, ww=None, rot=1, tq=6, to=4, th=1, thm=8, wm=8, xm=1, tcq=4, tco=4, redf=0, wwf=None, nog=0, pl1=0, w0=None, n0=8, w0f=None, n0f=8, wn=2, rk=1, rgap=5, hk=3, hgap=10, ok=2, ogap=14, bare=0, bump=0, fw=5, na=12, cstm=10, pr=0, ack=0, v128=0):
    a = Asm()
    NT = " nt" if nt else ""
    hdr = open("cdna_kernels/" + NAME + ".s.ref").read().split("\n")
    for l in hdr:
        if l.startswith("; @launch"): break
        a.raw(l)
    a.raw(f"; @launch grid=(256,1,1) block=(512,1,1) lds={LDS_BYTES}")
    a.raw('.amdgcn_target "amdgcn-amd-amdhsa--gfx950"')
    a.raw(".text"); a.raw(f".globl {NAME}_kernel"); a.raw(".p2align 8"); a.raw(f".type {NAME}_kernel,@function"); a.raw(f"{NAME}_kernel:")
    NST = 15
    uid = [0]
    def stamp(i):
        if stamps: a(f"s_memrealtime s[{64+2*i}:{65+2*i}]")
    def stamp_out():
        if not stamps: return
        a("s_mov_b64 exec, -1")
        a("s_waitcnt lgkmcnt(0)")
        for i in range(2 * NST): a(f"v_writelane_b32 v3, s{64+i}, {i}")
        a(f"s_lshl_b32 s40, s2, 3\ns_add_u32 s40, s40, s3\ns_mul_i32 s40, s40, {NST*8}\ns_add_u32 s40, s40, {STAMP}")
        a(f"v_lshlrev_b32 v4, 2, v1\nv_cmp_gt_u32 vcc, {2*NST}, v1\ns_and_saveexec_b64 s[42:43], vcc")
        a("buffer_store_dword v3, v4, s[4:7], s40 offen")
    def swapred(op, kind, regs, tmp):
        for i, r in enumerate(regs): a(f"v_mov_b32 v{tmp+i}, v{r}")
        for i, r in enumerate(regs): a(f"v_permlane{kind}_swap_b32 v{r}, v{tmp+i}")
        for i, r in enumerate(regs): a(f"{op} v{r}, v{r}, v{tmp+i}")
    def allreduce(op, v, t, lo=(8, 4, 2, 1)):
        for k in lo: a(f"{op}_dpp v{v}, v{v}, v{v} row_ror:{k} row_mask:0xf bank_mask:0xf")
        swapred(op, 16, [v], t); swapred(op, 32, [v], t)
    def tred4(r):
        a(f"v_permlane32_swap_b32 v{r}, v{r+1}\nv_permlane32_swap_b32 v{r+2}, v{r+3}")
        a(f"v_add_f32 v{r}, v{r}, v{r+1}\nv_add_f32 v{r+2}, v{r+2}, v{r+3}")
        a(f"v_permlane16_swap_b32 v{r}, v{r+2}")
        a(f"v_add_f32 v{r}, v{r}, v{r+2}")
    def unpack(dst, src):
        a(f"v_lshlrev_b32 v{dst}, 16, v{src}\nv_and_b32 v{dst+1}, 0xffff0000, v{src}")
    def mk_tags():
        a("s_and_b32 s30, s38, 0xfff\ns_bfe_u32 s31, s38, 0xc000c\ns_and_b32 s32, s39, 0xfff\ns_bfe_u32 s33, s39, 0xc000c")
    def tag_regs(regs, vmask, bits, rn=True):
        if rn:
            for r in regs: a(f"v_add_u32 v{r}, {1 << (bits-1)}, v{r}")
        for i, r in enumerate(regs): a(f"v_bfi_b32 v{r}, v{vmask}, s{30 + i % 4}, v{r}")
    def backoff(n):
        while n > 0:
            k = min(n, 127); a(f"s_sleep {k}"); n -= k
    def publish(vd, voff, soff, gonly=False):
        if gonly:
            a(f"buffer_store_dwordx4 v[{vd}:{vd+3}], v{voff}, s[4:7], s{soff} offen sc1"); return
        if local:
            a(f"buffer_store_dwordx4 v[{vd}:{vd+3}], v{voff}, s[4:7], s{soff} offen")
        if nog: return
        a(f"s_add_u32 s45, s{soff}, {GD}")
        a(f"buffer_store_dwordx4 v[{vd}:{vd+3}], v{voff}, s[4:7], s45 offen sc1")
    def poll(loads, bases, regs, bits, t, lanemask=None, pre=None, delay=0, slot=13, slp=None, dual=True, wk0=46, first_wait=0, parts=None):
        uid[0] += 1
        L = f"L_poll{uid[0]}"
        slp = sleep if slp is None else slp
        m = (1 << bits) - 1
        for i in range(4): a(f"s_and_b32 s{34+i}, s{30+i}, {m}")
        def issue(first=False):
            for ld in loads:
                if isinstance(ld, str): a(ld); continue
                vd, vo, bi, imm = ld
                a(f"buffer_load_dwordx4 v[{vd}:{vd+3}], v{vo}, s[4:7], {bi if isinstance(bi, str) else 's%d' % wk[bi]} offen offset:{imm} sc1")
        if dual:
            wk = [wk0 + i for i in range(len(bases))]
            for i, b in enumerate(bases):
                a(f"s_mov_b32 s{wk[i]}, s{b}" if local else f"s_add_u32 s{wk[i]}, s{b}, {GD}")
        else: wk = bases
        if parts == "issue":
            if slot == 13: stamp(14)
            issue(True); uid[0] -= 1
            return
        backoff(delay)
        if slot == 13 and parts is None: stamp(14)
        if lanemask is not None: a(f"s_mov_b64 exec, {lanemask}")
        if parts == "check":
            a("s_mov_b32 s44, 0")
            a(f"s_branch {L}_w")
        elif pre is not None:
            issue(True); pre()
            a("s_mov_b32 s44, 0")
            if first_wait:
                a(f"s_waitcnt vmcnt({first_wait})")
                a(f"s_branch {L}_c")
            else:
                a(f"s_branch {L}_w")
        else:
            a("s_mov_b32 s44, 0")
        a.label(L)
        issue()
        a.label(L + "_w")
        a("s_waitcnt vmcnt(0)")
        a.label(L + "_c")
        for i, r in enumerate(regs): a(f"v_xor_b32 v{r}, s{34 + i % 4}, v{r}")
        a(f"v_or3_b32 v{t}, v{regs[0]}, v{regs[1]}, v{regs[2]}")
        rest = regs[3:]
        while len(rest) >= 2:
            a(f"v_or3_b32 v{t}, v{t}, v{rest[0]}, v{rest[1]}"); rest = rest[2:]
        if rest: a(f"v_or_b32 v{t}, v{t}, v{rest[0]}")
        a(f"v_and_b32 v{t}, {m}, v{t}")
        a(f"v_cmp_ne_u32 vcc, 0, v{t}")
        a("s_and_b64 exec, vcc, exec")
        a(f"s_cbranch_scc0 {L}_ok")
        if slp: a(f"s_sleep {slp}")
        a("s_add_u32 s44, s44, 1")
        if dual and local:
            a(f"s_and_b32 s45, s44, {gper-1}\ns_cmp_eq_u32 s45, {gper-1}\ns_cselect_b32 s45, {GD}, 0")
            for i, b in enumerate(bases): a(f"s_add_u32 s{wk[i]}, s{b}, s45")
        a(f"s_cmp_lt_u32 s44, {SPIN_MAX}\ns_cbranch_scc1 {L}")
        a.label(L + "_ok")
        a("s_mov_b64 exec, -1")
        if stamps: a(f"s_mul_i32 s{64+2*slot}, s44, 100\ns_add_u32 s{64+2*slot}, s{64+2*slot}, s64\ns_addc_u32 s{65+2*slot}, s65, 0")
    def ppoll(mk, nld, nreg, bases, R, S, k, gap, bits, t, lanemask=None):
        uid[0] += 1
        L = f"L_pp{uid[0]}"
        m = (1 << bits) - 1
        for i in range(4): a(f"s_and_b32 s{34+i}, s{30+i}, {m}")
        wk = [46 + i for i in range(len(bases))]
        for i, b in enumerate(bases): a(f"s_mov_b32 s{wk[i]}, s{b}")
        if lanemask is not None: a(f"s_mov_b64 exec, {lanemask}")
        stamp(14)
        a("s_waitcnt vmcnt(0)") if False else None
        for j in range(k):
            if j: backoff(gap)
            mk(S + j * nreg, wk)
        a("s_mov_b32 s44, 0")
        a.label(L)
        regs = list(range(R, R + nreg))
        for j in range(k):
            a(f"s_waitcnt vmcnt({nld*(k-1)})")
            for i in range(nreg): a(f"v_xor_b32 v{R+i}, s{34 + i % 4}, v{S + j*nreg + i}")
            a(f"v_or3_b32 v{t}, v{regs[0]}, v{regs[1]}, v{regs[2]}")
            rest = regs[3:]
            while len(rest) >= 2:
                a(f"v_or3_b32 v{t}, v{t}, v{rest[0]}, v{rest[1]}"); rest = rest[2:]
            if rest: a(f"v_or_b32 v{t}, v{t}, v{rest[0]}")
            a(f"v_and_b32 v{t}, {m}, v{t}\nv_cmp_ne_u32 vcc, 0, v{t}\ns_and_b64 exec, vcc, exec\ns_cbranch_scc0 {L}_ok")
            if stamps: a("s_add_u32 s43, s43, 1")
            mk(S + j * nreg, wk)
        a("s_add_u32 s44, s44, 1")
        a(f"s_and_b32 s45, s44, 1\ns_cselect_b32 s45, {GD}, 0")
        for i, b in enumerate(bases): a(f"s_add_u32 s{wk[i]}, s{b}, s45")
        a(f"s_cmp_lt_u32 s44, {SPIN_MAX}\ns_cbranch_scc1 {L}")
        a.label(L + "_ok")
        a("s_mov_b64 exec, -1")
        if stamps: a(f"s_mul_i32 s90, s43, 100\ns_add_u32 s90, s90, s64\ns_addc_u32 s91, s65, 0")
    def lds_wait(off, val, t, slp=1, extra=None):
        uid[0] += 1
        L = f"L_lw{uid[0]}"
        a("s_mov_b32 s44, 0")
        a.label(L)
        a(f"ds_read_b32 v{t}, v8 offset:{CO + off}")
        if extra: a(extra)
        a("s_waitcnt lgkmcnt(0)")
        a(f"v_readfirstlane_b32 s45, v{t}")
        a(f"s_cmp_ge_u32 s45, {val}\ns_cbranch_scc1 {L}_ok")
        if slp: a(f"s_sleep {slp}")
        a(f"s_add_u32 s44, s44, 1\ns_cmp_lt_u32 s44, {SPIN_MAX*8}\ns_cbranch_scc1 {L}")
        a.label(L + "_ok")
    def signal(off):
        a("s_mov_b64 exec, 1")
        a(f"ds_add_u32 v8, v9 offset:{CO+off}")
        a("s_mov_b64 exec, -1")
    def get_rec(r):
        uid[0] += 1
        L = f"L_tg{uid[0]}"
        a("s_mov_b32 s44, 0")
        a.label(L)
        a(f"ds_read_b128 v[{r}:{r+3}], v8 offset:{CO+C_REC}")
        a("s_waitcnt lgkmcnt(0)")
        a(f"v_readfirstlane_b32 s45, v{r+2}\nv_readfirstlane_b32 s38, v{r}\nv_readfirstlane_b32 s39, v{r+1}")
        a(f"s_bitcmp1_b32 s45, 0\ns_cbranch_scc1 {L}_ok")
        a(f"s_sleep 1\ns_add_u32 s44, s44, 1\ns_cmp_lt_u32 s44, {SPIN_MAX*8}\ns_cbranch_scc1 {L}")
        a.label(L + "_ok")
        mk_tags()
    def f_ids():
        a("s_cmp_ge_u32 s62, 24\ns_cselect_b32 s54, 1, 0")
        a("s_lshr_b32 s55, s62, 2\ns_min_u32 s55, s55, 6")
        a("s_add_u32 s40, s54, 1\ns_lshr_b32 s56, s62, s40\ns_and_b32 s56, s56, 1")
        a("s_lshl_b32 s40, s54, 1\ns_add_u32 s40, s40, 1\ns_and_b32 s57, s62, s40")

    def common():
        if stamps:
            for i in range(1, NST): a(f"s_mov_b64 s[{64+2*i}:{65+2*i}], 0")
        a("s_mov_b32 s6, 0x10000000\ns_mov_b32 s7, 0x20000\ns_mov_b32 s10, 2048\ns_mov_b32 s11, 0x20000")
        a("s_lshl_b32 s60, s61, 5\ns_add_u32 s60, s60, s62")
        a(f"v_mov_b32 v8, {B}\nv_mov_b32 v9, 1")
    FW = fw
    NM = 64 - 4 * na
    G1 = 64; W2 = 64 if v128 else 128; SEL = 48; ACC = 56; AT = 40; XR = 16; OWN = 32
    AC2 = 52
    def mk_sel():
        a("v_and_b32 v60, 8, v7\nv_cmp_eq_u32 vcc, 0, v60")
        a("v_mov_b32 v60, 0x0c0c0302\nv_mov_b32 v61, 0x0c0c0100\nv_cndmask_b32 v60, v60, v61, vcc")
        a("v_and_b32 v61, 1, v7\nv_lshlrev_b32 v61, 4, v61\nv_alignbit_b32 v60, v60, v60, v61")
        a("v_bfe_u32 v62, v7, 1, 2\nv_mov_b32 v63, 0x0c0c0c0c")
        for d in range(4):
            a(f"v_cmp_eq_u32 vcc, {d}, v62")
            a(f"v_cndmask_b32 v{SEL+d}, v63, v60, vcc")
    def sp_perm(n):
        if n & 1: return
        at = AT + 4 * ((n >> 1) & 1)
        for d in range(4): a(f"v_perm_b32 v{at+d}, v{XR + n // 2}, v{XR + n // 2}, v{SEL+d}")
    def sp_mfma(breg, n, first):
        at = AT + 4 * ((n >> 1) & 1)
        ac = AC2 if n & 1 else ACC
        c = "0" if (n < 2 or first) else f"v[{ac}:{ac+3}]"
        a(f"v_mfma_f32_16x16x32_bf16 v[{ac}:{ac+3}], v[{at}:{at+3}], v[{breg}:{breg+3}], {c}")
    def sp_merge():
        a(f"v_permlane32_swap_b32 v{AC2}, v{AC2+1}\nv_permlane32_swap_b32 v{AC2+2}, v{AC2+3}")
        a(f"v_add_f32 v{ACC}, v{ACC}, v{AC2+1}\nv_add_f32 v{ACC+2}, v{ACC+2}, v{AC2+3}")
        a(f"v_permlane32_swap_b32 v{AC2+1}, v{AC2}\nv_permlane32_swap_b32 v{AC2+3}, v{AC2+2}")
        a(f"v_add_f32 v{ACC+1}, v{ACC+1}, v{AC2}\nv_add_f32 v{ACC+3}, v{ACC+3}, v{AC2+2}")
    def stream(kind, win):
        NG = {"A": na, "F": 32, "M": NM + 16}[kind]
        stride = 8192 if kind == "A" else 7168
        ops = [("G", n) for n in range(NG)]
        ops.insert(FW, ("X", 0))
        if kind == "A": ops += [("K", n) for n in range(8)] + [("V", n) for n in range(8)]
        ops += [("W", n) for n in range(16 if kind == "A" else 14)]
        def issue(op):
            k, n = op
            if k == "G":
                r = G1 + 4 * (n % 16)
                if kind == "M" and n >= NM:
                    if n > NM: a("s_add_u32 s50, s50, 7168")
                    a(f"buffer_load_dwordx4 v[{r}:{r+3}], v10, s[20:23], s50 offen{NT}")
                else:
                    a("s_add_u32 s51, s51, s47")
                    a(f"buffer_load_dwordx4 v[{r}:{r+3}], v2, s[12:15], s51 offen{NT}")
            elif k == "X":
                a("v_lshlrev_b32 v60, 2, v1")
                if kind == "M":
                    a("s_lshl_b32 s42, s57, 2\ns_add_u32 s42, s42, s46")
                    a(f"s_sub_u32 s41, s61, 4\ns_mul_i32 s50, s41, 7\ns_add_u32 s50, s50, 6\ns_lshl_b32 s50, s50, 8\ns_mul_i32 s40, s42, {64*7168}\ns_add_u32 s50, s50, s40")
                    a("s_lshl_b32 s42, s42, 7\ns_sub_u32 s42, s42, 128\ns_sub_u32 s42, s42, s49")
                    a("v_mov_b32 v62, s42\nv_cmp_gt_u32 vcc, 32, v1\nv_cndmask_b32 v61, v62, 0, vcc\nv_add_u32 v60, v60, v61\nv_add_u32 v60, s49, v60")
                    a(f"buffer_load_dword v{OWN}, v60, s[8:11], 0 offen")
                    a(f"v_mul_u32_u24 v10, {16*7168}, v6\nv_lshl_add_u32 v10, v7, 4, v10")
                    a("s_cmp_eq_u32 s56, 1\ns_cselect_b32 s20, s26, s24\ns_cselect_b32 s21, s27, s25\ns_mov_b32 s22, 0x700000\ns_mov_b32 s23, 0x20000")
                else:
                    a(f"buffer_load_dword v{OWN}, v60, s[8:11], s49 offen")
            elif k in "KV":
                a(f"s_add_u32 s53, s53, 1024\ns_and_b32 s53, s53, 0x1c00")
                if k == "K": a("s_bfe_u32 s40, s53, 0x2000a\ns_lshl_b32 s40, s40, 6")
                else: a("s_bfe_u32 s40, s53, 0x1000a\ns_lshl_b32 s40, s40, 7")
                a("s_or_b32 s40, s40, s53")
                a(f"v_xor_b32 v{12+(n&1)}, s40, v{10 if k == 'K' else 11}")
                a(f"s_add_u32 m0, s53, s{54 if k == 'K' else 55}")
                srd = 20 if k == "K" else 24
                a(f"buffer_load_dwordx4 v{12+(n&1)}, s[{srd}:{srd+3}], s50 offen{NT} lds")
            else:
                if n and n % 2 == 0: a("s_add_u32 s52, s52, 4096")
                a(f"buffer_load_dwordx4 v[{W2+4*n}:{W2+4*n+3}], v3, s[16:19], s52 offen offset:{2048*(n&1)}{NT}")
        def setup_rest():
            common()
            if kind == "A":
                a("s_load_dwordx2 s[16:17], s[0:1], 32\ns_load_dwordx2 s[20:21], s[0:1], 8\ns_load_dwordx2 s[24:25], s[0:1], 16")
                a("s_mov_b32 s18, 0x800000\ns_mov_b32 s22, 0x2000000\ns_mov_b32 s23, 0x20000\ns_mov_b32 s26, 0x2000000\ns_mov_b32 s27, 0x20000")
            else:
                a("s_load_dwordx2 s[16:17], s[0:1], 64\ns_mov_b32 s18, 0x700000")
            a("s_mov_b32 s19, 0x20000")
            a("v_mov_b32 v5, 0x3ff")
            a(f"v_mul_u32_u24 v3, {(16 if kind == 'A' else 14)*2048}, v6\nv_lshl_or_b32 v3, v7, 4, v3")
            a("s_and_b32 s40, s62, 1\ns_lshl_b32 s40, s40, 10\ns_lshl_b32 s41, s46, 8\ns_add_u32 s40, s40, s41\ns_lshr_b32 s41, s60, 1")
            if kind == "A":
                a("s_lshl_b32 s52, s41, 17\ns_add_u32 s52, s52, s40")
                a("v_xor_b32 v10, v7, v6\nv_lshlrev_b32 v10, 4, v10\nv_lshl_or_b32 v10, v6, 8, v10")
                a("v_lshlrev_b32 v11, 1, v6\nv_xor_b32 v11, v7, v11\nv_lshlrev_b32 v11, 4, v11\nv_lshl_or_b32 v11, v6, 8, v11")
                a(f"s_lshl_b32 s50, s61, 23\ns_lshl_b32 s40, s62, 15\ns_add_u32 s50, s50, s40\ns_lshl_b32 s54, s46, 13\ns_add_u32 s50, s50, s54\ns_add_u32 s50, s50, {28672*256}\ns_add_u32 s55, s54, {L_V}")
                a("s_lshl_b32 s53, s62, 10" if rot else "s_mov_b32 s53, 0x1c00")
            else:
                a(f"s_sub_u32 s41, s41, 64\ns_mul_i32 s52, s41, {56*2048}\ns_add_u32 s52, s52, s40")
            mk_sel()
            a("s_waitcnt lgkmcnt(0)")
        def get_x():
            get_rec(60)
            a("v_and_b32 v62, 0xffff0000, v62")
            unpack(34, OWN)
            a("v_sub_f32 v34, v34, v62\nv_sub_f32 v35, v35, v62\nv_cvt_pk_bf16_f32 v36, v34, v35")
            unpack(34, 36)
            a("v_mul_f32 v34, v34, v63\nv_mul_f32 v35, v35, v63\nv_cvt_pk_bf16_f32 v36, v34, v35")
            a(f"s_lshl_b32 s40, s46, 8\ns_add_u32 s40, s40, {B+XN}\nv_lshl_add_u32 v37, v1, 2, s40\nds_write_b32 v37, v36")
            if kind == "A":
                a(f"v_mul_u32_u24 v37, {2*na}, v6\nv_add_u32 v37, s40, v37")
                if na == 12:
                    for i in range(3): a(f"ds_read_b64 v[{XR+2*i}:{XR+2*i+1}], v37 offset:{8*i}")
                else:
                    for i in range(0, na // 2 - 1, 2): a(f"ds_read2_b32 v[{XR+i}:{XR+i+1}], v37 offset0:{i} offset1:{i+1}")
                    if (na // 2) % 2: a(f"ds_read_b32 v{XR+na//2-1}, v37 offset:{4*(na//2-1)}")
            elif kind == "F":
                a("v_lshl_add_u32 v37, v6, 6, s40")
                for i in range(4): a(f"ds_read_b128 v[{XR+4*i}:{XR+4*i+3}], v37 offset:{16*i}")
            else:
                a(f"v_lshl_add_u32 v37, v6, 5, s40\nv_lshl_add_u32 v38, v6, {5 if NM == 16 else 4}, s40")
                for i in range(NM // 8): a(f"ds_read_b128 v[{XR+4*i}:{XR+4*i+3}], v38 offset:{16*i}")
                for i in range(2): a(f"ds_read_b128 v[{XR+NM//2+4*i}:{XR+NM//2+4*i+3}], v37 offset:{16*i + 128}")
            a(f"s_lshl_b32 s40, s46, 9\ns_add_u32 s40, s40, {B+GP}\nv_lshl_add_u32 v33, v7, 1, v6\nv_lshl_add_u32 v33, v33, 4, s40")
            a("s_waitcnt lgkmcnt(0)")
            stamp(2)
        def consume(n):
            if n == 0: get_x()
            sp_perm(n); sp_mfma(G1 + 4 * (n % 16), n, kind == "M" and n in (NM, NM + 1))
            if kind == "M" and n == NM - 1:
                sp_merge()
                a("s_mov_b32 exec_hi, 0")
                a(f"ds_write_b128 v33, v[{ACC}:{ACC+3}] offset:{QBI-GP}")
                signal(C_K)
                stamp(3)
            if n == NG - 1:
                sp_merge()
                a("s_mov_b32 exec_hi, 0")
                a(f"ds_write_b128 v33, v[{ACC}:{ACC+3}]")
                signal(C_G)
                stamp(4)
        nc = 0
        nl = -1
        gidx = {op[1]: i for i, op in enumerate(ops) if op[0] == "G"}
        first = {"A": max(win, w0 or 0), "F": win, "M": wm}[kind]
        for i, op in enumerate(ops):
            if i < FW: continue
            w = win
            if kind == "A" and w0 and i < n0 + w0: w = max(win, min(w0, n0 + w0 - i + win))
            if kind == "F" and w0f and i < n0f: w = w0f
            if kind == "M" and i < NM + 1: w = wm
            if op[0] in "KV" and wkv: w = wkv
            if op[0] == "W" and ww and kind == "A": w = ww
            if op[0] == "W" and wwf and kind != "A": w = wwf
            if i - w <= FW <= i: w += 1
            newl = max(nl, i - w)
            if op[0] == "X": newl = nl
            if newl > nl:
                a(f"s_waitcnt vmcnt({i - 1 - newl})")
            evs = list(range(nl + 1, newl + 1)); nl = newl
            if op[0] == "G" and op[1] >= 16:
                while nc <= op[1] - 16: consume(nc); nc += 1
            if op[0] == "W" and v128:
                last = max([g for g in range(NG) if g % 16 == op[1]], default=-1)
                assert last < 0 or gidx[last] <= nl
                while nc <= last: consume(nc); nc += 1
            issue(op)
            if i == max(first, FW):
                setup_rest(); a("s_barrier")
            for e in evs:
                if ops[e] == ("K", 7): signal(C_K); stamp(3)
                if ops[e] == ("V", 7): signal(C_V); stamp(6)
                if kind == "A" and e == na + 1 + tq: signal(C_TQ)
                if ops[e] == ("W", to if kind == "A" else (th if kind == "F" or NM == 16 else thm)): signal(C_TO)
            k = 0
            while i >= (cst if kind != "M" else min(cst, cstm)) and nl >= FW and nc < NG and gidx[nc] <= nl and k < 3:
                consume(nc); nc += 1; k += 1
        assert nc == NG
    X, F, EV = 16, 28, 24
    stamp(0)
    a("s_load_dwordx2 s[12:13], s[0:1], 24\ns_load_dwordx4 s[24:27], s[0:1], 48\ns_load_dwordx2 s[8:9], s[0:1], 0\ns_load_dwordx2 s[4:5], s[0:1], 88")
    a("v_lshrrev_b32 v2, 6, v0\nv_and_b32 v1, 63, v0")
    a("s_cmp_ge_u32 s2, 256\ns_cbranch_scc1 L_end")
    a("v_readfirstlane_b32 s3, v2")
    a("s_and_b32 s61, s2, 7\ns_lshl_b32 s61, s61, 2\ns_lshr_b32 s61, " + ("0x32761054" if xm else "0x76543210") + ", s61\ns_and_b32 s61, s61, 7\ns_lshr_b32 s62, s2, 3")
    a("v_lshrrev_b32 v6, 4, v1\nv_and_b32 v7, 15, v1\nv_lshlrev_b32 v4, 4, v1\ns_mov_b32 s10, 2048\ns_mov_b32 s11, 0x20000")
    a("s_cmp_lt_u32 s3, 4\ns_cbranch_scc1 L_Cstub")
    if pr >= 2: a("s_setprio 1")
    a("s_sub_u32 s46, s3, 4\ns_mov_b32 s15, 0x20000")
    f_ids()
    a("s_and_b32 s45, s61, 3\ns_mul_i32 s42, s45, 7\ns_add_u32 s42, s42, s55\ns_mov_b32 s40, s57\ns_mov_b32 s41, 32\ns_mov_b32 s43, 1")
    a("s_lshl_b32 s45, s45, 3\ns_and_b32 s44, s62, 7\ns_add_u32 s44, s44, s45")
    a("s_cmp_eq_u32 s54, 1\ns_cselect_b32 s40, " + str(64 // NM - 1) + ", s40\ns_cselect_b32 s41, " + str(NM) + ", s41\ns_cselect_b32 s42, s44, s42\ns_cselect_b32 s43, 0, s43")
    a("s_lshr_b32 s44, s62, 2\ns_add_u32 s44, s44, s45\ns_and_b32 s45, s62, 3")
    a("s_cmp_lt_u32 s61, 4\ns_cselect_b32 s40, s45, s40\ns_cselect_b32 s41, " + str(na) + ", s41\ns_cselect_b32 s42, s44, s42\ns_cselect_b32 s43, 0, s43")
    a("s_cmp_eq_u32 s43, 0\ns_cselect_b32 s47, 0x2000, s10\ns_cselect_b32 s14, 0x800000, s10")
    a("s_cmp_eq_u32 s43, 1\ns_cselect_b32 s47, 0x1c00, s47\ns_cselect_b32 s14, 0x700000, s14")
    a("s_lshl_b32 s40, s40, 2\ns_add_u32 s40, s40, s46\ns_mul_i32 s40, s40, s41\ns_lshl_b32 s49, s40, 3")
    a("s_mul_i32 s51, s40, s47\ns_lshl_b32 s51, s51, 2\ns_lshl_b32 s42, s42, 8\ns_add_u32 s51, s51, s42\ns_mul_i32 s41, s41, s47")
    a("v_mul_u32_u24 v2, s41, v6\nv_lshl_add_u32 v2, v7, 4, v2")
    a("s_cmp_eq_u32 s56, 1")
    a("s_waitcnt lgkmcnt(0)")
    a("s_cselect_b32 s44, s26, s24\ns_cselect_b32 s45, s27, s25\ns_cmp_eq_u32 s43, 1\ns_cselect_b32 s12, s44, s12\ns_cselect_b32 s13, s45, s13")
    for n in range(FW):
        if n: a("s_add_u32 s51, s51, s47")
        a(f"buffer_load_dwordx4 v[{G1+4*n}:{G1+4*n+3}], v2, s[12:15], s51 offen{NT}")
    if stamps: a("s_memrealtime s[98:99]")
    a("s_cbranch_scc1 L_end") if False else None
    a("s_cmp_eq_u32 s43, 1\ns_cbranch_scc1 L_SF\ns_cmp_ge_u32 s61, 4\ns_cbranch_scc1 L_SM\ns_branch L_SA")
    a.label("L_Cstub")
    if pr == 0: a("s_setprio 3")
    a("s_cmp_lg_u32 s3, 0\ns_cbranch_scc1 L_Cn0")
    a("s_mov_b32 s6, 0x10000000\ns_mov_b32 s7, 0x20000")
    a("s_waitcnt lgkmcnt(0)")
    a(f"buffer_load_dwordx4 v[{X}:{X+3}], v4, s[8:11], 0 offen")
    a(f"buffer_load_dwordx4 v[{X+4}:{X+7}], v4, s[8:11], 0 offen offset:1024")
    a(f"buffer_load_dwordx2 v[{EV}:{EV+1}], off, s[4:7], 0 sc0 sc1")
    a("s_branch L_C0")
    def sfin(NW):
        stamp(5)
        if stamps: a("s_mov_b64 s[66:67], s[98:99]")
        a("v_lshl_add_u32 v11, v7, 1, v6\nv_lshlrev_b32 v11, 4, v11")
        a(f"s_lshl_b32 s50, s60, 11\ns_lshl_b32 s41, s46, 9\ns_add_u32 s50, s50, s41\ns_add_u32 s50, s50, {M3}")
        a(f"v_lshlrev_b32 v12, 5, v6\nv_add_u32 v12, {B+OV}, v12")
        lds_wait(C_OV, 0 if bare else 2, 13, slp=0, extra=f"ds_read_b128 v[{XR}:{XR+3}], v12\nds_read_b128 v[{XR+4}:{XR+7}], v12 offset:16")
        stamp(8)
        sp_perm(0)
        for k in range(NW):
            if NW - 1 - k < 8: a(f"s_waitcnt vmcnt({NW-1-k})")
            sp_mfma(W2 + 4*k, k, k == 0)
            if k % 2 == 0 and k + 2 < NW: sp_perm(k + 2)
        stamp(9)
        sp_merge()
        tag_regs([ACC, ACC+1, ACC+2, ACC+3], 5, 10)
        a("s_mov_b32 exec_hi, 0")
        a(f"buffer_store_dwordx4 v[{ACC}:{ACC+3}], v11, s[4:7], s50 offen sc1")
        if ack: a("s_waitcnt vmcnt(0)")
        a("s_barrier")
    a.label("L_SA")
    stream("A", wa)
    sfin(16)
    a("s_branch L_fin")
    a.label("L_SF")
    stream("F", wf)
    a("s_branch L_Sfin")
    a.label("L_SM")
    stream("M", wf)
    a.label("L_Sfin")
    sfin(14)
    a("s_branch L_fin")
    a.label("L_C0")
    common()
    a("s_barrier")
    a("s_waitcnt vmcnt(1)")
    stamp(2)
    for i in range(8): unpack(F + 2*i, X + i)
    S, T = F + 16, F + 17
    for i in range(4): a(f"v_pk_add_f32 v[{X+2*i}:{X+2*i+1}], v[{F+4*i}:{F+4*i+1}], v[{F+4*i+2}:{F+4*i+3}]")
    a(f"v_pk_add_f32 v[{X}:{X+1}], v[{X}:{X+1}], v[{X+2}:{X+3}]\nv_pk_add_f32 v[{X+4}:{X+5}], v[{X+4}:{X+5}], v[{X+6}:{X+7}]")
    a(f"v_pk_add_f32 v[{X}:{X+1}], v[{X}:{X+1}], v[{X+4}:{X+5}]\nv_add_f32 v{S}, v{X}, v{X+1}")
    allreduce("v_add_f32", S, T)
    a(f"v_mul_f32 v{S}, {f32(1/1024)}, v{S}")
    M = X + 2
    a(f"v_mov_b32 v{M}, v{S}\nv_mov_b32 v{M+1}, v{S}")
    for i in range(8): a(f"v_pk_add_f32 v[{F+2*i}:{F+2*i+1}], v[{F+2*i}:{F+2*i+1}], v[{M}:{M+1}] neg_lo:[0,1] neg_hi:[0,1]")
    a(f"v_pk_mul_f32 v[{X}:{X+1}], v[{F}:{F+1}], v[{F}:{F+1}]\nv_pk_mul_f32 v[{X+4}:{X+5}], v[{F+2}:{F+3}], v[{F+2}:{F+3}]")
    for i in range(2, 8):
        d = X if i % 2 == 0 else X + 4
        a(f"v_pk_fma_f32 v[{d}:{d+1}], v[{F+2*i}:{F+2*i+1}], v[{F+2*i}:{F+2*i+1}], v[{d}:{d+1}]")
    V = X + 6
    a(f"v_pk_add_f32 v[{X}:{X+1}], v[{X}:{X+1}], v[{X+4}:{X+5}]\nv_add_f32 v{V}, v{X}, v{X+1}")
    allreduce("v_add_f32", V, T)
    a(f"v_mul_f32 v{V}, {f32(1/1024)}, v{V}")
    a(f"v_cvt_pk_bf16_f32 v{T}, v{S}, v{V}")
    a(f"v_lshl_or_b32 v{EV+2}, v{T}, 16, 1")
    a(f"v_and_b32 v{V}, 0xffff0000, v{T}\nv_add_f32 v{V}, {f32(1e-5)}, v{V}")
    a(f"v_cvt_pk_bf16_f32 v{V}, v{V}, v{V}\nv_and_b32 v{V}, 0xffff0000, v{V}\nv_sqrt_f32 v{V}, v{V}")
    a(f"v_cvt_pk_bf16_f32 v{V}, v{V}, v{V}\nv_and_b32 v{V}, 0xffff0000, v{V}\nv_rcp_f32 v{EV+3}, v{V}")
    a("s_waitcnt vmcnt(0)")
    a(f"v_add_u32 v{EV}, 0x7f4a7c15, v{EV}\nv_add_u32 v{EV+1}, 0x9e3779b9, v{EV+1}")
    a("s_mov_b64 exec, 1")
    a(f"ds_write_b128 v8, v[{EV}:{EV+3}] offset:{CO+C_REC}")
    a("s_mov_b64 exec, -1")
    stamp(3)
    a("s_branch L_Cj")
    a.label("L_Cn0")
    common()
    a("v_mov_b32 v16, 0\nv_mov_b32 v17, 0\nv_mov_b32 v18, 0\nv_mov_b32 v19, 0")
    a(f"ds_write_b128 v8, v[16:19] offset:{CO}\nds_write_b128 v8, v[16:19] offset:{CO+16}\nds_write_b128 v8, v[16:19] offset:{CO+32}")
    a("s_waitcnt lgkmcnt(0)")
    a("s_barrier")
    a.label("L_Cj")
    if pr in (1, 2): a("s_setprio 3")
    if bare: a("s_branch L_fin")
    a("s_cmp_ge_u32 s61, 4\ns_cbranch_scc1 L_CF")

    GPRD = "\n".join(f"ds_read_b128 v[{16+4*i}:{19+4*i}], v12 offset:{512*i}" for i in range(4))
    def gemv1_reduce(voff, soff, bits, vmask, gonly=False):
        a("s_mov_b32 exec_hi, 0")
        a("v_pk_add_f32 v[16:17], v[16:17], v[20:21]\nv_pk_add_f32 v[18:19], v[18:19], v[22:23]")
        a("v_pk_add_f32 v[24:25], v[24:25], v[28:29]\nv_pk_add_f32 v[26:27], v[26:27], v[30:31]")
        a("v_pk_add_f32 v[32:33], v[16:17], v[24:25]\nv_pk_add_f32 v[34:35], v[18:19], v[26:27]")
        tag_regs([32, 33, 34, 35], vmask, bits)
        publish(32, voff, soff, gonly)
        a("s_mov_b64 exec, -1")
    KF = 64; VF = 96; QR = 36; QB = 16
    a(f"s_lshl_b32 s50, s61, 14\ns_add_u32 s50, s50, {MQ}")
    a("s_and_b32 s40, s62, 3\ns_lshl_b32 s40, s40, 10\ns_add_u32 s51, s50, s40\ns_lshr_b32 s40, s62, 2\ns_lshl_b32 s40, s40, 7\ns_add_u32 s51, s51, s40")
    a(f"s_lshl_b32 s49, s61, 12\ns_lshl_b32 s40, s3, 10\ns_add_u32 s49, s49, s40\ns_add_u32 s49, s49, {MQ2}")
    a("s_lshl_b32 s40, s3, 12\ns_add_u32 s50, s50, s40")
    a("v_lshrrev_b32 v11, 3, v1\nv_lshlrev_b32 v11, 12, v11\nv_and_b32 v10, 7, v1\nv_lshl_or_b32 v11, v10, 4, v11\nv_mov_b32 v13, 0xff")
    get_rec(16)
    a("s_cmp_lg_u32 s3, 1\ns_cbranch_scc1 L_Aq")
    a(f"v_and_b32 v12, 0x1f0, v4\nv_add_u32 v12, {B+GP}, v12")
    lds_wait(C_G, 4, 10, extra=GPRD)
    gemv1_reduce(11, 51, 8, 13)
    stamp(9)
    a.label("L_Aq")
    if True:
        a("v_bfe_u32 v2, v1, 1, 2\nv_lshlrev_b32 v2, 7, v2\nv_lshrrev_b32 v3, 3, v1\nv_lshl_or_b32 v2, v3, 4, v2\nv_and_b32 v3, 1, v1\nv_lshl_or_b32 v2, v3, 3, v2")
        a(f"s_lshl_b32 s40, s3, 9\ns_add_u32 s40, s40, {B}\nv_add_u32 v2, s40, v2")
        a("v_and_b32 v10, 7, v7\nv_lshlrev_b32 v12, 7, v6\nv_lshl_or_b32 v12, v10, 4, v12")
        a("v_lshrrev_b32 v5, 3, v7")
        a("v_lshl_add_u32 v3, v5, 3, v12\nv_add_u32 v3, s40, v3")
        a(f"v_add_u32 v12, {B}, v12\nv_lshl_add_u32 v0, v5, 10, v12")
        a("v_lshlrev_b32 v11, 14, v10\nv_lshl_or_b32 v11, v5, 6, v11\nv_lshl_or_b32 v11, v6, 4, v11")
        a(f"s_lshl_b32 s53, s61, 17\ns_lshl_b32 s40, s3, 12\ns_add_u32 s53, s53, s40\ns_and_b32 s40, s62, 3\ns_lshl_b32 s40, s40, 10\ns_add_u32 s53, s53, s40\ns_lshr_b32 s40, s62, 2\ns_lshl_b32 s40, s40, 7\ns_add_u32 s53, s53, s40\ns_add_u32 s53, s53, {MO}")
        a(f"s_lshl_b32 s52, s61, 12\ns_lshl_b32 s40, s62, 4\ns_add_u32 s52, s52, s40\ns_add_u32 s52, s52, {MML}")
        a("v_mov_b32 v13, 0xfff\nv_cmp_gt_u32 s[54:55], 8, v7")
        a("v_lshrrev_b32 v14, 2, v1\nv_lshlrev_b32 v14, 8, v14\nv_bfe_u32 v15, v1, 1, 4\nv_lshl_or_b32 v14, v15, 4, v14\nv_and_b32 v15, 1, v1\nv_lshl_or_b32 v14, v15, 3, v14")
        a("s_lshl_b32 s40, s3, 6\nv_xor_b32 v14, s40, v14\nv_xor_b32 v15, 32, v14")
        a("v_xor_b32 v56, v6, v7\nv_lshlrev_b32 v56, 4, v56\nv_lshl_or_b32 v56, v7, 8, v56\ns_lshl_b32 s40, s3, 13\nv_add_u32 v56, s40, v56")
        for s in range(1, 4): a(f"v_xor_b32 v{56+s}, {64*s}, v56")
        a(f"s_mov_b32 s40, {f32(128**-0.5)}\ns_mov_b32 s41, {f32(LOG2E)}")
    def pre_k():
        lds_wait(C_K, 4, 10)
        stamp(4)
        for T in range(2):
            for s in range(4):
                r = KF + 16*T + 4*s
                a(f"ds_read_b128 v[{r}:{r+3}], v{56+s} offset:{L_K + 4096*T}")
    lds_wait(C_TQ, tcq, 10)
    poll([(QR + 16, 4, "s49", 0)] + [(QR + 4*p, 4, 0, 1024*p) for p in range(4)], [50], list(range(QR, QR+20)), 8, 10, pre=pre_k, delay=dq, slot=12)
    stamp(5)
    a(f"v_pk_add_f32 v[{QR+12}:{QR+13}], v[{QR+12}:{QR+13}], v[{QR+16}:{QR+17}]\nv_pk_add_f32 v[{QR+14}:{QR+15}], v[{QR+14}:{QR+15}], v[{QR+18}:{QR+19}]")
    a(f"v_pk_add_f32 v[{QR}:{QR+1}], v[{QR}:{QR+1}], v[{QR+4}:{QR+5}]\nv_pk_add_f32 v[{QR+2}:{QR+3}], v[{QR+2}:{QR+3}], v[{QR+6}:{QR+7}]")
    a(f"v_pk_add_f32 v[{QR+8}:{QR+9}], v[{QR+8}:{QR+9}], v[{QR+12}:{QR+13}]\nv_pk_add_f32 v[{QR+10}:{QR+11}], v[{QR+10}:{QR+11}], v[{QR+14}:{QR+15}]")
    a(f"v_pk_add_f32 v[{QR}:{QR+1}], v[{QR}:{QR+1}], v[{QR+8}:{QR+9}]\nv_pk_add_f32 v[{QR+2}:{QR+3}], v[{QR+2}:{QR+3}], v[{QR+10}:{QR+11}]")
    a(f"v_cvt_pk_bf16_f32 v16, v{QR}, v{QR+1}\nv_cvt_pk_bf16_f32 v17, v{QR+2}, v{QR+3}")
    a(f"ds_write_b64 v2, v[16:17] offset:{QBI}")
    signal(C_QB)
    lds_wait(C_QB, 4, 10, slp=0, extra="\n".join(f"ds_read_b128 v[{QB+4*s}:{QB+4*s+3}], v12 offset:{QBI + 512*s}" for s in range(4)))
    SC = 32
    for s in range(4):
        for T in range(2):
            c = "0" if s == 0 else f"v[{SC+4*T}:{SC+4*T+3}]"
            a(f"v_mfma_f32_16x16x32_bf16 v[{SC+4*T}:{SC+4*T+3}], v[{KF+16*T+4*s}:{KF+16*T+4*s+3}], v[{QB+4*s}:{QB+4*s+3}], {c}")
    for i in range(4): a(f"v_cndmask_b32 v{40+i}, v{SC+4+i}, v{SC+i}, s[54:55]")
    a("v_cvt_pk_bf16_f32 v44, v40, v41\nv_cvt_pk_bf16_f32 v45, v42, v43")
    unpack(40, 44); unpack(42, 45)
    for i in range(4): a(f"v_mul_f32 v{40+i}, s40, v{40+i}")
    a("v_cvt_pk_bf16_f32 v44, v40, v41\nv_cvt_pk_bf16_f32 v45, v42, v43")
    a(f"ds_write_b64 v3, v[44:45] offset:{SCX}")
    signal(C_SC)
    lds_wait(C_SC, 4, 10, slp=0, extra=f"ds_read_b128 v[16:19], v0 offset:{SCX}\nds_read_b128 v[20:23], v0 offset:{SCX+512}")
    P = 32
    for i in range(8): unpack(P + 2*i, 16 + i)
    ML = 60
    a(f"v_max3_f32 v{ML}, v{P}, v{P+1}, v{P+2}\nv_max3_f32 v24, v{P+3}, v{P+4}, v{P+5}\nv_max3_f32 v25, v{P+6}, v{P+7}, v{P+8}\nv_max3_f32 v26, v{P+9}, v{P+10}, v{P+11}")
    a(f"v_max3_f32 v{ML}, v{ML}, v{P+12}, v{P+13}\nv_max3_f32 v24, v24, v{P+14}, v{P+15}\nv_max3_f32 v{ML}, v{ML}, v25, v26\nv_max_f32 v{ML}, v{ML}, v24")
    allreduce("v_max_f32", ML, 24, lo=(8,))
    a(f"v_mul_f32 v24, s41, v{ML}")
    for i in range(16): a(f"v_fma_f32 v{P+i}, v{P+i}, s41, -v24")
    for i in range(16): a(f"v_exp_f32 v{P+i}, v{P+i}")
    PA = 16; PB = 24
    for i in range(8): a(f"v_cvt_pk_bf16_f32 v{PA+i}, v{P+2*i}, v{P+2*i+1}")
    for i in range(8): a(f"v_mov_b32 v{PB+i}, v{PA+i}")
    for i in range(8): a(f"v_mov_b32_dpp v{PB+i}, v{PA+i} row_ror:8 row_mask:0xf bank_mask:0x3")
    for i in range(8): a(f"v_mov_b32_dpp v{PA+i}, v{PA+i} row_ror:8 row_mask:0xf bank_mask:0xc")
    a("s_cmp_lg_u32 s3, 3\ns_cbranch_scc1 L_Apv")
    for i in range(4): a(f"v_pk_add_f32 v[{P+4*i}:{P+4*i+1}], v[{P+4*i}:{P+4*i+1}], v[{P+4*i+2}:{P+4*i+3}]")
    a(f"v_pk_add_f32 v[{P}:{P+1}], v[{P}:{P+1}], v[{P+4}:{P+5}]\nv_pk_add_f32 v[{P+8}:{P+9}], v[{P+8}:{P+9}], v[{P+12}:{P+13}]")
    a(f"v_pk_add_f32 v[{P}:{P+1}], v[{P}:{P+1}], v[{P+8}:{P+9}]\nv_add_f32 v{ML+1}, v{P}, v{P+1}")
    allreduce("v_add_f32", ML+1, 48, lo=(8,))
    a(f"v_mov_b32 v{ML+2}, v{ML}\nv_mov_b32 v{ML+3}, v{ML+1}")
    tag_regs([ML, ML+1, ML+2, ML+3], 13, 12, rn=False)
    a("s_mov_b64 exec, 0xff")
    a("v_lshlrev_b32 v48, 9, v1")
    publish(ML, 48, 52)
    a("s_mov_b64 exec, -1")
    a.label("L_Apv")
    stamp(1)
    lds_wait(C_V, 4, 10, slp=0)
    stamp(10)
    OA = 64
    for u in range(4):
        for dt in range(2):
            for e in range(2):
                r = VF + 8*u + 4*dt + 2*e
                a(f"ds_read_b64_tr_b16 v[{r}:{r+1}], v{14+dt} offset:{L_V + 4096*(2*u+e)}")
        if u == 2: a("s_waitcnt lgkmcnt(8)")
        if u >= 2:
            pass
    for u in range(4):
        a(f"s_waitcnt lgkmcnt({12-4*u})")
        for dt in range(2):
            c = "0" if u == 0 else f"v[{OA+4*dt}:{OA+4*dt+3}]"
            a(f"v_mfma_f32_16x16x32_bf16 v[{OA+4*dt}:{OA+4*dt+3}], v[{VF+8*u+4*dt}:{VF+8*u+4*dt+3}], v[{PA+4*u}:{PA+4*u+3}], {c}")
    for r in range(4): a(f"v_cndmask_b32 v{OA+r}, v{OA+4+r}, v{OA+r}, s[54:55]")
    tag_regs([OA+r for r in range(4)], 13, 12, rn=False)
    publish(OA, 11, 53)
    stamp(6)
    if redf: a("s_cmp_ge_u32 s3, 2\ns_cbranch_scc1 L_fin")
    else: a("s_cmp_eq_u32 s3, 2\ns_cbranch_scc1 L_RED\ns_cmp_eq_u32 s3, 3\ns_cbranch_scc1 L_fin")
    a(f"s_lshr_b32 s50, s60, 1\ns_lshl_b32 s50, s50, 13\ns_lshl_b32 s40, s3, 12\ns_add_u32 s50, s50, s40\ns_add_u32 s50, s50, {MO}")
    a(f"s_lshl_b32 s51, s61, 12\ns_lshr_b32 s40, s62, 2\ns_lshl_b32 s40, s40, 9\ns_add_u32 s51, s51, s40\ns_add_u32 s51, s51, {MML}")
    a("v_lshrrev_b32 v2, 3, v1\nv_lshlrev_b32 v2, 2, v2\nv_and_b32 v3, 3, v1\nv_or_b32 v2, v2, v3\nv_lshlrev_b32 v2, 4, v2")
    a("v_and_b32 v12, 7, v1\nv_lshlrev_b32 v12, 3, v12\nv_lshrrev_b32 v3, 5, v1\nv_lshl_or_b32 v12, v3, 1, v12\nv_bfe_u32 v3, v1, 4, 1\nv_lshl_or_b32 v12, v3, 2, v12")
    a(f"s_lshl_b32 s40, s3, 6\ns_add_u32 s40, s40, {B+OV}\nv_add_u32 v12, s40, v12")
    MLR = 16; OR_ = 20
    oloads = [(OR_ + 4*i, 4, 0, 1024*i) for i in range(4)]
    lds_wait(C_TO, tco, 10)
    if ok > 1:
        def mko(sb, wk):
            a(f"buffer_load_dwordx4 v[{sb}:{sb+3}], v2, s[4:7], s{wk[1]} offen sc1")
            for i in range(4): a(f"buffer_load_dwordx4 v[{sb+4+4*i}:{sb+7+4*i}], v4, s[4:7], s{wk[0]} offen offset:{1024*i} sc1")
        a("s_mov_b32 s43, 0")
        ppoll(mko, 5, 20, [50, 51], MLR, 72, ok, ogap, 12, 10)
        stamp(7)
    else:
        def pre_o():
            poll(oloads, [50], None, 12, 10, parts="issue")
        poll([(MLR, 2, 0, 0)], [51], list(range(MLR, MLR+4)), 12, 10, pre=pre_o, first_wait=4, wk0=47, slot=12)
    allreduce("v_max_f32", MLR+2, 10, lo=(8, 2, 1))
    a(f"v_sub_f32 v{MLR}, v{MLR}, v{MLR+2}\nv_mul_f32 v{MLR}, s41, v{MLR}\nv_exp_f32 v{MLR}, v{MLR}")
    a(f"v_mul_f32 v{MLR+1}, v{MLR}, v{MLR+1}")
    allreduce("v_add_f32", MLR+1, 10, lo=(8, 2, 1))
    a(f"v_rcp_f32 v{MLR+1}, v{MLR+1}")
    a(f"v_mul_f32 v{MLR}, v{MLR}, v{MLR+1}")
    if ok == 1:
        poll(oloads, [50], list(range(OR_, OR_+16)), 12, 10, parts="check")
        stamp(7)
    for r in range(4): a(f"v_mul_f32_dpp v{40+r}, v{MLR}, v{OR_+r} quad_perm:[0,0,0,0] row_mask:0xf bank_mask:0xf")
    for i in range(1, 4):
        for r in range(4): a(f"v_fmac_f32_dpp v{40+r}, v{MLR}, v{OR_+4*i+r} quad_perm:[{i},{i},{i},{i}] row_mask:0xf bank_mask:0xf")
    tred4(40)
    a("v_add_f32_dpp v40, v40, v40 row_ror:8 row_mask:0xf bank_mask:0xf")
    a("v_cvt_pk_bf16_f32 v40, v40, v40")
    a("ds_write_b16 v12, v40")
    signal(C_OV)
    stamp(8)
    a("s_branch L_fin")

    a.label("L_CF")
    if not redf: a("s_cmp_eq_u32 s3, 3\ns_cbranch_scc1 L_fin")
    get_rec(16)
    a("s_cmp_ge_u32 s3, 2\ns_cbranch_scc1 L_RED")
    f_ids()
    a("s_cmp_eq_u32 s3, 1\ns_cbranch_scc1 L_CF1")
    a("s_cmp_eq_u32 s54, 0\ns_cbranch_scc1 L_fin")
    a("v_lshrrev_b32 v11, 3, v1\nv_lshlrev_b32 v11, 10, v11\nv_and_b32 v10, 7, v1\nv_lshl_or_b32 v11, v10, 4, v11\nv_mov_b32 v13, 0xff")
    a(f"s_sub_u32 s51, s61, 4\ns_lshl_b32 s51, s51, 12\ns_and_b32 s40, s62, 7\ns_lshl_b32 s40, s40, 7\ns_add_u32 s51, s51, s40\ns_add_u32 s51, s51, {MQ2}")
    a(f"v_and_b32 v12, 0x1f0, v4\nv_add_u32 v12, {B+QBI}, v12")
    lds_wait(C_K, 4, 10, extra=GPRD)
    gemv1_reduce(11, 51, 8, 13, gonly=True)
    stamp(6)
    a("s_branch L_fin")
    a.label("L_CF1")
    a("s_lshl_b32 s40, s55, 5\nv_add_u32 v11, s40, v1")
    a("v_mul_u32_u24 v12, 4682, v11\nv_lshrrev_b32 v12, 16, v12\nv_mul_u32_u24 v13, 14, v12\nv_sub_u32 v11, v11, v13")
    a("v_lshlrev_b32 v12, 10, v12\nv_lshl_or_b32 v11, v11, 4, v12\nv_mov_b32 v13, 0x3ff")
    a(f"s_sub_u32 s40, s61, 4\ns_lshl_b32 s50, s40, 14\ns_add_u32 s50, s50, {MH}\ns_lshl_b32 s49, s40, 12\ns_add_u32 s49, s49, {MH2 - 13*1024}")
    a("s_cmp_ge_u32 s57, 2\ns_cselect_b32 s51, s49, s50")
    a("s_and_b32 s40, s57, 1\ns_lshl_b32 s40, s40, 9\ns_add_u32 s51, s51, s40\ns_lshl_b32 s40, s56, 8\ns_add_u32 s51, s51, s40")
    a("s_lshr_b32 s41, s62, 1\ns_lshl_b32 s40, s41, 10\ns_add_u32 s50, s50, s40\ns_add_u32 s49, s49, s40")
    a("s_mov_b32 s52, 0x3fff3fff\ns_mov_b32 s53, 0x3fff3fff")
    a("v_lshlrev_b32 v2, 1, v7\nv_or_b32 v3, 1, v2")
    for r in (2, 3): a(f"v_mul_u32_u24 v5, 37, v{r}\nv_lshrrev_b32 v5, 8, v5\nv_add_lshl_u32 v{r}, v{r}, v5, 2\nv_add_u32 v{r}, {B+OV}, v{r}")
    a("s_mul_i32 s41, s41, 14\nv_add_u32 v10, s41, v7\nv_cmp_lt_u32 vcc, 191, v10\ns_mov_b64 s[56:57], vcc")
    a(f"v_and_b32 v12, 0x1f0, v4\nv_add_u32 v12, {B+GP}, v12")
    lds_wait(C_G, 4, 10, extra=GPRD)
    gemv1_reduce(11, 51, 10, 13)
    stamp(9)
    lds_wait(C_TO, tco, 10)
    hl = [(16, 4, 0, 0), "\n".join(f"v_mov_b32 v{20+i}, s{34+i}" for i in range(4)), "s_and_saveexec_b64 s[58:59], s[56:57]\ns_cbranch_execz 2", (20, 4, 1, 0), "s_mov_b64 exec, s[58:59]"]
    if hk > 1:
        a("s_sub_u32 s40, s50, s49\nv_add_u32 v14, s40, v4\nv_cndmask_b32 v14, v14, v4, s[56:57]")
        def mkh(sb, wk):
            a(f"buffer_load_dwordx4 v[{sb}:{sb+3}], v4, s[4:7], s{wk[0]} offen sc1")
            a(f"buffer_load_dwordx4 v[{sb+4}:{sb+7}], v14, s[4:7], s{wk[1]} offen sc1")
        a("s_mov_b32 s43, 0")
        ppoll(mkh, 2, 8, [50, 49], 16, 40, hk, hgap, 10, 10, lanemask="s[52:53]")
        a("s_mov_b64 exec, s[56:57]")
    else:
        poll(hl, [50, 49], list(range(16, 24)), 10, 10, lanemask="s[52:53]", delay=dh, slp=4)
    a("v_pk_add_f32 v[16:17], v[16:17], v[20:21]\nv_pk_add_f32 v[18:19], v[18:19], v[22:23]")
    a("s_mov_b64 exec, -1")
    stamp(7)
    swapred("v_add_f32", 32, [16, 17, 18, 19], 20)
    a("v_cvt_pk_bf16_f32 v20, v16, v17\nv_cvt_pk_bf16_f32 v21, v18, v19")
    a("v_mov_b32 v30, v20\nv_mov_b32 v31, v21")
    a("v_permlane16_swap_b32 v20, v30\nv_permlane16_swap_b32 v21, v31")
    unpack(16, 20); unpack(18, 21)
    k0 = 0.7978845608028654; k1 = 0.044715
    a(f"s_mov_b32 s40, {f32(-2*LOG2E*k0*k1)}\nv_mov_b32 v28, {f32(-2*LOG2E*k0)}")
    for r in range(4): a(f"v_mul_f32 v{20+r}, v{16+r}, v{16+r}")
    for r in range(4): a(f"v_fma_f32 v{20+r}, v{20+r}, s40, v28")
    for r in range(4): a(f"v_mul_f32 v{20+r}, v{20+r}, v{16+r}")
    for r in range(4): a(f"v_exp_f32 v{20+r}, v{20+r}")
    unpack(32, 30); unpack(34, 31)
    for r in range(4): a(f"v_add_f32 v{20+r}, 1.0, v{20+r}")
    for r in range(4): a(f"v_rcp_f32 v{20+r}, v{20+r}")
    a("v_mov_b32 v9, 2")
    for r in range(4): a(f"v_mul_f32 v{20+r}, v{20+r}, v{16+r}")
    a("v_cvt_pk_bf16_f32 v24, v20, v21\nv_cvt_pk_bf16_f32 v25, v22, v23")
    unpack(20, 24); unpack(22, 25)
    for r in range(4): a(f"v_mul_f32 v{20+r}, v{20+r}, v{32+r}")
    a("v_cvt_pk_bf16_f32 v24, v20, v21\nv_cvt_pk_bf16_f32 v25, v22, v23")
    a("s_mov_b64 exec, 0x3fff")
    a("ds_write_b32 v2, v24\nds_write_b32 v3, v25")
    signal(C_OV)
    stamp(8)
    a("s_branch L_fin")

    a.label("L_RED")
    a("s_load_dwordx2 s[24:25], s[0:1], 72\ns_mov_b32 s26, 2048\ns_mov_b32 s27, 0x20000")
    if redf: a("s_lshl_b32 s60, s60, 1\ns_add_u32 s60, s60, s3\ns_sub_u32 s60, s60, 258")
    a("s_lshl_b32 s52, s60, 3")
    a("v_lshrrev_b32 v3, 5, v1\nv_bfe_u32 v5, v1, 4, 1\nv_lshl_or_b32 v3, v5, 1, v3\nv_lshlrev_b32 v3, 1, v3")
    a("v_mov_b32 v24, 0\nbuffer_load_short_d16_hi v24, v3, s[8:11], s52 offen")
    a("v_mov_b32 v26, s38\nv_mov_b32 v27, s39")
    a(f"s_lshl_b32 s50, s60, 4\ns_add_u32 s50, s50, {M3}\ns_add_u32 s51, s50, 0x40000\nv_lshlrev_b32 v2, 12, v1")
    a("s_waitcnt lgkmcnt(0)")
    a("s_barrier")
    stamp(9)
    if rk == 1:
        poll([(16, 2, 0, 0), (20, 2, 1, 0)], [50, 51], list(range(16, 24)), 10, 10, delay=dr, slp=rsleep, dual=False)
    else:
        for i in range(4): a(f"s_and_b32 s{34+i}, s{30+i}, 0x3ff")
        def rissue(k):
            a(f"buffer_load_dwordx4 v[{32+8*k}:{35+8*k}], v2, s[4:7], s50 offen sc1")
            a(f"buffer_load_dwordx4 v[{36+8*k}:{39+8*k}], v2, s[4:7], s51 offen sc1")
        backoff(dr)
        stamp(14)
        for k in range(rk):
            if k: backoff(rgap)
            rissue(k)
        a("s_mov_b32 s44, 0")
        a.label("L_rp")
        for k in range(rk):
            a(f"s_waitcnt vmcnt({2*(rk-1)})")
            for i in range(8): a(f"v_xor_b32 v{16+i}, s{34 + i % 4}, v{32+8*k+i}")
            a("v_or3_b32 v10, v16, v17, v18\nv_or3_b32 v10, v10, v19, v20\nv_or3_b32 v10, v10, v21, v22\nv_or_b32 v10, v10, v23\nv_and_b32 v10, 0x3ff, v10")
            a("v_cmp_ne_u32 vcc, 0, v10\ns_and_b64 exec, vcc, exec\ns_cbranch_scc0 L_rp_ok")
            rissue(k)
        a(f"s_add_u32 s44, s44, 1\ns_cmp_lt_u32 s44, {SPIN_MAX}\ns_cbranch_scc1 L_rp")
        a.label("L_rp_ok")
        a("s_mov_b64 exec, -1")
    stamp(10)
    a("v_pk_add_f32 v[16:17], v[16:17], v[20:21]\nv_pk_add_f32 v[18:19], v[18:19], v[22:23]")
    tred4(16)
    for k in (8, 4, 2, 1): a(f"v_add_f32_dpp v16, v16, v16 row_ror:{k} row_mask:0xf bank_mask:0xf")
    a("v_add_f32 v16, v16, v24\nv_cvt_pk_bf16_f32 v16, v16, v16")
    a("s_mov_b32 exec_lo, 0x10001\ns_mov_b32 exec_hi, 0x10001")
    a("buffer_store_short v16, v3, s[24:27], s52 offen")
    a("s_mov_b64 exec, 1")
    a("s_cmp_lg_u32 s60, 0\ns_cbranch_scc1 L_fin")
    a("buffer_store_dwordx2 v[26:27], off, s[4:7], 0 sc0 sc1")
    a("s_branch L_fin")

    a.label("L_fin")
    stamp(11)
    stamp_out()
    a.label("L_end")
    a("s_endpgm")
    a.raw('.section .rodata,"a"'); a.raw(".p2align 6"); a.raw(f".amdhsa_kernel {NAME}_kernel")
    nv = 128 if v128 else 192
    a.raw(f"  .amdhsa_next_free_vgpr {nv}"); a.raw(f"  .amdhsa_next_free_sgpr {100 if stamps else 64}"); a.raw(f"  .amdhsa_accum_offset {nv}")
    a.raw("  .amdhsa_group_segment_fixed_size 0"); a.raw("  .amdhsa_kernarg_size 96"); a.raw("  .amdhsa_user_sgpr_count 2")
    a.raw("  .amdhsa_user_sgpr_kernarg_segment_ptr 1"); a.raw("  .amdhsa_system_sgpr_workgroup_id_x 1"); a.raw(".end_amdhsa_kernel")
    return a.text()

if __name__ == "__main__":
    for spec in sys.argv[1:]:
        nm, _, kv = spec.partition(":")
        kw = {}
        for p in kv.split(","):
            if p:
                k, v = p.split("="); kw[k] = int(v)
        open(nm + ".s", "w").write(gen(**kw))
        open(nm + "_st.s", "w").write(gen(stamps=True, **kw))
```

```python
import sys, struct
from asmlib import Asm
NAME = "parallel_sum__sliding_block_cached__glu_gated_geglu__decode"
def f32(x): return "0x%08x" % struct.unpack("<I", struct.pack("<f", x))[0]

MQ = 0x10000; MML = 0x20000; MH = 0x30000; MO = 0x40000; GD = 0xC0000; MQ2 = 0x24000; MH2 = 0x28000; M3 = 0x180000
STAMP = 128 << 20
L_K = 0; L_V = 32768; B = 65536
XN = 0; GP = 1024; QBI = 3072; SCX = 5120; OV = 7168; CO = 7296
LDS_BYTES = B + 7360
C_G, C_K, C_V, C_QB, C_REC, C_SC, C_OV, C_TQ, C_TO = 0, 4, 8, 12, 16, 32, 36, 40, 44
LOG2E = 1.4426950408889634
SPIN_MAX = 200000

def gen(nt=True, stamps=False, wa=6, wf=6, sleep=2, dq=0, do=0, dh=0, dr=12, rsleep=1, local=1, gper=4, cst=10, wkv=None, ww=None, rot=1, tq=6, to=4, th=1, thm=8, wm=8, xm=1, tcq=4, tco=4, redf=0, wwf=None, nog=0, pl1=0, w0=None, n0=8, w0f=None, n0f=8, wn=2, rk=1, rgap=5, hk=3, hgap=10, ok=2, ogap=14, bare=0, bump=0, fw=5, na=12, cstm=10, pr=0, ack=0, v128=0):
    a = Asm()
    NT = " nt" if nt else ""
    hdr = open("cdna_kernels/" + NAME + ".s.ref").read().split("\n")
    for l in hdr:
        if l.startswith("; @launch"): break
        a.raw(l)
    a.raw(f"; @launch grid=(256,1,1) block=(512,1,1) lds={LDS_BYTES}")
    a.raw('.amdgcn_target "amdgcn-amd-amdhsa--gfx950"')
    a.raw(".text"); a.raw(f".globl {NAME}_kernel"); a.raw(".p2align 8"); a.raw(f".type {NAME}_kernel,@function"); a.raw(f"{NAME}_kernel:")
    NST = 15
    uid = [0]
    def stamp(i):
        if stamps: a(f"s_memrealtime s[{64+2*i}:{65+2*i}]")
    def stamp_out():
        if not stamps: return
        a("s_mov_b64 exec, -1")
        a("s_waitcnt lgkmcnt(0)")
        for i in range(2 * NST): a(f"v_writelane_b32 v3, s{64+i}, {i}")
        a(f"s_lshl_b32 s40, s2, 3\ns_add_u32 s40, s40, s3\ns_mul_i32 s40, s40, {NST*8}\ns_add_u32 s40, s40, {STAMP}")
        a(f"v_lshlrev_b32 v4, 2, v1\nv_cmp_gt_u32 vcc, {2*NST}, v1\ns_and_saveexec_b64 s[42:43], vcc")
        a("buffer_store_dword v3, v4, s[4:7], s40 offen")
    def swapred(op, kind, regs, tmp):
        for i, r in enumerate(regs): a(f"v_mov_b32 v{tmp+i}, v{r}")
        for i, r in enumerate(regs): a(f"v_permlane{kind}_swap_b32 v{r}, v{tmp+i}")
        for i, r in enumerate(regs): a(f"{op} v{r}, v{r}, v{tmp+i}")
    def allreduce(op, v, t, lo=(8, 4, 2, 1)):
        for k in lo: a(f"{op}_dpp v{v}, v{v}, v{v} row_ror:{k} row_mask:0xf bank_mask:0xf")
        swapred(op, 16, [v], t); swapred(op, 32, [v], t)
    def tred4(r):
        a(f"v_permlane32_swap_b32 v{r}, v{r+1}\nv_permlane32_swap_b32 v{r+2}, v{r+3}")
        a(f"v_add_f32 v{r}, v{r}, v{r+1}\nv_add_f32 v{r+2}, v{r+2}, v{r+3}")
        a(f"v_permlane16_swap_b32 v{r}, v{r+2}")
        a(f"v_add_f32 v{r}, v{r}, v{r+2}")
    def unpack(dst, src):
        a(f"v_lshlrev_b32 v{dst}, 16, v{src}\nv_and_b32 v{dst+1}, 0xffff0000, v{src}")
    def mk_tags():
        a("s_and_b32 s30, s38, 0xfff\ns_bfe_u32 s31, s38, 0xc000c\ns_and_b32 s32, s39, 0xfff\ns_bfe_u32 s33, s39, 0xc000c")
    def tag_regs(regs, vmask, bits, rn=True):
        if rn:
            for r in regs: a(f"v_add_u32 v{r}, {1 << (bits-1)}, v{r}")
        for i, r in enumerate(regs): a(f"v_bfi_b32 v{r}, v{vmask}, s{30 + i % 4}, v{r}")
    def backoff(n):
        while n > 0:
            k = min(n, 127); a(f"s_sleep {k}"); n -= k
    def publish(vd, voff, soff, gonly=False):
        if gonly:
            a(f"buffer_store_dwordx4 v[{vd}:{vd+3}], v{voff}, s[4:7], s{soff} offen sc1"); return
        if local:
            a(f"buffer_store_dwordx4 v[{vd}:{vd+3}], v{voff}, s[4:7], s{soff} offen")
        if nog: return
        a(f"s_add_u32 s45, s{soff}, {GD}")
        a(f"buffer_store_dwordx4 v[{vd}:{vd+3}], v{voff}, s[4:7], s45 offen sc1")
    def poll(loads, bases, regs, bits, t, lanemask=None, pre=None, delay=0, slot=13, slp=None, dual=True, wk0=46, first_wait=0, parts=None):
        uid[0] += 1
        L = f"L_poll{uid[0]}"
        slp = sleep if slp is None else slp
        m = (1 << bits) - 1
        for i in range(4): a(f"s_and_b32 s{34+i}, s{30+i}, {m}")
        def issue(first=False):
            for ld in loads:
                if isinstance(ld, str): a(ld); continue
                vd, vo, bi, imm = ld
                a(f"buffer_load_dwordx4 v[{vd}:{vd+3}], v{vo}, s[4:7], {bi if isinstance(bi, str) else 's%d' % wk[bi]} offen offset:{imm} sc1")
        if dual:
            wk = [wk0 + i for i in range(len(bases))]
            for i, b in enumerate(bases):
                a(f"s_mov_b32 s{wk[i]}, s{b}" if local else f"s_add_u32 s{wk[i]}, s{b}, {GD}")
        else: wk = bases
        if parts == "issue":
            if slot == 13: stamp(14)
            issue(True); uid[0] -= 1
            return
        backoff(delay)
        if slot == 13 and parts is None: stamp(14)
        if lanemask is not None: a(f"s_mov_b64 exec, {lanemask}")
        if parts == "check":
            a("s_mov_b32 s44, 0")
            a(f"s_branch {L}_w")
        elif pre is not None:
            issue(True); pre()
            a("s_mov_b32 s44, 0")
            if first_wait:
                a(f"s_waitcnt vmcnt({first_wait})")
                a(f"s_branch {L}_c")
            else:
                a(f"s_branch {L}_w")
        else:
            a("s_mov_b32 s44, 0")
        a.label(L)
        issue()
        a.label(L + "_w")
        a("s_waitcnt vmcnt(0)")
        a.label(L + "_c")
        for i, r in enumerate(regs): a(f"v_xor_b32 v{r}, s{34 + i % 4}, v{r}")
        a(f"v_or3_b32 v{t}, v{regs[0]}, v{regs[1]}, v{regs[2]}")
        rest = regs[3:]
        while len(rest) >= 2:
            a(f"v_or3_b32 v{t}, v{t}, v{rest[0]}, v{rest[1]}"); rest = rest[2:]
        if rest: a(f"v_or_b32 v{t}, v{t}, v{rest[0]}")
        a(f"v_and_b32 v{t}, {m}, v{t}")
        a(f"v_cmp_ne_u32 vcc, 0, v{t}")
        a("s_and_b64 exec, vcc, exec")
        a(f"s_cbranch_scc0 {L}_ok")
        if slp: a(f"s_sleep {slp}")
        a("s_add_u32 s44, s44, 1")
        if dual and local:
            a(f"s_and_b32 s45, s44, {gper-1}\ns_cmp_eq_u32 s45, {gper-1}\ns_cselect_b32 s45, {GD}, 0")
            for i, b in enumerate(bases): a(f"s_add_u32 s{wk[i]}, s{b}, s45")
        a(f"s_cmp_lt_u32 s44, {SPIN_MAX}\ns_cbranch_scc1 {L}")
        a.label(L + "_ok")
        a("s_mov_b64 exec, -1")
        if stamps: a(f"s_mul_i32 s{64+2*slot}, s44, 100\ns_add_u32 s{64+2*slot}, s{64+2*slot}, s64\ns_addc_u32 s{65+2*slot}, s65, 0")
    def ppoll(mk, nld, nreg, bases, R, S, k, gap, bits, t, lanemask=None):
        uid[0] += 1
        L = f"L_pp{uid[0]}"
        m = (1 << bits) - 1
        for i in range(4): a(f"s_and_b32 s{34+i}, s{30+i}, {m}")
        wk = [46 + i for i in range(len(bases))]
        for i, b in enumerate(bases): a(f"s_mov_b32 s{wk[i]}, s{b}")
        if lanemask is not None: a(f"s_mov_b64 exec, {lanemask}")
        stamp(14)
        a("s_waitcnt vmcnt(0)") if False else None
        for j in range(k):
            if j: backoff(gap)
            mk(S + j * nreg, wk)
        a("s_mov_b32 s44, 0")
        a.label(L)
        regs = list(range(R, R + nreg))
        for j in range(k):
            a(f"s_waitcnt vmcnt({nld*(k-1)})")
            for i in range(nreg): a(f"v_xor_b32 v{R+i}, s{34 + i % 4}, v{S + j*nreg + i}")
            a(f"v_or3_b32 v{t}, v{regs[0]}, v{regs[1]}, v{regs[2]}")
            rest = regs[3:]
            while len(rest) >= 2:
                a(f"v_or3_b32 v{t}, v{t}, v{rest[0]}, v{rest[1]}"); rest = rest[2:]
            if rest: a(f"v_or_b32 v{t}, v{t}, v{rest[0]}")
            a(f"v_and_b32 v{t}, {m}, v{t}\nv_cmp_ne_u32 vcc, 0, v{t}\ns_and_b64 exec, vcc, exec\ns_cbranch_scc0 {L}_ok")
            if stamps: a("s_add_u32 s43, s43, 1")
            mk(S + j * nreg, wk)
        a("s_add_u32 s44, s44, 1")
        a(f"s_and_b32 s45, s44, 1\ns_cselect_b32 s45, {GD}, 0")
        for i, b in enumerate(bases): a(f"s_add_u32 s{wk[i]}, s{b}, s45")
        a(f"s_cmp_lt_u32 s44, {SPIN_MAX}\ns_cbranch_scc1 {L}")
        a.label(L + "_ok")
        a("s_mov_b64 exec, -1")
        if stamps: a(f"s_mul_i32 s90, s43, 100\ns_add_u32 s90, s90, s64\ns_addc_u32 s91, s65, 0")
    def lds_wait(off, val, t, slp=1, extra=None):
        uid[0] += 1
        L = f"L_lw{uid[0]}"
        a("s_mov_b32 s44, 0")
        a.label(L)
        a(f"ds_read_b32 v{t}, v8 offset:{CO + off}")
        if extra: a(extra)
        a("s_waitcnt lgkmcnt(0)")
        a(f"v_readfirstlane_b32 s45, v{t}")
        a(f"s_cmp_ge_u32 s45, {val}\ns_cbranch_scc1 {L}_ok")
        if slp: a(f"s_sleep {slp}")
        a(f"s_add_u32 s44, s44, 1\ns_cmp_lt_u32 s44, {SPIN_MAX*8}\ns_cbranch_scc1 {L}")
        a.label(L + "_ok")
    def signal(off):
        a("s_mov_b64 exec, 1")
        a(f"ds_add_u32 v8, v9 offset:{CO+off}")
        a("s_mov_b64 exec, -1")
    def get_rec(r):
        uid[0] += 1
        L = f"L_tg{uid[0]}"
        a("s_mov_b32 s44, 0")
        a.label(L)
        a(f"ds_read_b128 v[{r}:{r+3}], v8 offset:{CO+C_REC}")
        a("s_waitcnt lgkmcnt(0)")
        a(f"v_readfirstlane_b32 s45, v{r+2}\nv_readfirstlane_b32 s38, v{r}\nv_readfirstlane_b32 s39, v{r+1}")
        a(f"s_bitcmp1_b32 s45, 0\ns_cbranch_scc1 {L}_ok")
        a(f"s_sleep 1\ns_add_u32 s44, s44, 1\ns_cmp_lt_u32 s44, {SPIN_MAX*8}\ns_cbranch_scc1 {L}")
        a.label(L + "_ok")
        mk_tags()
    def f_ids():
        a("s_cmp_ge_u32 s62, 24\ns_cselect_b32 s54, 1, 0")
        a("s_lshr_b32 s55, s62, 2\ns_min_u32 s55, s55, 6")
        a("s_add_u32 s40, s54, 1\ns_lshr_b32 s56, s62, s40\ns_and_b32 s56, s56, 1")
        a("s_lshl_b32 s40, s54, 1\ns_add_u32 s40, s40, 1\ns_and_b32 s57, s62, s40")

    def common():
        if stamps:
            for i in range(1, NST): a(f"s_mov_b64 s[{64+2*i}:{65+2*i}], 0")
        a("s_mov_b32 s6, 0x10000000\ns_mov_b32 s7, 0x20000\ns_mov_b32 s10, 2048\ns_mov_b32 s11, 0x20000")
        a("s_lshl_b32 s60, s61, 5\ns_add_u32 s60, s60, s62")
        a(f"v_mov_b32 v8, {B}\nv_mov_b32 v9, 1")
    FW = fw
    NM = 64 - 4 * na
    G1 = 64; W2 = 64 if v128 else 128; SEL = 48; ACC = 56; AT = 40; XR = 16; OWN = 32
    AC2 = 52
    def mk_sel():
        a("v_and_b32 v60, 8, v7\nv_cmp_eq_u32 vcc, 0, v60")
        a("v_mov_b32 v60, 0x0c0c0302\nv_mov_b32 v61, 0x0c0c0100\nv_cndmask_b32 v60, v60, v61, vcc")
        a("v_and_b32 v61, 1, v7\nv_lshlrev_b32 v61, 4, v61\nv_alignbit_b32 v60, v60, v60, v61")
        a("v_bfe_u32 v62, v7, 1, 2\nv_mov_b32 v63, 0x0c0c0c0c")
        for d in range(4):
            a(f"v_cmp_eq_u32 vcc, {d}, v62")
            a(f"v_cndmask_b32 v{SEL+d}, v63, v60, vcc")
    def sp_perm(n):
        if n & 1: return
        at = AT + 4 * ((n >> 1) & 1)
        for d in range(4): a(f"v_perm_b32 v{at+d}, v{XR + n // 2}, v{XR + n // 2}, v{SEL+d}")
    def sp_mfma(breg, n, first):
        at = AT + 4 * ((n >> 1) & 1)
        ac = AC2 if n & 1 else ACC
        c = "0" if (n < 2 or first) else f"v[{ac}:{ac+3}]"
        a(f"v_mfma_f32_16x16x32_bf16 v[{ac}:{ac+3}], v[{at}:{at+3}], v[{breg}:{breg+3}], {c}")
    def sp_merge():
        a(f"v_permlane32_swap_b32 v{AC2}, v{AC2+1}\nv_permlane32_swap_b32 v{AC2+2}, v{AC2+3}")
        a(f"v_add_f32 v{ACC}, v{ACC}, v{AC2+1}\nv_add_f32 v{ACC+2}, v{ACC+2}, v{AC2+3}")
        a(f"v_permlane32_swap_b32 v{AC2+1}, v{AC2}\nv_permlane32_swap_b32 v{AC2+3}, v{AC2+2}")
        a(f"v_add_f32 v{ACC+1}, v{ACC+1}, v{AC2}\nv_add_f32 v{ACC+3}, v{ACC+3}, v{AC2+2}")
    def stream(kind, win):
        NG = {"A": na, "F": 32, "M": NM + 16}[kind]
        stride = 8192 if kind == "A" else 7168
        ops = [("G", n) for n in range(NG)]
        ops.insert(FW, ("X", 0))
        if kind == "A": ops += [("K", n) for n in range(8)] + [("V", n) for n in range(8)]
        ops += [("W", n) for n in range(16 if kind == "A" else 14)]
        def issue(op):
            k, n = op
            if k == "G":
                r = G1 + 4 * (n % 16)
                if kind == "M" and n >= NM:
                    if n > NM: a("s_add_u32 s50, s50, 7168")
                    a(f"buffer_load_dwordx4 v[{r}:{r+3}], v10, s[20:23], s50 offen{NT}")
                else:
                    a("s_add_u32 s51, s51, s47")
                    a(f"buffer_load_dwordx4 v[{r}:{r+3}], v2, s[12:15], s51 offen{NT}")
            elif k == "X":
                a("v_lshlrev_b32 v60, 2, v1")
                if kind == "M":
                    a("s_lshl_b32 s42, s57, 2\ns_add_u32 s42, s42, s46")
                    a(f"s_sub_u32 s41, s61, 4\ns_mul_i32 s50, s41, 7\ns_add_u32 s50, s50, 6\ns_lshl_b32 s50, s50, 8\ns_mul_i32 s40, s42, {64*7168}\ns_add_u32 s50, s50, s40")
                    a("s_lshl_b32 s42, s42, 7\ns_sub_u32 s42, s42, 128\ns_sub_u32 s42, s42, s49")
                    a("v_mov_b32 v62, s42\nv_cmp_gt_u32 vcc, 32, v1\nv_cndmask_b32 v61, v62, 0, vcc\nv_add_u32 v60, v60, v61\nv_add_u32 v60, s49, v60")
                    a(f"buffer_load_dword v{OWN}, v60, s[8:11], 0 offen")
                    a(f"v_mul_u32_u24 v10, {16*7168}, v6\nv_lshl_add_u32 v10, v7, 4, v10")
                    a("s_cmp_eq_u32 s56, 1\ns_cselect_b32 s20, s26, s24\ns_cselect_b32 s21, s27, s25\ns_mov_b32 s22, 0x700000\ns_mov_b32 s23, 0x20000")
                else:
                    a(f"buffer_load_dword v{OWN}, v60, s[8:11], s49 offen")
            elif k in "KV":
                a(f"s_add_u32 s53, s53, 1024\ns_and_b32 s53, s53, 0x1c00")
                if k == "K": a("s_bfe_u32 s40, s53, 0x2000a\ns_lshl_b32 s40, s40, 6")
                else: a("s_bfe_u32 s40, s53, 0x1000a\ns_lshl_b32 s40, s40, 7")
                a("s_or_b32 s40, s40, s53")
                a(f"v_xor_b32 v{12+(n&1)}, s40, v{10 if k == 'K' else 11}")
                a(f"s_add_u32 m0, s53, s{54 if k == 'K' else 55}")
                srd = 20 if k == "K" else 24
                a(f"buffer_load_dwordx4 v{12+(n&1)}, s[{srd}:{srd+3}], s50 offen{NT} lds")
            else:
                if n and n % 2 == 0: a("s_add_u32 s52, s52, 4096")
                a(f"buffer_load_dwordx4 v[{W2+4*n}:{W2+4*n+3}], v3, s[16:19], s52 offen offset:{2048*(n&1)}{NT}")
        def setup_rest():
            common()
            if kind == "A":
                a("s_load_dwordx2 s[16:17], s[0:1], 32\ns_load_dwordx2 s[20:21], s[0:1], 8\ns_load_dwordx2 s[24:25], s[0:1], 16")
                a("s_mov_b32 s18, 0x800000\ns_mov_b32 s22, 0x2000000\ns_mov_b32 s23, 0x20000\ns_mov_b32 s26, 0x2000000\ns_mov_b32 s27, 0x20000")
            else:
                a("s_load_dwordx2 s[16:17], s[0:1], 64\ns_mov_b32 s18, 0x700000")
            a("s_mov_b32 s19, 0x20000")
            a("v_mov_b32 v5, 0x3ff")
            a(f"v_mul_u32_u24 v3, {(16 if kind == 'A' else 14)*2048}, v6\nv_lshl_or_b32 v3, v7, 4, v3")
            a("s_and_b32 s40, s62, 1\ns_lshl_b32 s40, s40, 10\ns_lshl_b32 s41, s46, 8\ns_add_u32 s40, s40, s41\ns_lshr_b32 s41, s60, 1")
            if kind == "A":
                a("s_lshl_b32 s52, s41, 17\ns_add_u32 s52, s52, s40")
                a("v_xor_b32 v10, v7, v6\nv_lshlrev_b32 v10, 4, v10\nv_lshl_or_b32 v10, v6, 8, v10")
                a("v_lshlrev_b32 v11, 1, v6\nv_xor_b32 v11, v7, v11\nv_lshlrev_b32 v11, 4, v11\nv_lshl_or_b32 v11, v6, 8, v11")
                a(f"s_lshl_b32 s50, s61, 23\ns_lshl_b32 s40, s62, 15\ns_add_u32 s50, s50, s40\ns_lshl_b32 s54, s46, 13\ns_add_u32 s50, s50, s54\ns_add_u32 s50, s50, {28672*256}\ns_add_u32 s55, s54, {L_V}")
                a("s_lshl_b32 s53, s62, 10" if rot else "s_mov_b32 s53, 0x1c00")
            else:
                a(f"s_sub_u32 s41, s41, 64\ns_mul_i32 s52, s41, {56*2048}\ns_add_u32 s52, s52, s40")
            mk_sel()
            a("s_waitcnt lgkmcnt(0)")
        def get_x():
            get_rec(60)
            a("v_and_b32 v62, 0xffff0000, v62")
            unpack(34, OWN)
            a("v_sub_f32 v34, v34, v62\nv_sub_f32 v35, v35, v62\nv_cvt_pk_bf16_f32 v36, v34, v35")
            unpack(34, 36)
            a("v_mul_f32 v34, v34, v63\nv_mul_f32 v35, v35, v63\nv_cvt_pk_bf16_f32 v36, v34, v35")
            a(f"s_lshl_b32 s40, s46, 8\ns_add_u32 s40, s40, {B+XN}\nv_lshl_add_u32 v37, v1, 2, s40\nds_write_b32 v37, v36")
            if kind == "A":
                a(f"v_mul_u32_u24 v37, {2*na}, v6\nv_add_u32 v37, s40, v37")
                if na == 12:
                    for i in range(3): a(f"ds_read_b64 v[{XR+2*i}:{XR+2*i+1}], v37 offset:{8*i}")
                else:
                    for i in range(0, na // 2 - 1, 2): a(f"ds_read2_b32 v[{XR+i}:{XR+i+1}], v37 offset0:{i} offset1:{i+1}")
                    if (na // 2) % 2: a(f"ds_read_b32 v{XR+na//2-1}, v37 offset:{4*(na//2-1)}")
            elif kind == "F":
                a("v_lshl_add_u32 v37, v6, 6, s40")
                for i in range(4): a(f"ds_read_b128 v[{XR+4*i}:{XR+4*i+3}], v37 offset:{16*i}")
            else:
                a(f"v_lshl_add_u32 v37, v6, 5, s40\nv_lshl_add_u32 v38, v6, {5 if NM == 16 else 4}, s40")
                for i in range(NM // 8): a(f"ds_read_b128 v[{XR+4*i}:{XR+4*i+3}], v38 offset:{16*i}")
                for i in range(2): a(f"ds_read_b128 v[{XR+NM//2+4*i}:{XR+NM//2+4*i+3}], v37 offset:{16*i + 128}")
            a(f"s_lshl_b32 s40, s46, 9\ns_add_u32 s40, s40, {B+GP}\nv_lshl_add_u32 v33, v7, 1, v6\nv_lshl_add_u32 v33, v33, 4, s40")
            a("s_waitcnt lgkmcnt(0)")
            stamp(2)
        def consume(n):
            if n == 0: get_x()
            sp_perm(n); sp_mfma(G1 + 4 * (n % 16), n, kind == "M" and n in (NM, NM + 1))
            if kind == "M" and n == NM - 1:
                sp_merge()
                a("s_mov_b32 exec_hi, 0")
                a(f"ds_write_b128 v33, v[{ACC}:{ACC+3}] offset:{QBI-GP}")
                signal(C_K)
                stamp(3)
            if n == NG - 1:
                sp_merge()
                a("s_mov_b32 exec_hi, 0")
                a(f"ds_write_b128 v33, v[{ACC}:{ACC+3}]")
                signal(C_G)
                stamp(4)
        nc = 0
        nl = -1
        gidx = {op[1]: i for i, op in enumerate(ops) if op[0] == "G"}
        first = {"A": max(win, w0 or 0), "F": win, "M": wm}[kind]
        for i, op in enumerate(ops):
            if i < FW: continue
            w = win
            if kind == "A" and w0 and i < n0 + w0: w = max(win, min(w0, n0 + w0 - i + win))
            if kind == "F" and w0f and i < n0f: w = w0f
            if kind == "M" and i < NM + 1: w = wm
            if op[0] in "KV" and wkv: w = wkv
            if op[0] == "W" and ww and kind == "A": w = ww
            if op[0] == "W" and wwf and kind != "A": w = wwf
            if i - w <= FW <= i: w += 1
            newl = max(nl, i - w)
            if op[0] == "X": newl = nl
            if newl > nl:
                a(f"s_waitcnt vmcnt({i - 1 - newl})")
            evs = list(range(nl + 1, newl + 1)); nl = newl
            if op[0] == "G" and op[1] >= 16:
                while nc <= op[1] - 16: consume(nc); nc += 1
            if op[0] == "W" and v128:
                last = max([g for g in range(NG) if g % 16 == op[1]], default=-1)
                assert last < 0 or gidx[last] <= nl
                while nc <= last: consume(nc); nc += 1
            issue(op)
            if i == max(first, FW):
                setup_rest(); a("s_barrier")
            for e in evs:
                if ops[e] == ("K", 7): signal(C_K); stamp(3)
                if ops[e] == ("V", 7): signal(C_V); stamp(6)
                if kind == "A" and e == na + 1 + tq: signal(C_TQ)
                if ops[e] == ("W", to if kind == "A" else (th if kind == "F" or NM == 16 else thm)): signal(C_TO)
            k = 0
            while i >= (cst if kind != "M" else min(cst, cstm)) and nl >= FW and nc < NG and gidx[nc] <= nl and k < 3:
                consume(nc); nc += 1; k += 1
        assert nc == NG
    X, F, EV = 16, 28, 24
    stamp(0)
    a("s_load_dwordx2 s[12:13], s[0:1], 24\ns_load_dwordx4 s[24:27], s[0:1], 48\ns_load_dwordx2 s[8:9], s[0:1], 0\ns_load_dwordx2 s[4:5], s[0:1], 88")
    a("v_lshrrev_b32 v2, 6, v0\nv_and_b32 v1, 63, v0")
    a("s_cmp_ge_u32 s2, 256\ns_cbranch_scc1 L_end")
    a("v_readfirstlane_b32 s3, v2")
    a("s_and_b32 s61, s2, 7\ns_lshl_b32 s61, s61, 2\ns_lshr_b32 s61, " + ("0x32761054" if xm else "0x76543210") + ", s61\ns_and_b32 s61, s61, 7\ns_lshr_b32 s62, s2, 3")
    a("v_lshrrev_b32 v6, 4, v1\nv_and_b32 v7, 15, v1\nv_lshlrev_b32 v4, 4, v1\ns_mov_b32 s10, 2048\ns_mov_b32 s11, 0x20000")
    a("s_cmp_lt_u32 s3, 4\ns_cbranch_scc1 L_Cstub")
    if pr >= 2: a("s_setprio 1")
    a("s_sub_u32 s46, s3, 4\ns_mov_b32 s15, 0x20000")
    f_ids()
    a("s_and_b32 s45, s61, 3\ns_mul_i32 s42, s45, 7\ns_add_u32 s42, s42, s55\ns_mov_b32 s40, s57\ns_mov_b32 s41, 32\ns_mov_b32 s43, 1")
    a("s_lshl_b32 s45, s45, 3\ns_and_b32 s44, s62, 7\ns_add_u32 s44, s44, s45")
    a("s_cmp_eq_u32 s54, 1\ns_cselect_b32 s40, " + str(64 // NM - 1) + ", s40\ns_cselect_b32 s41, " + str(NM) + ", s41\ns_cselect_b32 s42, s44, s42\ns_cselect_b32 s43, 0, s43")
    a("s_lshr_b32 s44, s62, 2\ns_add_u32 s44, s44, s45\ns_and_b32 s45, s62, 3")
    a("s_cmp_lt_u32 s61, 4\ns_cselect_b32 s40, s45, s40\ns_cselect_b32 s41, " + str(na) + ", s41\ns_cselect_b32 s42, s44, s42\ns_cselect_b32 s43, 0, s43")
    a("s_cmp_eq_u32 s43, 0\ns_cselect_b32 s47, 0x2000, s10\ns_cselect_b32 s14, 0x800000, s10")
    a("s_cmp_eq_u32 s43, 1\ns_cselect_b32 s47, 0x1c00, s47\ns_cselect_b32 s14, 0x700000, s14")
    a("s_lshl_b32 s40, s40, 2\ns_add_u32 s40, s40, s46\ns_mul_i32 s40, s40, s41\ns_lshl_b32 s49, s40, 3")
    a("s_mul_i32 s51, s40, s47\ns_lshl_b32 s51, s51, 2\ns_lshl_b32 s42, s42, 8\ns_add_u32 s51, s51, s42\ns_mul_i32 s41, s41, s47")
    a("v_mul_u32_u24 v2, s41, v6\nv_lshl_add_u32 v2, v7, 4, v2")
    a("s_cmp_eq_u32 s56, 1")
    a("s_waitcnt lgkmcnt(0)")
    a("s_cselect_b32 s44, s26, s24\ns_cselect_b32 s45, s27, s25\ns_cmp_eq_u32 s43, 1\ns_cselect_b32 s12, s44, s12\ns_cselect_b32 s13, s45, s13")
    for n in range(FW):
        if n: a("s_add_u32 s51, s51, s47")
        a(f"buffer_load_dwordx4 v[{G1+4*n}:{G1+4*n+3}], v2, s[12:15], s51 offen{NT}")
    if stamps: a("s_memrealtime s[98:99]")
    a("s_cbranch_scc1 L_end") if False else None
    a("s_cmp_eq_u32 s43, 1\ns_cbranch_scc1 L_SF\ns_cmp_ge_u32 s61, 4\ns_cbranch_scc1 L_SM\ns_branch L_SA")
    a.label("L_Cstub")
    if pr == 0: a("s_setprio 3")
    a("s_cmp_lg_u32 s3, 0\ns_cbranch_scc1 L_Cn0")
    a("s_mov_b32 s6, 0x10000000\ns_mov_b32 s7, 0x20000")
    a("s_waitcnt lgkmcnt(0)")
    a(f"buffer_load_dwordx4 v[{X}:{X+3}], v4, s[8:11], 0 offen")
    a(f"buffer_load_dwordx4 v[{X+4}:{X+7}], v4, s[8:11], 0 offen offset:1024")
    a(f"buffer_load_dwordx2 v[{EV}:{EV+1}], off, s[4:7], 0 sc0 sc1")
    a("s_branch L_C0")
    def sfin(NW):
        stamp(5)
        if stamps: a("s_mov_b64 s[66:67], s[98:99]")
        a("v_lshl_add_u32 v11, v7, 1, v6\nv_lshlrev_b32 v11, 4, v11")
        a(f"s_lshl_b32 s50, s60, 11\ns_lshl_b32 s41, s46, 9\ns_add_u32 s50, s50, s41\ns_add_u32 s50, s50, {M3}")
        a(f"v_lshlrev_b32 v12, 5, v6\nv_add_u32 v12, {B+OV}, v12")
        lds_wait(C_OV, 0 if bare else 2, 13, slp=0, extra=f"ds_read_b128 v[{XR}:{XR+3}], v12\nds_read_b128 v[{XR+4}:{XR+7}], v12 offset:16")
        stamp(8)
        sp_perm(0)
        for k in range(NW):
            if NW - 1 - k < 8: a(f"s_waitcnt vmcnt({NW-1-k})")
            sp_mfma(W2 + 4*k, k, k == 0)
            if k % 2 == 0 and k + 2 < NW: sp_perm(k + 2)
        stamp(9)
        sp_merge()
        tag_regs([ACC, ACC+1, ACC+2, ACC+3], 5, 10)
        a("s_mov_b32 exec_hi, 0")
        a(f"buffer_store_dwordx4 v[{ACC}:{ACC+3}], v11, s[4:7], s50 offen sc1")
        if ack: a("s_waitcnt vmcnt(0)")
        a("s_barrier")
    a.label("L_SA")
    stream("A", wa)
    sfin(16)
    a("s_branch L_fin")
    a.label("L_SF")
    stream("F", wf)
    a("s_branch L_Sfin")
    a.label("L_SM")
    stream("M", wf)
    a.label("L_Sfin")
    sfin(14)
    a("s_branch L_fin")
    a.label("L_C0")
    common()
    a("s_barrier")
    a("s_waitcnt vmcnt(1)")
    stamp(2)
    for i in range(8): unpack(F + 2*i, X + i)
    S, T = F + 16, F + 17
    for i in range(4): a(f"v_pk_add_f32 v[{X+2*i}:{X+2*i+1}], v[{F+4*i}:{F+4*i+1}], v[{F+4*i+2}:{F+4*i+3}]")
    a(f"v_pk_add_f32 v[{X}:{X+1}], v[{X}:{X+1}], v[{X+2}:{X+3}]\nv_pk_add_f32 v[{X+4}:{X+5}], v[{X+4}:{X+5}], v[{X+6}:{X+7}]")
    a(f"v_pk_add_f32 v[{X}:{X+1}], v[{X}:{X+1}], v[{X+4}:{X+5}]\nv_add_f32 v{S}, v{X}, v{X+1}")
    allreduce("v_add_f32", S, T)
    a(f"v_mul_f32 v{S}, {f32(1/1024)}, v{S}")
    M = X + 2
    a(f"v_mov_b32 v{M}, v{S}\nv_mov_b32 v{M+1}, v{S}")
    for i in range(8): a(f"v_pk_add_f32 v[{F+2*i}:{F+2*i+1}], v[{F+2*i}:{F+2*i+1}], v[{M}:{M+1}] neg_lo:[0,1] neg_hi:[0,1]")
    a(f"v_pk_mul_f32 v[{X}:{X+1}], v[{F}:{F+1}], v[{F}:{F+1}]\nv_pk_mul_f32 v[{X+4}:{X+5}], v[{F+2}:{F+3}], v[{F+2}:{F+3}]")
    for i in range(2, 8):
        d = X if i % 2 == 0 else X + 4
        a(f"v_pk_fma_f32 v[{d}:{d+1}], v[{F+2*i}:{F+2*i+1}], v[{F+2*i}:{F+2*i+1}], v[{d}:{d+1}]")
    V = X + 6
    a(f"v_pk_add_f32 v[{X}:{X+1}], v[{X}:{X+1}], v[{X+4}:{X+5}]\nv_add_f32 v{V}, v{X}, v{X+1}")
    allreduce("v_add_f32", V, T)
    a(f"v_mul_f32 v{V}, {f32(1/1024)}, v{V}")
    a(f"v_cvt_pk_bf16_f32 v{T}, v{S}, v{V}")
    a(f"v_lshl_or_b32 v{EV+2}, v{T}, 16, 1")
    a(f"v_and_b32 v{V}, 0xffff0000, v{T}\nv_add_f32 v{V}, {f32(1e-5)}, v{V}")
    a(f"v_cvt_pk_bf16_f32 v{V}, v{V}, v{V}\nv_and_b32 v{V}, 0xffff0000, v{V}\nv_sqrt_f32 v{V}, v{V}")
    a(f"v_cvt_pk_bf16_f32 v{V}, v{V}, v{V}\nv_and_b32 v{V}, 0xffff0000, v{V}\nv_rcp_f32 v{EV+3}, v{V}")
    a("s_waitcnt vmcnt(0)")
    a(f"v_add_u32 v{EV}, 0x7f4a7c15, v{EV}\nv_add_u32 v{EV+1}, 0x9e3779b9, v{EV+1}")
    a("s_mov_b64 exec, 1")
    a(f"ds_write_b128 v8, v[{EV}:{EV+3}] offset:{CO+C_REC}")
    a("s_mov_b64 exec, -1")
    stamp(3)
    a("s_branch L_Cj")
    a.label("L_Cn0")
    common()
    a("v_mov_b32 v16, 0\nv_mov_b32 v17, 0\nv_mov_b32 v18, 0\nv_mov_b32 v19, 0")
    a(f"ds_write_b128 v8, v[16:19] offset:{CO}\nds_write_b128 v8, v[16:19] offset:{CO+16}\nds_write_b128 v8, v[16:19] offset:{CO+32}")
    a("s_waitcnt lgkmcnt(0)")
    a("s_barrier")
    a.label("L_Cj")
    if pr in (1, 2): a("s_setprio 3")
    if bare: a("s_branch L_fin")
    a("s_cmp_ge_u32 s61, 4\ns_cbranch_scc1 L_CF")

    GPRD = "\n".join(f"ds_read_b128 v[{16+4*i}:{19+4*i}], v12 offset:{512*i}" for i in range(4))
    def gemv1_reduce(voff, soff, bits, vmask, gonly=False):
        a("s_mov_b32 exec_hi, 0")
        a("v_pk_add_f32 v[16:17], v[16:17], v[20:21]\nv_pk_add_f32 v[18:19], v[18:19], v[22:23]")
        a("v_pk_add_f32 v[24:25], v[24:25], v[28:29]\nv_pk_add_f32 v[26:27], v[26:27], v[30:31]")
        a("v_pk_add_f32 v[32:33], v[16:17], v[24:25]\nv_pk_add_f32 v[34:35], v[18:19], v[26:27]")
        tag_regs([32, 33, 34, 35], vmask, bits)
        publish(32, voff, soff, gonly)
        a("s_mov_b64 exec, -1")
    KF = 64; VF = 96; QR = 36; QB = 16
    a(f"s_lshl_b32 s50, s61, 14\ns_add_u32 s50, s50, {MQ}")
    a("s_and_b32 s40, s62, 3\ns_lshl_b32 s40, s40, 10\ns_add_u32 s51, s50, s40\ns_lshr_b32 s40, s62, 2\ns_lshl_b32 s40, s40, 7\ns_add_u32 s51, s51, s40")
    a(f"s_lshl_b32 s49, s61, 12\ns_lshl_b32 s40, s3, 10\ns_add_u32 s49, s49, s40\ns_add_u32 s49, s49, {MQ2}")
    a("s_lshl_b32 s40, s3, 12\ns_add_u32 s50, s50, s40")
    a("v_lshrrev_b32 v11, 3, v1\nv_lshlrev_b32 v11, 12, v11\nv_and_b32 v10, 7, v1\nv_lshl_or_b32 v11, v10, 4, v11\nv_mov_b32 v13, 0xff")
    get_rec(16)
    a("s_cmp_lg_u32 s3, 1\ns_cbranch_scc1 L_Aq")
    a(f"v_and_b32 v12, 0x1f0, v4\nv_add_u32 v12, {B+GP}, v12")
    lds_wait(C_G, 4, 10, extra=GPRD)
    gemv1_reduce(11, 51, 8, 13)
    stamp(9)
    a.label("L_Aq")
    if True:
        a("v_bfe_u32 v2, v1, 1, 2\nv_lshlrev_b32 v2, 7, v2\nv_lshrrev_b32 v3, 3, v1\nv_lshl_or_b32 v2, v3, 4, v2\nv_and_b32 v3, 1, v1\nv_lshl_or_b32 v2, v3, 3, v2")
        a(f"s_lshl_b32 s40, s3, 9\ns_add_u32 s40, s40, {B}\nv_add_u32 v2, s40, v2")
        a("v_and_b32 v10, 7, v7\nv_lshlrev_b32 v12, 7, v6\nv_lshl_or_b32 v12, v10, 4, v12")
        a("v_lshrrev_b32 v5, 3, v7")
        a("v_lshl_add_u32 v3, v5, 3, v12\nv_add_u32 v3, s40, v3")
        a(f"v_add_u32 v12, {B}, v12\nv_lshl_add_u32 v0, v5, 10, v12")
        a("v_lshlrev_b32 v11, 14, v10\nv_lshl_or_b32 v11, v5, 6, v11\nv_lshl_or_b32 v11, v6, 4, v11")
        a(f"s_lshl_b32 s53, s61, 17\ns_lshl_b32 s40, s3, 12\ns_add_u32 s53, s53, s40\ns_and_b32 s40, s62, 3\ns_lshl_b32 s40, s40, 10\ns_add_u32 s53, s53, s40\ns_lshr_b32 s40, s62, 2\ns_lshl_b32 s40, s40, 7\ns_add_u32 s53, s53, s40\ns_add_u32 s53, s53, {MO}")
        a(f"s_lshl_b32 s52, s61, 12\ns_lshl_b32 s40, s62, 4\ns_add_u32 s52, s52, s40\ns_add_u32 s52, s52, {MML}")
        a("v_mov_b32 v13, 0xfff\nv_cmp_gt_u32 s[54:55], 8, v7")
        a("v_lshrrev_b32 v14, 2, v1\nv_lshlrev_b32 v14, 8, v14\nv_bfe_u32 v15, v1, 1, 4\nv_lshl_or_b32 v14, v15, 4, v14\nv_and_b32 v15, 1, v1\nv_lshl_or_b32 v14, v15, 3, v14")
        a("s_lshl_b32 s40, s3, 6\nv_xor_b32 v14, s40, v14\nv_xor_b32 v15, 32, v14")
        a("v_xor_b32 v56, v6, v7\nv_lshlrev_b32 v56, 4, v56\nv_lshl_or_b32 v56, v7, 8, v56\ns_lshl_b32 s40, s3, 13\nv_add_u32 v56, s40, v56")
        for s in range(1, 4): a(f"v_xor_b32 v{56+s}, {64*s}, v56")
        a(f"s_mov_b32 s40, {f32(128**-0.5)}\ns_mov_b32 s41, {f32(LOG2E)}")
    def pre_k():
        lds_wait(C_K, 4, 10)
        stamp(4)
        for T in range(2):
            for s in range(4):
                r = KF + 16*T + 4*s
                a(f"ds_read_b128 v[{r}:{r+3}], v{56+s} offset:{L_K + 4096*T}")
    lds_wait(C_TQ, tcq, 10)
    poll([(QR + 16, 4, "s49", 0)] + [(QR + 4*p, 4, 0, 1024*p) for p in range(4)], [50], list(range(QR, QR+20)), 8, 10, pre=pre_k, delay=dq, slot=12)
    stamp(5)
    a(f"v_pk_add_f32 v[{QR+12}:{QR+13}], v[{QR+12}:{QR+13}], v[{QR+16}:{QR+17}]\nv_pk_add_f32 v[{QR+14}:{QR+15}], v[{QR+14}:{QR+15}], v[{QR+18}:{QR+19}]")
    a(f"v_pk_add_f32 v[{QR}:{QR+1}], v[{QR}:{QR+1}], v[{QR+4}:{QR+5}]\nv_pk_add_f32 v[{QR+2}:{QR+3}], v[{QR+2}:{QR+3}], v[{QR+6}:{QR+7}]")
    a(f"v_pk_add_f32 v[{QR+8}:{QR+9}], v[{QR+8}:{QR+9}], v[{QR+12}:{QR+13}]\nv_pk_add_f32 v[{QR+10}:{QR+11}], v[{QR+10}:{QR+11}], v[{QR+14}:{QR+15}]")
    a(f"v_pk_add_f32 v[{QR}:{QR+1}], v[{QR}:{QR+1}], v[{QR+8}:{QR+9}]\nv_pk_add_f32 v[{QR+2}:{QR+3}], v[{QR+2}:{QR+3}], v[{QR+10}:{QR+11}]")
    a(f"v_cvt_pk_bf16_f32 v16, v{QR}, v{QR+1}\nv_cvt_pk_bf16_f32 v17, v{QR+2}, v{QR+3}")
    a(f"ds_write_b64 v2, v[16:17] offset:{QBI}")
    signal(C_QB)
    lds_wait(C_QB, 4, 10, slp=0, extra="\n".join(f"ds_read_b128 v[{QB+4*s}:{QB+4*s+3}], v12 offset:{QBI + 512*s}" for s in range(4)))
    SC = 32
    for s in range(4):
        for T in range(2):
            c = "0" if s == 0 else f"v[{SC+4*T}:{SC+4*T+3}]"
            a(f"v_mfma_f32_16x16x32_bf16 v[{SC+4*T}:{SC+4*T+3}], v[{KF+16*T+4*s}:{KF+16*T+4*s+3}], v[{QB+4*s}:{QB+4*s+3}], {c}")
    for i in range(4): a(f"v_cndmask_b32 v{40+i}, v{SC+4+i}, v{SC+i}, s[54:55]")
    a("v_cvt_pk_bf16_f32 v44, v40, v41\nv_cvt_pk_bf16_f32 v45, v42, v43")
    unpack(40, 44); unpack(42, 45)
    for i in range(4): a(f"v_mul_f32 v{40+i}, s40, v{40+i}")
    a("v_cvt_pk_bf16_f32 v44, v40, v41\nv_cvt_pk_bf16_f32 v45, v42, v43")
    a(f"ds_write_b64 v3, v[44:45] offset:{SCX}")
    signal(C_SC)
    lds_wait(C_SC, 4, 10, slp=0, extra=f"ds_read_b128 v[16:19], v0 offset:{SCX}\nds_read_b128 v[20:23], v0 offset:{SCX+512}")
    P = 32
    for i in range(8): unpack(P + 2*i, 16 + i)
    ML = 60
    a(f"v_max3_f32 v{ML}, v{P}, v{P+1}, v{P+2}\nv_max3_f32 v24, v{P+3}, v{P+4}, v{P+5}\nv_max3_f32 v25, v{P+6}, v{P+7}, v{P+8}\nv_max3_f32 v26, v{P+9}, v{P+10}, v{P+11}")
    a(f"v_max3_f32 v{ML}, v{ML}, v{P+12}, v{P+13}\nv_max3_f32 v24, v24, v{P+14}, v{P+15}\nv_max3_f32 v{ML}, v{ML}, v25, v26\nv_max_f32 v{ML}, v{ML}, v24")
    allreduce("v_max_f32", ML, 24, lo=(8,))
    a(f"v_mul_f32 v24, s41, v{ML}")
    for i in range(16): a(f"v_fma_f32 v{P+i}, v{P+i}, s41, -v24")
    for i in range(16): a(f"v_exp_f32 v{P+i}, v{P+i}")
    PA = 16; PB = 24
    for i in range(8): a(f"v_cvt_pk_bf16_f32 v{PA+i}, v{P+2*i}, v{P+2*i+1}")
    for i in range(8): a(f"v_mov_b32 v{PB+i}, v{PA+i}")
    for i in range(8): a(f"v_mov_b32_dpp v{PB+i}, v{PA+i} row_ror:8 row_mask:0xf bank_mask:0x3")
    for i in range(8): a(f"v_mov_b32_dpp v{PA+i}, v{PA+i} row_ror:8 row_mask:0xf bank_mask:0xc")
    a("s_cmp_lg_u32 s3, 3\ns_cbranch_scc1 L_Apv")
    for i in range(4): a(f"v_pk_add_f32 v[{P+4*i}:{P+4*i+1}], v[{P+4*i}:{P+4*i+1}], v[{P+4*i+2}:{P+4*i+3}]")
    a(f"v_pk_add_f32 v[{P}:{P+1}], v[{P}:{P+1}], v[{P+4}:{P+5}]\nv_pk_add_f32 v[{P+8}:{P+9}], v[{P+8}:{P+9}], v[{P+12}:{P+13}]")
    a(f"v_pk_add_f32 v[{P}:{P+1}], v[{P}:{P+1}], v[{P+8}:{P+9}]\nv_add_f32 v{ML+1}, v{P}, v{P+1}")
    allreduce("v_add_f32", ML+1, 48, lo=(8,))
    a(f"v_mov_b32 v{ML+2}, v{ML}\nv_mov_b32 v{ML+3}, v{ML+1}")
    tag_regs([ML, ML+1, ML+2, ML+3], 13, 12, rn=False)
    a("s_mov_b64 exec, 0xff")
    a("v_lshlrev_b32 v48, 9, v1")
    publish(ML, 48, 52)
    a("s_mov_b64 exec, -1")
    a.label("L_Apv")
    stamp(1)
    lds_wait(C_V, 4, 10, slp=0)
    stamp(10)
    OA = 64
    for u in range(4):
        for dt in range(2):
            for e in range(2):
                r = VF + 8*u + 4*dt + 2*e
                a(f"ds_read_b64_tr_b16 v[{r}:{r+1}], v{14+dt} offset:{L_V + 4096*(2*u+e)}")
        if u == 2: a("s_waitcnt lgkmcnt(8)")
        if u >= 2:
            pass
    for u in range(4):
        a(f"s_waitcnt lgkmcnt({12-4*u})")
        for dt in range(2):
            c = "0" if u == 0 else f"v[{OA+4*dt}:{OA+4*dt+3}]"
            a(f"v_mfma_f32_16x16x32_bf16 v[{OA+4*dt}:{OA+4*dt+3}], v[{VF+8*u+4*dt}:{VF+8*u+4*dt+3}], v[{PA+4*u}:{PA+4*u+3}], {c}")
    for r in range(4): a(f"v_cndmask_b32 v{OA+r}, v{OA+4+r}, v{OA+r}, s[54:55]")
    tag_regs([OA+r for r in range(4)], 13, 12, rn=False)
    publish(OA, 11, 53)
    stamp(6)
    if redf: a("s_cmp_ge_u32 s3, 2\ns_cbranch_scc1 L_fin")
    else: a("s_cmp_eq_u32 s3, 2\ns_cbranch_scc1 L_RED\ns_cmp_eq_u32 s3, 3\ns_cbranch_scc1 L_fin")
    a(f"s_lshr_b32 s50, s60, 1\ns_lshl_b32 s50, s50, 13\ns_lshl_b32 s40, s3, 12\ns_add_u32 s50, s50, s40\ns_add_u32 s50, s50, {MO}")
    a(f"s_lshl_b32 s51, s61, 12\ns_lshr_b32 s40, s62, 2\ns_lshl_b32 s40, s40, 9\ns_add_u32 s51, s51, s40\ns_add_u32 s51, s51, {MML}")
    a("v_lshrrev_b32 v2, 3, v1\nv_lshlrev_b32 v2, 2, v2\nv_and_b32 v3, 3, v1\nv_or_b32 v2, v2, v3\nv_lshlrev_b32 v2, 4, v2")
    a("v_and_b32 v12, 7, v1\nv_lshlrev_b32 v12, 3, v12\nv_lshrrev_b32 v3, 5, v1\nv_lshl_or_b32 v12, v3, 1, v12\nv_bfe_u32 v3, v1, 4, 1\nv_lshl_or_b32 v12, v3, 2, v12")
    a(f"s_lshl_b32 s40, s3, 6\ns_add_u32 s40, s40, {B+OV}\nv_add_u32 v12, s40, v12")
    MLR = 16; OR_ = 20
    oloads = [(OR_ + 4*i, 4, 0, 1024*i) for i in range(4)]
    lds_wait(C_TO, tco, 10)
    if ok > 1:
        def mko(sb, wk):
            a(f"buffer_load_dwordx4 v[{sb}:{sb+3}], v2, s[4:7], s{wk[1]} offen sc1")
            for i in range(4): a(f"buffer_load_dwordx4 v[{sb+4+4*i}:{sb+7+4*i}], v4, s[4:7], s{wk[0]} offen offset:{1024*i} sc1")
        a("s_mov_b32 s43, 0")
        ppoll(mko, 5, 20, [50, 51], MLR, 72, ok, ogap, 12, 10)
        stamp(7)
    else:
        def pre_o():
            poll(oloads, [50], None, 12, 10, parts="issue")
        poll([(MLR, 2, 0, 0)], [51], list(range(MLR, MLR+4)), 12, 10, pre=pre_o, first_wait=4, wk0=47, slot=12)
    allreduce("v_max_f32", MLR+2, 10, lo=(8, 2, 1))
    a(f"v_sub_f32 v{MLR}, v{MLR}, v{MLR+2}\nv_mul_f32 v{MLR}, s41, v{MLR}\nv_exp_f32 v{MLR}, v{MLR}")
    a(f"v_mul_f32 v{MLR+1}, v{MLR}, v{MLR+1}")
    allreduce("v_add_f32", MLR+1, 10, lo=(8, 2, 1))
    a(f"v_rcp_f32 v{MLR+1}, v{MLR+1}")
    a(f"v_mul_f32 v{MLR}, v{MLR}, v{MLR+1}")
    if ok == 1:
        poll(oloads, [50], list(range(OR_, OR_+16)), 12, 10, parts="check")
        stamp(7)
    for r in range(4): a(f"v_mul_f32_dpp v{40+r}, v{MLR}, v{OR_+r} quad_perm:[0,0,0,0] row_mask:0xf bank_mask:0xf")
    for i in range(1, 4):
        for r in range(4): a(f"v_fmac_f32_dpp v{40+r}, v{MLR}, v{OR_+4*i+r} quad_perm:[{i},{i},{i},{i}] row_mask:0xf bank_mask:0xf")
    tred4(40)
    a("v_add_f32_dpp v40, v40, v40 row_ror:8 row_mask:0xf bank_mask:0xf")
    a("v_cvt_pk_bf16_f32 v40, v40, v40")
    a("ds_write_b16 v12, v40")
    signal(C_OV)
    stamp(8)
    a("s_branch L_fin")

    a.label("L_CF")
    if not redf: a("s_cmp_eq_u32 s3, 3\ns_cbranch_scc1 L_fin")
    get_rec(16)
    a("s_cmp_ge_u32 s3, 2\ns_cbranch_scc1 L_RED")
    f_ids()
    a("s_cmp_eq_u32 s3, 1\ns_cbranch_scc1 L_CF1")
    a("s_cmp_eq_u32 s54, 0\ns_cbranch_scc1 L_fin")
    a("v_lshrrev_b32 v11, 3, v1\nv_lshlrev_b32 v11, 10, v11\nv_and_b32 v10, 7, v1\nv_lshl_or_b32 v11, v10, 4, v11\nv_mov_b32 v13, 0xff")
    a(f"s_sub_u32 s51, s61, 4\ns_lshl_b32 s51, s51, 12\ns_and_b32 s40, s62, 7\ns_lshl_b32 s40, s40, 7\ns_add_u32 s51, s51, s40\ns_add_u32 s51, s51, {MQ2}")
    a(f"v_and_b32 v12, 0x1f0, v4\nv_add_u32 v12, {B+QBI}, v12")
    lds_wait(C_K, 4, 10, extra=GPRD)
    gemv1_reduce(11, 51, 8, 13, gonly=True)
    stamp(6)
    a("s_branch L_fin")
    a.label("L_CF1")
    a("s_lshl_b32 s40, s55, 5\nv_add_u32 v11, s40, v1")
    a("v_mul_u32_u24 v12, 4682, v11\nv_lshrrev_b32 v12, 16, v12\nv_mul_u32_u24 v13, 14, v12\nv_sub_u32 v11, v11, v13")
    a("v_lshlrev_b32 v12, 10, v12\nv_lshl_or_b32 v11, v11, 4, v12\nv_mov_b32 v13, 0x3ff")
    a(f"s_sub_u32 s40, s61, 4\ns_lshl_b32 s50, s40, 14\ns_add_u32 s50, s50, {MH}\ns_lshl_b32 s49, s40, 12\ns_add_u32 s49, s49, {MH2 - 13*1024}")
    a("s_cmp_ge_u32 s57, 2\ns_cselect_b32 s51, s49, s50")
    a("s_and_b32 s40, s57, 1\ns_lshl_b32 s40, s40, 9\ns_add_u32 s51, s51, s40\ns_lshl_b32 s40, s56, 8\ns_add_u32 s51, s51, s40")
    a("s_lshr_b32 s41, s62, 1\ns_lshl_b32 s40, s41, 10\ns_add_u32 s50, s50, s40\ns_add_u32 s49, s49, s40")
    a("s_mov_b32 s52, 0x3fff3fff\ns_mov_b32 s53, 0x3fff3fff")
    a("v_lshlrev_b32 v2, 1, v7\nv_or_b32 v3, 1, v2")
    for r in (2, 3): a(f"v_mul_u32_u24 v5, 37, v{r}\nv_lshrrev_b32 v5, 8, v5\nv_add_lshl_u32 v{r}, v{r}, v5, 2\nv_add_u32 v{r}, {B+OV}, v{r}")
    a("s_mul_i32 s41, s41, 14\nv_add_u32 v10, s41, v7\nv_cmp_lt_u32 vcc, 191, v10\ns_mov_b64 s[56:57], vcc")
    a(f"v_and_b32 v12, 0x1f0, v4\nv_add_u32 v12, {B+GP}, v12")
    lds_wait(C_G, 4, 10, extra=GPRD)
    gemv1_reduce(11, 51, 10, 13)
    stamp(9)
    lds_wait(C_TO, tco, 10)
    hl = [(16, 4, 0, 0), "\n".join(f"v_mov_b32 v{20+i}, s{34+i}" for i in range(4)), "s_and_saveexec_b64 s[58:59], s[56:57]\ns_cbranch_execz 2", (20, 4, 1, 0), "s_mov_b64 exec, s[58:59]"]
    if hk > 1:
        a("s_sub_u32 s40, s50, s49\nv_add_u32 v14, s40, v4\nv_cndmask_b32 v14, v14, v4, s[56:57]")
        def mkh(sb, wk):
            a(f"buffer_load_dwordx4 v[{sb}:{sb+3}], v4, s[4:7], s{wk[0]} offen sc1")
            a(f"buffer_load_dwordx4 v[{sb+4}:{sb+7}], v14, s[4:7], s{wk[1]} offen sc1")
        a("s_mov_b32 s43, 0")
        ppoll(mkh, 2, 8, [50, 49], 16, 40, hk, hgap, 10, 10, lanemask="s[52:53]")
        a("s_mov_b64 exec, s[56:57]")
    else:
        poll(hl, [50, 49], list(range(16, 24)), 10, 10, lanemask="s[52:53]", delay=dh, slp=4)
    a("v_pk_add_f32 v[16:17], v[16:17], v[20:21]\nv_pk_add_f32 v[18:19], v[18:19], v[22:23]")
    a("s_mov_b64 exec, -1")
    stamp(7)
    swapred("v_add_f32", 32, [16, 17, 18, 19], 20)
    a("v_cvt_pk_bf16_f32 v20, v16, v17\nv_cvt_pk_bf16_f32 v21, v18, v19")
    a("v_mov_b32 v30, v20\nv_mov_b32 v31, v21")
    a("v_permlane16_swap_b32 v20, v30\nv_permlane16_swap_b32 v21, v31")
    unpack(16, 20); unpack(18, 21)
    k0 = 0.7978845608028654; k1 = 0.044715
    a(f"s_mov_b32 s40, {f32(-2*LOG2E*k0*k1)}\nv_mov_b32 v28, {f32(-2*LOG2E*k0)}")
    for r in range(4): a(f"v_mul_f32 v{20+r}, v{16+r}, v{16+r}")
    for r in range(4): a(f"v_fma_f32 v{20+r}, v{20+r}, s40, v28")
    for r in range(4): a(f"v_mul_f32 v{20+r}, v{20+r}, v{16+r}")
    for r in range(4): a(f"v_exp_f32 v{20+r}, v{20+r}")
    unpack(32, 30); unpack(34, 31)
    for r in range(4): a(f"v_add_f32 v{20+r}, 1.0, v{20+r}")
    for r in range(4): a(f"v_rcp_f32 v{20+r}, v{20+r}")
    a("v_mov_b32 v9, 2")
    for r in range(4): a(f"v_mul_f32 v{20+r}, v{20+r}, v{16+r}")
    a("v_cvt_pk_bf16_f32 v24, v20, v21\nv_cvt_pk_bf16_f32 v25, v22, v23")
    unpack(20, 24); unpack(22, 25)
    for r in range(4): a(f"v_mul_f32 v{20+r}, v{20+r}, v{32+r}")
    a("v_cvt_pk_bf16_f32 v24, v20, v21\nv_cvt_pk_bf16_f32 v25, v22, v23")
    a("s_mov_b64 exec, 0x3fff")
    a("ds_write_b32 v2, v24\nds_write_b32 v3, v25")
    signal(C_OV)
    stamp(8)
    a("s_branch L_fin")

    a.label("L_RED")
    a("s_load_dwordx2 s[24:25], s[0:1], 72\ns_mov_b32 s26, 2048\ns_mov_b32 s27, 0x20000")
    if redf: a("s_lshl_b32 s60, s60, 1\ns_add_u32 s60, s60, s3\ns_sub_u32 s60, s60, 258")
    a("s_lshl_b32 s52, s60, 3")
    a("v_lshrrev_b32 v3, 5, v1\nv_bfe_u32 v5, v1, 4, 1\nv_lshl_or_b32 v3, v5, 1, v3\nv_lshlrev_b32 v3, 1, v3")
    a("v_mov_b32 v24, 0\nbuffer_load_short_d16_hi v24, v3, s[8:11], s52 offen")
    a("v_mov_b32 v26, s38\nv_mov_b32 v27, s39")
    a(f"s_lshl_b32 s50, s60, 4\ns_add_u32 s50, s50, {M3}\ns_add_u32 s51, s50, 0x40000\nv_lshlrev_b32 v2, 12, v1")
    a("s_waitcnt lgkmcnt(0)")
    a("s_barrier")
    stamp(9)
    if rk == 1:
        poll([(16, 2, 0, 0), (20, 2, 1, 0)], [50, 51], list(range(16, 24)), 10, 10, delay=dr, slp=rsleep, dual=False)
    else:
        for i in range(4): a(f"s_and_b32 s{34+i}, s{30+i}, 0x3ff")
        def rissue(k):
            a(f"buffer_load_dwordx4 v[{32+8*k}:{35+8*k}], v2, s[4:7], s50 offen sc1")
            a(f"buffer_load_dwordx4 v[{36+8*k}:{39+8*k}], v2, s[4:7], s51 offen sc1")
        backoff(dr)
        stamp(14)
        for k in range(rk):
            if k: backoff(rgap)
            rissue(k)
        a("s_mov_b32 s44, 0")
        a.label("L_rp")
        for k in range(rk):
            a(f"s_waitcnt vmcnt({2*(rk-1)})")
            for i in range(8): a(f"v_xor_b32 v{16+i}, s{34 + i % 4}, v{32+8*k+i}")
            a("v_or3_b32 v10, v16, v17, v18\nv_or3_b32 v10, v10, v19, v20\nv_or3_b32 v10, v10, v21, v22\nv_or_b32 v10, v10, v23\nv_and_b32 v10, 0x3ff, v10")
            a("v_cmp_ne_u32 vcc, 0, v10\ns_and_b64 exec, vcc, exec\ns_cbranch_scc0 L_rp_ok")
            rissue(k)
        a(f"s_add_u32 s44, s44, 1\ns_cmp_lt_u32 s44, {SPIN_MAX}\ns_cbranch_scc1 L_rp")
        a.label("L_rp_ok")
        a("s_mov_b64 exec, -1")
    stamp(10)
    a("v_permlane32_swap_b32 v16, v17\nv_permlane32_swap_b32 v18, v19\nv_permlane32_swap_b32 v20, v21\nv_permlane32_swap_b32 v22, v23")
    a("v_add_f32 v16, v16, v17\nv_add_f32 v18, v18, v19\nv_add_f32 v20, v20, v21\nv_add_f32 v22, v22, v23")
    a("v_permlane16_swap_b32 v16, v18\nv_permlane16_swap_b32 v20, v22")
    a("v_add_f32 v16, v16, v18\nv_add_f32 v20, v20, v22")
    for k in (8, 4, 2, 1):
        for r in (16, 20): a(f"v_add_f32_dpp v{r}, v{r}, v{r} row_ror:{k} row_mask:0xf bank_mask:0xf")
    a("v_cvt_pk_bf16_f32 v16, v16, v20")
    a("v_lshlrev_b32 v17, 16, v16\nv_and_b32 v18, 0xffff0000, v16")
    a("v_add_f32 v17, v17, v24\nv_cvt_pk_bf16_f32 v17, v17, v17\nv_lshlrev_b32 v17, 16, v17")
    a("v_add_f32 v16, v17, v18\nv_cvt_pk_bf16_f32 v16, v16, v16")
    a("s_mov_b32 exec_lo, 0x10001\ns_mov_b32 exec_hi, 0x10001")
    a("buffer_store_short v16, v3, s[24:27], s52 offen")
    a("s_mov_b64 exec, 1")
    a("s_cmp_lg_u32 s60, 0\ns_cbranch_scc1 L_fin")
    a("buffer_store_dwordx2 v[26:27], off, s[4:7], 0 sc0 sc1")
    a("s_branch L_fin")

    a.label("L_fin")
    stamp(11)
    stamp_out()
    a.label("L_end")
    a("s_endpgm")
    a.raw('.section .rodata,"a"'); a.raw(".p2align 6"); a.raw(f".amdhsa_kernel {NAME}_kernel")
    nv = 128 if v128 else 192
    a.raw(f"  .amdhsa_next_free_vgpr {nv}"); a.raw(f"  .amdhsa_next_free_sgpr {100 if stamps else 64}"); a.raw(f"  .amdhsa_accum_offset {nv}")
    a.raw("  .amdhsa_group_segment_fixed_size 0"); a.raw("  .amdhsa_kernarg_size 96"); a.raw("  .amdhsa_user_sgpr_count 2")
    a.raw("  .amdhsa_user_sgpr_kernarg_segment_ptr 1"); a.raw("  .amdhsa_system_sgpr_workgroup_id_x 1"); a.raw(".end_amdhsa_kernel")
    return a.text()

if __name__ == "__main__":
    for spec in sys.argv[1:]:
        nm, _, kv = spec.partition(":")
        kw = {}
        for p in kv.split(","):
            if p:
                k, v = p.split("="); kw[k] = int(v)
        open(nm + ".s", "w").write(gen(**kw))
        open(nm + "_st.s", "w").write(gen(stamps=True, **kw))
```

```python
import sys, struct
from asmlib import Asm
NAME = "parallel_sum__sliding_block_cached__glu_gated_geglu__decode"
def f32(x): return "0x%08x" % struct.unpack("<I", struct.pack("<f", x))[0]

MQ = 0x10000; MML = 0x20000; MH = 0x30000; MO = 0x40000; GD = 0xC0000; MQ2 = 0x24000; MH2 = 0x28000; MF = 0x2C000; M3 = 0x180000
STAMP = 128 << 20
L_K = 0; L_V = 32768; B = 65536
XN = 0; GP = 1024; QBI = 3072; SCX = 5120; OV = 7168; CO = 7296
LDS_BYTES = B + 7360
C_G, C_K, C_V, C_QB, C_REC, C_SC, C_OV, C_TQ, C_TO = 0, 4, 8, 12, 16, 32, 36, 40, 44
LOG2E = 1.4426950408889634
SPIN_MAX = 200000

def gen(nt=True, stamps=False, wa=6, wf=6, sleep=2, dq=0, do=0, dh=0, dr=12, rsleep=1, local=1, gper=4, cst=10, wkv=None, ww=None, rot=1, tq=6, to=4, th=1, thm=0, wm=8, xm=1, tcq=4, tco=4, redf=0, wwf=None, nog=0, pl1=0, w0=None, n0=8, w0f=None, n0f=8, wn=2, rk=1, rgap=5, hk=3, hgap=10, ok=2, ogap=14, bare=0, bump=0, fw=5, na=12, cstm=10, pr=0, ack=0, v128=0, ostep=0, hstep=0, nat=0, xf=0, xmax=16, xneed=32, tlb=0, eba=0, ebf=0, osc=0, esc=0):
    a = Asm()
    NT = " nt" if nt else ""
    hdr = open("cdna_kernels/" + NAME + ".s.ref").read().split("\n")
    for l in hdr:
        if l.startswith("; @launch"): break
        a.raw(l)
    a.raw(f"; @launch grid=(256,1,1) block=(512,1,1) lds={LDS_BYTES}")
    a.raw('.amdgcn_target "amdgcn-amd-amdhsa--gfx950"')
    a.raw(".text"); a.raw(f".globl {NAME}_kernel"); a.raw(".p2align 8"); a.raw(f".type {NAME}_kernel,@function"); a.raw(f"{NAME}_kernel:")
    NST = 15
    uid = [0]
    def stamp(i):
        if stamps: a(f"s_memrealtime s[{64+2*i}:{65+2*i}]")
    def stamp_out():
        if not stamps: return
        a("s_mov_b64 exec, -1")
        a("s_waitcnt lgkmcnt(0)")
        for i in range(2 * NST): a(f"v_writelane_b32 v3, s{64+i}, {i}")
        a(f"s_lshl_b32 s40, s2, 3\ns_add_u32 s40, s40, s3\ns_mul_i32 s40, s40, {NST*8}\ns_add_u32 s40, s40, {STAMP}")
        a(f"v_lshlrev_b32 v4, 2, v1\nv_cmp_gt_u32 vcc, {2*NST}, v1\ns_and_saveexec_b64 s[42:43], vcc")
        a("buffer_store_dword v3, v4, s[4:7], s40 offen")
    def swapred(op, kind, regs, tmp):
        for i, r in enumerate(regs): a(f"v_mov_b32 v{tmp+i}, v{r}")
        for i, r in enumerate(regs): a(f"v_permlane{kind}_swap_b32 v{r}, v{tmp+i}")
        for i, r in enumerate(regs): a(f"{op} v{r}, v{r}, v{tmp+i}")
    def allreduce(op, v, t, lo=(8, 4, 2, 1)):
        for k in lo: a(f"{op}_dpp v{v}, v{v}, v{v} row_ror:{k} row_mask:0xf bank_mask:0xf")
        swapred(op, 16, [v], t); swapred(op, 32, [v], t)
    def tred4(r):
        a(f"v_permlane32_swap_b32 v{r}, v{r+1}\nv_permlane32_swap_b32 v{r+2}, v{r+3}")
        a(f"v_add_f32 v{r}, v{r}, v{r+1}\nv_add_f32 v{r+2}, v{r+2}, v{r+3}")
        a(f"v_permlane16_swap_b32 v{r}, v{r+2}")
        a(f"v_add_f32 v{r}, v{r}, v{r+2}")
    def unpack(dst, src):
        a(f"v_lshlrev_b32 v{dst}, 16, v{src}\nv_and_b32 v{dst+1}, 0xffff0000, v{src}")
    def mk_tags():
        a("s_and_b32 s30, s38, 0xfff\ns_bfe_u32 s31, s38, 0xc000c\ns_and_b32 s32, s39, 0xfff\ns_bfe_u32 s33, s39, 0xc000c")
    def tag_regs(regs, vmask, bits, rn=True):
        if rn:
            for r in regs: a(f"v_add_u32 v{r}, {1 << (bits-1)}, v{r}")
        for i, r in enumerate(regs): a(f"v_bfi_b32 v{r}, v{vmask}, s{30 + i % 4}, v{r}")
    def backoff(n):
        while n > 0:
            k = min(n, 127); a(f"s_sleep {k}"); n -= k
    def publish(vd, voff, soff, gonly=False):
        if gonly:
            a(f"buffer_store_dwordx4 v[{vd}:{vd+3}], v{voff}, s[4:7], s{soff} offen sc1"); return
        if local:
            a(f"buffer_store_dwordx4 v[{vd}:{vd+3}], v{voff}, s[4:7], s{soff} offen")
        if nog: return
        a(f"s_add_u32 s45, s{soff}, {GD}")
        a(f"buffer_store_dwordx4 v[{vd}:{vd+3}], v{voff}, s[4:7], s45 offen sc1")
    def poll(loads, bases, regs, bits, t, lanemask=None, pre=None, delay=0, slot=13, slp=None, dual=True, wk0=46, first_wait=0, parts=None):
        uid[0] += 1
        L = f"L_poll{uid[0]}"
        slp = sleep if slp is None else slp
        m = (1 << bits) - 1
        for i in range(4): a(f"s_and_b32 s{34+i}, s{30+i}, {m}")
        def issue(first=False):
            for ld in loads:
                if isinstance(ld, str): a(ld); continue
                vd, vo, bi, imm = ld
                a(f"buffer_load_dwordx4 v[{vd}:{vd+3}], v{vo}, s[4:7], {bi if isinstance(bi, str) else 's%d' % wk[bi]} offen offset:{imm} sc1")
        if dual:
            wk = [wk0 + i for i in range(len(bases))]
            for i, b in enumerate(bases):
                a(f"s_mov_b32 s{wk[i]}, s{b}" if local else f"s_add_u32 s{wk[i]}, s{b}, {GD}")
        else: wk = bases
        if parts == "issue":
            if slot == 13: stamp(14)
            issue(True); uid[0] -= 1
            return
        backoff(delay)
        if slot == 13 and parts is None: stamp(14)
        if lanemask is not None: a(f"s_mov_b64 exec, {lanemask}")
        if parts == "check":
            a("s_mov_b32 s44, 0")
            a(f"s_branch {L}_w")
        elif pre is not None:
            issue(True); pre()
            a("s_mov_b32 s44, 0")
            if first_wait:
                a(f"s_waitcnt vmcnt({first_wait})")
                a(f"s_branch {L}_c")
            else:
                a(f"s_branch {L}_w")
        else:
            a("s_mov_b32 s44, 0")
        a.label(L)
        issue()
        a.label(L + "_w")
        a("s_waitcnt vmcnt(0)")
        a.label(L + "_c")
        for i, r in enumerate(regs): a(f"v_xor_b32 v{r}, s{34 + i % 4}, v{r}")
        a(f"v_or3_b32 v{t}, v{regs[0]}, v{regs[1]}, v{regs[2]}")
        rest = regs[3:]
        while len(rest) >= 2:
            a(f"v_or3_b32 v{t}, v{t}, v{rest[0]}, v{rest[1]}"); rest = rest[2:]
        if rest: a(f"v_or_b32 v{t}, v{t}, v{rest[0]}")
        a(f"v_and_b32 v{t}, {m}, v{t}")
        a(f"v_cmp_ne_u32 vcc, 0, v{t}")
        a("s_and_b64 exec, vcc, exec")
        a(f"s_cbranch_scc0 {L}_ok")
        if slp: a(f"s_sleep {slp}")
        a("s_add_u32 s44, s44, 1")
        if dual and local:
            a(f"s_and_b32 s45, s44, {gper-1}\ns_cmp_eq_u32 s45, {gper-1}\ns_cselect_b32 s45, {GD}, 0")
            for i, b in enumerate(bases): a(f"s_add_u32 s{wk[i]}, s{b}, s45")
        a(f"s_cmp_lt_u32 s44, {SPIN_MAX}\ns_cbranch_scc1 {L}")
        a.label(L + "_ok")
        a("s_mov_b64 exec, -1")
        if stamps: a(f"s_mul_i32 s{64+2*slot}, s44, 100\ns_add_u32 s{64+2*slot}, s{64+2*slot}, s64\ns_addc_u32 s{65+2*slot}, s65, 0")
    def ppoll(mk, nld, nreg, bases, R, S, k, gap, bits, t, lanemask=None, step=0):
        uid[0] += 1
        L = f"L_pp{uid[0]}"
        m = (1 << bits) - 1
        for i in range(4): a(f"s_and_b32 s{34+i}, s{30+i}, {m}")
        wk = [46 + i for i in range(len(bases))]
        for i, b in enumerate(bases): a(f"s_mov_b32 s{wk[i]}, s{b}" if local else f"s_add_u32 s{wk[i]}, s{b}, {GD}")
        if lanemask is not None: a(f"s_mov_b64 exec, {lanemask}")
        stamp(14)
        a("s_waitcnt vmcnt(0)") if False else None
        for j in range(k):
            if j and step: lds_wait(C_TO, 4 * (j + 1), t)
            elif j: backoff(gap)
            mk(S + j * nreg, wk)
        a("s_mov_b32 s44, 0")
        a.label(L)
        regs = list(range(R, R + nreg))
        for j in range(k):
            a(f"s_waitcnt vmcnt({nld*(k-1)})")
            for i in range(nreg): a(f"v_xor_b32 v{R+i}, s{34 + i % 4}, v{S + j*nreg + i}")
            a(f"v_or3_b32 v{t}, v{regs[0]}, v{regs[1]}, v{regs[2]}")
            rest = regs[3:]
            while len(rest) >= 2:
                a(f"v_or3_b32 v{t}, v{t}, v{rest[0]}, v{rest[1]}"); rest = rest[2:]
            if rest: a(f"v_or_b32 v{t}, v{t}, v{rest[0]}")
            a(f"v_and_b32 v{t}, {m}, v{t}\nv_cmp_ne_u32 vcc, 0, v{t}\ns_and_b64 exec, vcc, exec\ns_cbranch_scc0 {L}_ok")
            if stamps: a("s_add_u32 s43, s43, 1")
            mk(S + j * nreg, wk)
        a("s_add_u32 s44, s44, 1")
        a(f"s_and_b32 s45, s44, 1\ns_cselect_b32 s45, {GD}, 0" if local else f"s_mov_b32 s45, {GD}")
        for i, b in enumerate(bases): a(f"s_add_u32 s{wk[i]}, s{b}, s45")
        a(f"s_cmp_lt_u32 s44, {SPIN_MAX}\ns_cbranch_scc1 {L}")
        a.label(L + "_ok")
        a("s_mov_b64 exec, -1")
        if stamps: a(f"s_mul_i32 s90, s43, 100\ns_add_u32 s90, s90, s64\ns_addc_u32 s91, s65, 0")
    def lds_wait(off, val, t, slp=1, extra=None):
        uid[0] += 1
        L = f"L_lw{uid[0]}"
        a("s_mov_b32 s44, 0")
        a.label(L)
        a(f"ds_read_b32 v{t}, v8 offset:{CO + off}")
        if extra: a(extra)
        a("s_waitcnt lgkmcnt(0)")
        a(f"v_readfirstlane_b32 s45, v{t}")
        a(f"s_cmp_ge_u32 s45, {val}\ns_cbranch_scc1 {L}_ok")
        if slp: a(f"s_sleep {slp}")
        a(f"s_add_u32 s44, s44, 1\ns_cmp_lt_u32 s44, {SPIN_MAX*8}\ns_cbranch_scc1 {L}")
        a.label(L + "_ok")
    def signal(off):
        a("s_mov_b64 exec, 1")
        a(f"ds_add_u32 v8, v9 offset:{CO+off}")
        a("s_mov_b64 exec, -1")
    def get_rec(r):
        uid[0] += 1
        L = f"L_tg{uid[0]}"
        a("s_mov_b32 s44, 0")
        a.label(L)
        a(f"ds_read_b128 v[{r}:{r+3}], v8 offset:{CO+C_REC}")
        a("s_waitcnt lgkmcnt(0)")
        a(f"v_readfirstlane_b32 s45, v{r+2}\nv_readfirstlane_b32 s38, v{r}\nv_readfirstlane_b32 s39, v{r+1}")
        a(f"s_bitcmp1_b32 s45, 0\ns_cbranch_scc1 {L}_ok")
        a(f"s_sleep 1\ns_add_u32 s44, s44, 1\ns_cmp_lt_u32 s44, {SPIN_MAX*8}\ns_cbranch_scc1 {L}")
        a.label(L + "_ok")
        mk_tags()
    def f_ids():
        a("s_cmp_ge_u32 s62, 24\ns_cselect_b32 s54, 1, 0")
        a("s_lshr_b32 s55, s62, 2\ns_min_u32 s55, s55, 6")
        a("s_add_u32 s40, s54, 1\ns_lshr_b32 s56, s62, s40\ns_and_b32 s56, s56, 1")
        a("s_lshl_b32 s40, s54, 1\ns_add_u32 s40, s40, 1\ns_and_b32 s57, s62, s40")

    def common():
        if stamps:
            for i in range(1, NST): a(f"s_mov_b64 s[{64+2*i}:{65+2*i}], 0")
        a("s_mov_b32 s6, 0x10000000\ns_mov_b32 s7, 0x20000\ns_mov_b32 s10, 2048\ns_mov_b32 s11, 0x20000")
        a("s_lshl_b32 s60, s61, 5\ns_add_u32 s60, s60, s62")
        a(f"v_mov_b32 v8, {B}\nv_mov_b32 v9, 1")
    FW = fw
    NM = 64 - 4 * na
    G1 = 64; W2 = 64 if v128 else 128; SEL = 48; ACC = 56; AT = 40; XR = 16; OWN = 32
    AC2 = 52
    def mk_sel():
        a("v_and_b32 v60, 8, v7\nv_cmp_eq_u32 vcc, 0, v60")
        a("v_mov_b32 v60, 0x0c0c0302\nv_mov_b32 v61, 0x0c0c0100\nv_cndmask_b32 v60, v60, v61, vcc")
        a("v_and_b32 v61, 1, v7\nv_lshlrev_b32 v61, 4, v61\nv_alignbit_b32 v60, v60, v60, v61")
        a("v_bfe_u32 v62, v7, 1, 2\nv_mov_b32 v63, 0x0c0c0c0c")
        for d in range(4):
            a(f"v_cmp_eq_u32 vcc, {d}, v62")
            a(f"v_cndmask_b32 v{SEL+d}, v63, v60, vcc")
    def sp_perm(n):
        if n & 1: return
        at = AT + 4 * ((n >> 1) & 1)
        for d in range(4): a(f"v_perm_b32 v{at+d}, v{XR + n // 2}, v{XR + n // 2}, v{SEL+d}")
    def sp_mfma(breg, n, first):
        at = AT + 4 * ((n >> 1) & 1)
        ac = AC2 if n & 1 else ACC
        c = "0" if (n < 2 or first) else f"v[{ac}:{ac+3}]"
        a(f"v_mfma_f32_16x16x32_bf16 v[{ac}:{ac+3}], v[{at}:{at+3}], v[{breg}:{breg+3}], {c}")
    def sp_merge():
        a(f"v_permlane32_swap_b32 v{AC2}, v{AC2+1}\nv_permlane32_swap_b32 v{AC2+2}, v{AC2+3}")
        a(f"v_add_f32 v{ACC}, v{ACC}, v{AC2+1}\nv_add_f32 v{ACC+2}, v{ACC+2}, v{AC2+3}")
        a(f"v_permlane32_swap_b32 v{AC2+1}, v{AC2}\nv_permlane32_swap_b32 v{AC2+3}, v{AC2+2}")
        a(f"v_add_f32 v{ACC+1}, v{ACC+1}, v{AC2}\nv_add_f32 v{ACC+3}, v{ACC+3}, v{AC2+2}")
    def stream(kind, win):
        NG = {"A": na, "F": 32, "M": NM + 16}[kind]
        stride = 8192 if kind == "A" else 7168
        ops = [("G", n) for n in range(NG)]
        ops.insert(FW, ("X", 0))
        if kind == "A": ops += [("K", n) for n in range(8)] + [("V", n) for n in range(8)]
        ops += [("W", n) for n in range(16 if kind == "A" else 14)]
        def issue(op):
            k, n = op
            if k == "G":
                r = G1 + 4 * (n % 16)
                if kind == "M" and n >= NM:
                    if n > NM: a("s_add_u32 s50, s50, 7168")
                    a(f"buffer_load_dwordx4 v[{r}:{r+3}], v10, s[20:23], s50 offen{NT}")
                else:
                    a("s_add_u32 s51, s51, s47")
                    a(f"buffer_load_dwordx4 v[{r}:{r+3}], v2, s[12:15], s51 offen{NT}")
            elif k == "X":
                a("v_lshlrev_b32 v60, 2, v1")
                if kind == "M":
                    a("s_lshl_b32 s42, s57, 2\ns_add_u32 s42, s42, s46")
                    a(f"s_sub_u32 s41, s61, 4\ns_mul_i32 s50, s41, 7\ns_add_u32 s50, s50, 6\ns_lshl_b32 s50, s50, 8\ns_mul_i32 s40, s42, {64*7168}\ns_add_u32 s50, s50, s40")
                    a("s_lshl_b32 s42, s42, 7\ns_sub_u32 s42, s42, 128\ns_sub_u32 s42, s42, s49")
                    a("v_mov_b32 v62, s42\nv_cmp_gt_u32 vcc, 32, v1\nv_cndmask_b32 v61, v62, 0, vcc\nv_add_u32 v60, v60, v61\nv_add_u32 v60, s49, v60")
                    a(f"buffer_load_dword v{OWN}, v60, s[8:11], 0 offen")
                    a(f"v_mul_u32_u24 v10, {16*7168}, v6\nv_lshl_add_u32 v10, v7, 4, v10")
                    a("s_cmp_eq_u32 s56, 1\ns_cselect_b32 s20, s26, s24\ns_cselect_b32 s21, s27, s25\ns_mov_b32 s22, 0x700000\ns_mov_b32 s23, 0x20000")
                else:
                    a(f"buffer_load_dword v{OWN}, v60, s[8:11], s49 offen")
            elif k in "KV":
                a(f"s_add_u32 s53, s53, 1024\ns_and_b32 s53, s53, 0x1c00")
                if k == "K": a("s_bfe_u32 s40, s53, 0x2000a\ns_lshl_b32 s40, s40, 6")
                else: a("s_bfe_u32 s40, s53, 0x1000a\ns_lshl_b32 s40, s40, 7")
                a("s_or_b32 s40, s40, s53")
                a(f"v_xor_b32 v{12+(n&1)}, s40, v{10 if k == 'K' else 11}")
                a(f"s_add_u32 m0, s53, s{54 if k == 'K' else 55}")
                srd = 20 if k == "K" else 24
                a(f"buffer_load_dwordx4 v{12+(n&1)}, s[{srd}:{srd+3}], s50 offen{NT} lds")
            else:
                if n and n % 2 == 0: a("s_add_u32 s52, s52, 4096")
                a(f"buffer_load_dwordx4 v[{W2+4*n}:{W2+4*n+3}], v3, s[16:19], s52 offen offset:{2048*(n&1)}{NT}")
        def setup_rest():
            common()
            if kind == "A":
                a("s_load_dwordx2 s[16:17], s[0:1], 32\ns_load_dwordx2 s[20:21], s[0:1], 8\ns_load_dwordx2 s[24:25], s[0:1], 16")
                a("s_mov_b32 s18, 0x800000\ns_mov_b32 s22, 0x2000000\ns_mov_b32 s23, 0x20000\ns_mov_b32 s26, 0x2000000\ns_mov_b32 s27, 0x20000")
            else:
                a("s_load_dwordx2 s[16:17], s[0:1], 64\ns_mov_b32 s18, 0x700000")
            a("s_mov_b32 s19, 0x20000")
            a("v_mov_b32 v5, 0x3ff")
            a(f"v_mul_u32_u24 v3, {(16 if kind == 'A' else 14)*2048}, v6\nv_lshl_or_b32 v3, v7, 4, v3")
            a("s_and_b32 s40, s62, 1\ns_lshl_b32 s40, s40, 10\ns_lshl_b32 s41, s46, 8\ns_add_u32 s40, s40, s41\ns_lshr_b32 s41, s60, 1")
            if kind == "A":
                a("s_lshl_b32 s52, s41, 17\ns_add_u32 s52, s52, s40")
                a("v_xor_b32 v10, v7, v6\nv_lshlrev_b32 v10, 4, v10\nv_lshl_or_b32 v10, v6, 8, v10")
                a("v_lshlrev_b32 v11, 1, v6\nv_xor_b32 v11, v7, v11\nv_lshlrev_b32 v11, 4, v11\nv_lshl_or_b32 v11, v6, 8, v11")
                a(f"s_lshl_b32 s50, s61, 23\ns_lshl_b32 s40, s62, 15\ns_add_u32 s50, s50, s40\ns_lshl_b32 s54, s46, 13\ns_add_u32 s50, s50, s54\ns_add_u32 s50, s50, {28672*256}\ns_add_u32 s55, s54, {L_V}")
                a("s_lshl_b32 s53, s62, 10" if rot else "s_mov_b32 s53, 0x1c00")
            else:
                a(f"s_sub_u32 s41, s41, 64\ns_mul_i32 s52, s41, {56*2048}\ns_add_u32 s52, s52, s40")
            mk_sel()
            a("s_waitcnt lgkmcnt(0)")
        def get_x():
            get_rec(60)
            a("v_and_b32 v62, 0xffff0000, v62")
            unpack(34, OWN)
            a("v_sub_f32 v34, v34, v62\nv_sub_f32 v35, v35, v62\nv_cvt_pk_bf16_f32 v36, v34, v35")
            unpack(34, 36)
            a("v_mul_f32 v34, v34, v63\nv_mul_f32 v35, v35, v63\nv_cvt_pk_bf16_f32 v36, v34, v35")
            a(f"s_lshl_b32 s40, s46, 8\ns_add_u32 s40, s40, {B+XN}\nv_lshl_add_u32 v37, v1, 2, s40\nds_write_b32 v37, v36")
            if kind == "A":
                a(f"v_mul_u32_u24 v37, {2*na}, v6\nv_add_u32 v37, s40, v37")
                if na == 12:
                    for i in range(3): a(f"ds_read_b64 v[{XR+2*i}:{XR+2*i+1}], v37 offset:{8*i}")
                else:
                    for i in range(0, na // 2 - 1, 2): a(f"ds_read2_b32 v[{XR+i}:{XR+i+1}], v37 offset0:{i} offset1:{i+1}")
                    if (na // 2) % 2: a(f"ds_read_b32 v{XR+na//2-1}, v37 offset:{4*(na//2-1)}")
            elif kind == "F":
                a("v_lshl_add_u32 v37, v6, 6, s40")
                for i in range(4): a(f"ds_read_b128 v[{XR+4*i}:{XR+4*i+3}], v37 offset:{16*i}")
            else:
                a(f"v_lshl_add_u32 v37, v6, 5, s40\nv_lshl_add_u32 v38, v6, {5 if NM == 16 else 4}, s40")
                for i in range(NM // 8): a(f"ds_read_b128 v[{XR+4*i}:{XR+4*i+3}], v38 offset:{16*i}")
                for i in range(2): a(f"ds_read_b128 v[{XR+NM//2+4*i}:{XR+NM//2+4*i+3}], v37 offset:{16*i + 128}")
            a(f"s_lshl_b32 s40, s46, 9\ns_add_u32 s40, s40, {B+GP}\nv_lshl_add_u32 v33, v7, 1, v6\nv_lshl_add_u32 v33, v33, 4, s40")
            a("s_waitcnt lgkmcnt(0)")
            stamp(2)
        def consume(n):
            if n == 0: get_x()
            sp_perm(n); sp_mfma(G1 + 4 * (n % 16), n, kind == "M" and n in (NM, NM + 1))
            if kind == "M" and n == NM - 1:
                sp_merge()
                a("s_mov_b32 exec_hi, 0")
                a(f"ds_write_b128 v33, v[{ACC}:{ACC+3}] offset:{QBI-GP}")
                signal(C_K)
                stamp(3)
            if n == NG - 1:
                sp_merge()
                a("s_mov_b32 exec_hi, 0")
                a(f"ds_write_b128 v33, v[{ACC}:{ACC+3}]")
                signal(C_G)
                stamp(4)
        nc = 0
        nsig = [0]
        nl = -1
        gidx = {op[1]: i for i, op in enumerate(ops) if op[0] == "G"}
        first = {"A": max(win, w0 or 0), "F": win, "M": wm}[kind]
        for i, op in enumerate(ops):
            if i < FW: continue
            w = win
            if kind == "A" and w0 and i < n0 + w0: w = max(win, min(w0, n0 + w0 - i + win))
            if kind == "F" and w0f and i < n0f: w = w0f
            if kind == "M" and i < NM + 1: w = wm
            if op[0] in "KV" and wkv: w = wkv
            if op[0] == "W" and ww and kind == "A": w = ww
            if op[0] == "W" and wwf and kind != "A": w = wwf
            if w > 10: w = (w // 10) if i % 2 else (w % 10)
            eb = eba if kind == "A" else ebf
            if eb and i >= len(ops) - eb: w = min(8, w + i - (len(ops) - eb) + 1)
            if i - w <= FW <= i: w += 1
            newl = max(nl, i - w)
            if op[0] == "X": newl = nl
            if newl > nl:
                a(f"s_waitcnt vmcnt({i - 1 - newl})")
            evs = list(range(nl + 1, newl + 1)); nl = newl
            if op[0] == "G" and op[1] >= 16:
                while nc <= op[1] - 16: consume(nc); nc += 1
            if op[0] == "W" and v128:
                last = max([g for g in range(NG) if g % 16 == op[1]], default=-1)
                assert last < 0 or gidx[last] <= nl
                while nc <= last: consume(nc); nc += 1
            issue(op)
            if i == max(first, FW):
                setup_rest(); a("s_barrier")
            for e in evs:
                if ops[e] == ("K", 7): signal(C_K); stamp(3)
                if ops[e] == ("V", 7): signal(C_V); stamp(6)
                if kind == "A" and e == na + 1 + tq: signal(C_TQ)
                t0 = to if kind == "A" else (th if kind == "F" else thm)
                st_, kk = (ostep, ok) if kind == "A" else (hstep, hk)
                if ops[e][0] == "W" and ops[e][1] in ([t0 + j * st_ for j in range(kk)] if st_ else [t0]): signal(C_TO); nsig[0] += 1
            k = 0
            while i >= (cst if kind != "M" else min(cst, cstm)) and nl >= FW and nc < NG and gidx[nc] <= nl and k < 3:
                consume(nc); nc += 1; k += 1
        assert nc == NG
        assert nsig[0] == (((ok if ostep else 1) if kind == 'A' else (hk if hstep else 1))), nsig
    X, F, EV = 16, 28, 24
    stamp(0)
    a("s_load_dwordx2 s[12:13], s[0:1], 24\ns_load_dwordx4 s[24:27], s[0:1], 48\ns_load_dwordx2 s[8:9], s[0:1], 0\ns_load_dwordx2 s[4:5], s[0:1], 88")
    a("v_lshrrev_b32 v2, 6, v0\nv_and_b32 v1, 63, v0")
    a("s_cmp_ge_u32 s2, 256\ns_cbranch_scc1 L_end")
    a("v_readfirstlane_b32 s3, v2")
    a("s_and_b32 s61, s2, 7\ns_lshl_b32 s61, s61, 2\ns_lshr_b32 s61, " + ("0x32761054" if xm else "0x76543210") + ", s61\ns_and_b32 s61, s61, 7\ns_lshr_b32 s62, s2, 3")
    a("v_lshrrev_b32 v6, 4, v1\nv_and_b32 v7, 15, v1\nv_lshlrev_b32 v4, 4, v1\ns_mov_b32 s10, 2048\ns_mov_b32 s11, 0x20000")
    a("s_cmp_lt_u32 s3, 4\ns_cbranch_scc1 L_Cstub")
    if pr >= 2: a("s_setprio 1")
    a("s_sub_u32 s46, s3, 4\ns_mov_b32 s15, 0x20000")
    f_ids()
    a("s_and_b32 s45, s61, 3\ns_mul_i32 s42, s45, 7\ns_add_u32 s42, s42, s55\ns_mov_b32 s40, s57\ns_mov_b32 s41, 32\ns_mov_b32 s43, 1")
    a("s_lshl_b32 s45, s45, 3\ns_and_b32 s44, s62, 7\ns_add_u32 s44, s44, s45")
    a("s_cmp_eq_u32 s54, 1\ns_cselect_b32 s40, " + str(64 // NM - 1) + ", s40\ns_cselect_b32 s41, " + str(NM) + ", s41\ns_cselect_b32 s42, s44, s42\ns_cselect_b32 s43, 0, s43")
    a("s_lshr_b32 s44, s62, 2\ns_add_u32 s44, s44, s45\ns_and_b32 s45, s62, 3")
    a("s_cmp_lt_u32 s61, 4\ns_cselect_b32 s40, s45, s40\ns_cselect_b32 s41, " + str(na) + ", s41\ns_cselect_b32 s42, s44, s42\ns_cselect_b32 s43, 0, s43")
    a("s_cmp_eq_u32 s43, 0\ns_cselect_b32 s47, 0x2000, s10\ns_cselect_b32 s14, 0x800000, s10")
    a("s_cmp_eq_u32 s43, 1\ns_cselect_b32 s47, 0x1c00, s47\ns_cselect_b32 s14, 0x700000, s14")
    a("s_lshl_b32 s40, s40, 2\ns_add_u32 s40, s40, s46\ns_mul_i32 s40, s40, s41\ns_lshl_b32 s49, s40, 3")
    a("s_mul_i32 s51, s40, s47\ns_lshl_b32 s51, s51, 2\ns_lshl_b32 s42, s42, 8\ns_add_u32 s51, s51, s42\ns_mul_i32 s41, s41, s47")
    a("v_mul_u32_u24 v2, s41, v6\nv_lshl_add_u32 v2, v7, 4, v2")
    a("s_cmp_eq_u32 s56, 1")
    a("s_waitcnt lgkmcnt(0)")
    a("s_cselect_b32 s44, s26, s24\ns_cselect_b32 s45, s27, s25\ns_cmp_eq_u32 s43, 1\ns_cselect_b32 s12, s44, s12\ns_cselect_b32 s13, s45, s13")
    for n in range(FW):
        if n: a("s_add_u32 s51, s51, s47")
        a(f"buffer_load_dwordx4 v[{G1+4*n}:{G1+4*n+3}], v2, s[12:15], s51 offen{NT}")
    if stamps: a("s_memrealtime s[98:99]")
    a("s_cbranch_scc1 L_end") if False else None
    a("s_cmp_eq_u32 s43, 1\ns_cbranch_scc1 L_SF\ns_cmp_ge_u32 s61, 4\ns_cbranch_scc1 L_SM\ns_branch L_SA")
    a.label("L_Cstub")
    if pr == 0: a("s_setprio 3")
    a("s_cmp_lg_u32 s3, 0\ns_cbranch_scc1 L_Cn0")
    a("s_mov_b32 s6, 0x10000000\ns_mov_b32 s7, 0x20000")
    a("s_waitcnt lgkmcnt(0)")
    a(f"buffer_load_dwordx4 v[{X}:{X+3}], v4, s[8:11], 0 offen")
    a(f"buffer_load_dwordx4 v[{X+4}:{X+7}], v4, s[8:11], 0 offen offset:1024")
    a(f"buffer_load_dwordx2 v[{EV}:{EV+1}], off, s[4:7], 0 sc0 sc1")
    a("s_branch L_C0")
    def sfin(NW):
        stamp(5)
        if stamps: a("s_mov_b64 s[66:67], s[98:99]")
        a("v_lshl_add_u32 v11, v7, 1, v6\nv_lshlrev_b32 v11, 4, v11")
        a(f"s_lshl_b32 s50, s60, 11\ns_lshl_b32 s41, s46, 9\ns_add_u32 s50, s50, s41\ns_add_u32 s50, s50, {M3}")
        a(f"v_lshlrev_b32 v12, 5, v6\nv_add_u32 v12, {B+OV}, v12")
        lds_wait(C_OV, 0 if bare else 2, 13, slp=0, extra=f"ds_read_b128 v[{XR}:{XR+3}], v12\nds_read_b128 v[{XR+4}:{XR+7}], v12 offset:16")
        stamp(8)
        sp_perm(0)
        for k in range(NW):
            if NW - 1 - k < 8: a(f"s_waitcnt vmcnt({NW-1-k})")
            sp_mfma(W2 + 4*k, k, k == 0)
            if k % 2 == 0 and k + 2 < NW: sp_perm(k + 2)
        stamp(9)
        sp_merge()
        tag_regs([ACC, ACC+1, ACC+2, ACC+3], 5, 10)
        a("s_mov_b32 exec_hi, 0")
        a(f"buffer_store_dwordx4 v[{ACC}:{ACC+3}], v11, s[4:7], s50 offen sc1")
        if ack: a("s_waitcnt vmcnt(0)")
        a("s_barrier")
    a.label("L_SA")
    stream("A", wa)
    sfin(16)
    a("s_branch L_fin")
    a.label("L_SF")
    stream("F", wf)
    a("s_branch L_Sfin")
    a.label("L_SM")
    stream("M", wf)
    a.label("L_Sfin")
    sfin(14)
    a("s_branch L_fin")
    a.label("L_C0")
    common()
    a("s_barrier")
    a("s_waitcnt vmcnt(1)")
    stamp(2)
    for i in range(8): unpack(F + 2*i, X + i)
    S, T = F + 16, F + 17
    for i in range(4): a(f"v_pk_add_f32 v[{X+2*i}:{X+2*i+1}], v[{F+4*i}:{F+4*i+1}], v[{F+4*i+2}:{F+4*i+3}]")
    a(f"v_pk_add_f32 v[{X}:{X+1}], v[{X}:{X+1}], v[{X+2}:{X+3}]\nv_pk_add_f32 v[{X+4}:{X+5}], v[{X+4}:{X+5}], v[{X+6}:{X+7}]")
    a(f"v_pk_add_f32 v[{X}:{X+1}], v[{X}:{X+1}], v[{X+4}:{X+5}]\nv_add_f32 v{S}, v{X}, v{X+1}")
    allreduce("v_add_f32", S, T)
    a(f"v_mul_f32 v{S}, {f32(1/1024)}, v{S}")
    M = X + 2
    a(f"v_mov_b32 v{M}, v{S}\nv_mov_b32 v{M+1}, v{S}")
    for i in range(8): a(f"v_pk_add_f32 v[{F+2*i}:{F+2*i+1}], v[{F+2*i}:{F+2*i+1}], v[{M}:{M+1}] neg_lo:[0,1] neg_hi:[0,1]")
    a(f"v_pk_mul_f32 v[{X}:{X+1}], v[{F}:{F+1}], v[{F}:{F+1}]\nv_pk_mul_f32 v[{X+4}:{X+5}], v[{F+2}:{F+3}], v[{F+2}:{F+3}]")
    for i in range(2, 8):
        d = X if i % 2 == 0 else X + 4
        a(f"v_pk_fma_f32 v[{d}:{d+1}], v[{F+2*i}:{F+2*i+1}], v[{F+2*i}:{F+2*i+1}], v[{d}:{d+1}]")
    V = X + 6
    a(f"v_pk_add_f32 v[{X}:{X+1}], v[{X}:{X+1}], v[{X+4}:{X+5}]\nv_add_f32 v{V}, v{X}, v{X+1}")
    allreduce("v_add_f32", V, T)
    a(f"v_mul_f32 v{V}, {f32(1/1024)}, v{V}")
    a(f"v_cvt_pk_bf16_f32 v{T}, v{S}, v{V}")
    a(f"v_lshl_or_b32 v{EV+2}, v{T}, 16, 1")
    a(f"v_and_b32 v{V}, 0xffff0000, v{T}\nv_add_f32 v{V}, {f32(1e-5)}, v{V}")
    a(f"v_cvt_pk_bf16_f32 v{V}, v{V}, v{V}\nv_and_b32 v{V}, 0xffff0000, v{V}\nv_sqrt_f32 v{V}, v{V}")
    a(f"v_cvt_pk_bf16_f32 v{V}, v{V}, v{V}\nv_and_b32 v{V}, 0xffff0000, v{V}\nv_rcp_f32 v{EV+3}, v{V}")
    a("s_waitcnt vmcnt(0)")
    a(f"v_add_u32 v{EV}, 0x7f4a7c15, v{EV}\nv_add_u32 v{EV+1}, 0x9e3779b9, v{EV+1}")
    a("s_mov_b64 exec, 1")
    a(f"ds_write_b128 v8, v[{EV}:{EV+3}] offset:{CO+C_REC}")
    a("s_mov_b64 exec, -1")
    stamp(3)
    a("s_branch L_Cj")
    a.label("L_Cn0")
    common()
    a("v_mov_b32 v16, 0\nv_mov_b32 v17, 0\nv_mov_b32 v18, 0\nv_mov_b32 v19, 0")
    a(f"ds_write_b128 v8, v[16:19] offset:{CO}\nds_write_b128 v8, v[16:19] offset:{CO+16}\nds_write_b128 v8, v[16:19] offset:{CO+32}")
    a("s_waitcnt lgkmcnt(0)")
    a("s_barrier")
    if tlb:
        a("s_cmp_lg_u32 s3, 3\ns_cbranch_scc1 L_Cj")
        a("s_load_dwordx4 s[12:15], s[0:1], 8\ns_load_dwordx2 s[16:17], s[0:1], 32\ns_load_dwordx2 s[20:21], s[0:1], 64")
        a(f"s_lshl_b32 s40, s61, 23\ns_lshl_b32 s41, s62, 15\ns_add_u32 s40, s40, s41\ns_add_u32 s40, s40, {28672*256}")
        a(f"s_lshr_b32 s41, s60, 1\ns_lshl_b32 s42, s41, 17\ns_sub_u32 s41, s41, 64\ns_mul_i32 s43, s41, {56*2048}")
        a("s_mov_b64 exec, 1\nv_mov_b32 v16, s40\nv_mov_b32 v17, s42\nv_mov_b32 v21, s43")
        if tlb > 1: get_rec(24)
        a("s_waitcnt lgkmcnt(0)")
        a("s_cmp_ge_u32 s61, 4\ns_cbranch_scc1 L_tf")
        a("global_load_dword v18, v16, s[12:13] nt\nglobal_load_dword v19, v16, s[14:15] nt\nglobal_load_dword v20, v17, s[16:17] nt")
        a("s_branch L_tj")
        a.label("L_tf")
        a("global_load_dword v20, v21, s[20:21] nt")
        a.label("L_tj")
        a("s_waitcnt vmcnt(0)\ns_mov_b64 exec, -1")
    a.label("L_Cj")
    if pr in (1, 2): a("s_setprio 3")
    if bare: a("s_branch L_fin")
    a("s_cmp_ge_u32 s61, 4\ns_cbranch_scc1 L_CF")

    GPRD = "\n".join(f"ds_read_b128 v[{16+4*i}:{19+4*i}], v12 offset:{512*i}" for i in range(4))
    def gemv1_reduce(voff, soff, bits, vmask, gonly=False):
        a("s_mov_b32 exec_hi, 0")
        a("v_pk_add_f32 v[16:17], v[16:17], v[20:21]\nv_pk_add_f32 v[18:19], v[18:19], v[22:23]")
        a("v_pk_add_f32 v[24:25], v[24:25], v[28:29]\nv_pk_add_f32 v[26:27], v[26:27], v[30:31]")
        a("v_pk_add_f32 v[32:33], v[16:17], v[24:25]\nv_pk_add_f32 v[34:35], v[18:19], v[26:27]")
        tag_regs([32, 33, 34, 35], vmask, bits)
        publish(32, voff, soff, gonly)
        a("s_mov_b64 exec, -1")
    KF = 64; VF = 96; QR = 36; QB = 16
    a(f"s_lshl_b32 s50, s61, 14\ns_add_u32 s50, s50, {MQ}")
    a("s_and_b32 s40, s62, 3\ns_lshl_b32 s40, s40, 10\ns_add_u32 s51, s50, s40\ns_lshr_b32 s40, s62, 2\ns_lshl_b32 s40, s40, 7\ns_add_u32 s51, s51, s40")
    a(f"s_lshl_b32 s49, s61, 12\ns_lshl_b32 s40, s3, 10\ns_add_u32 s49, s49, s40\ns_add_u32 s49, s49, {MQ2}")
    a("s_lshl_b32 s40, s3, 12\ns_add_u32 s50, s50, s40")
    a("v_lshrrev_b32 v11, 3, v1\nv_lshlrev_b32 v11, 12, v11\nv_and_b32 v10, 7, v1\nv_lshl_or_b32 v11, v10, 4, v11\nv_mov_b32 v13, 0xff")
    get_rec(16)
    a("s_cmp_lg_u32 s3, 1\ns_cbranch_scc1 L_Aq")
    a(f"v_and_b32 v12, 0x1f0, v4\nv_add_u32 v12, {B+GP}, v12")
    lds_wait(C_G, 4, 10, extra=GPRD)
    gemv1_reduce(11, 51, 8, 13)
    stamp(9)
    a.label("L_Aq")
    if True:
        a("v_bfe_u32 v2, v1, 1, 2\nv_lshlrev_b32 v2, 7, v2\nv_lshrrev_b32 v3, 3, v1\nv_lshl_or_b32 v2, v3, 4, v2\nv_and_b32 v3, 1, v1\nv_lshl_or_b32 v2, v3, 3, v2")
        a(f"s_lshl_b32 s40, s3, 9\ns_add_u32 s40, s40, {B}\nv_add_u32 v2, s40, v2")
        a("v_and_b32 v10, 7, v7\nv_lshlrev_b32 v12, 7, v6\nv_lshl_or_b32 v12, v10, 4, v12")
        a("v_lshrrev_b32 v5, 3, v7")
        a("v_lshl_add_u32 v3, v5, 3, v12\nv_add_u32 v3, s40, v3")
        a(f"v_add_u32 v12, {B}, v12\nv_lshl_add_u32 v0, v5, 10, v12")
        a("v_lshlrev_b32 v11, 14, v10\nv_lshl_or_b32 v11, v5, 6, v11\nv_lshl_or_b32 v11, v6, 4, v11")
        a(f"s_lshl_b32 s53, s61, 17\ns_lshl_b32 s40, s3, 12\ns_add_u32 s53, s53, s40\ns_and_b32 s40, s62, 3\ns_lshl_b32 s40, s40, 10\ns_add_u32 s53, s53, s40\ns_lshr_b32 s40, s62, 2\ns_lshl_b32 s40, s40, 7\ns_add_u32 s53, s53, s40\ns_add_u32 s53, s53, {MO}")
        a(f"s_lshl_b32 s52, s61, 12\ns_lshl_b32 s40, s62, 4\ns_add_u32 s52, s52, s40\ns_add_u32 s52, s52, {MML}")
        a("v_mov_b32 v13, 0xfff\nv_cmp_gt_u32 s[54:55], 8, v7")
        a("v_lshrrev_b32 v14, 2, v1\nv_lshlrev_b32 v14, 8, v14\nv_bfe_u32 v15, v1, 1, 4\nv_lshl_or_b32 v14, v15, 4, v14\nv_and_b32 v15, 1, v1\nv_lshl_or_b32 v14, v15, 3, v14")
        a("s_lshl_b32 s40, s3, 6\nv_xor_b32 v14, s40, v14\nv_xor_b32 v15, 32, v14")
        a("v_xor_b32 v56, v6, v7\nv_lshlrev_b32 v56, 4, v56\nv_lshl_or_b32 v56, v7, 8, v56\ns_lshl_b32 s40, s3, 13\nv_add_u32 v56, s40, v56")
        for s in range(1, 4): a(f"v_xor_b32 v{56+s}, {64*s}, v56")
        a(f"s_mov_b32 s40, {f32(128**-0.5)}\ns_mov_b32 s41, {f32(LOG2E)}")
    def pre_k():
        lds_wait(C_K, 4, 10)
        stamp(4)
        for T in range(2):
            for s in range(4):
                r = KF + 16*T + 4*s
                a(f"ds_read_b128 v[{r}:{r+3}], v{56+s} offset:{L_K + 4096*T}")
    lds_wait(C_TQ, tcq, 10)
    poll([(QR + 16, 4, "s49", 0)] + [(QR + 4*p, 4, 0, 1024*p) for p in range(4)], [50], list(range(QR, QR+20)), 8, 10, pre=pre_k, delay=dq, slot=12)
    stamp(5)
    a(f"v_pk_add_f32 v[{QR+12}:{QR+13}], v[{QR+12}:{QR+13}], v[{QR+16}:{QR+17}]\nv_pk_add_f32 v[{QR+14}:{QR+15}], v[{QR+14}:{QR+15}], v[{QR+18}:{QR+19}]")
    a(f"v_pk_add_f32 v[{QR}:{QR+1}], v[{QR}:{QR+1}], v[{QR+4}:{QR+5}]\nv_pk_add_f32 v[{QR+2}:{QR+3}], v[{QR+2}:{QR+3}], v[{QR+6}:{QR+7}]")
    a(f"v_pk_add_f32 v[{QR+8}:{QR+9}], v[{QR+8}:{QR+9}], v[{QR+12}:{QR+13}]\nv_pk_add_f32 v[{QR+10}:{QR+11}], v[{QR+10}:{QR+11}], v[{QR+14}:{QR+15}]")
    a(f"v_pk_add_f32 v[{QR}:{QR+1}], v[{QR}:{QR+1}], v[{QR+8}:{QR+9}]\nv_pk_add_f32 v[{QR+2}:{QR+3}], v[{QR+2}:{QR+3}], v[{QR+10}:{QR+11}]")
    a(f"v_cvt_pk_bf16_f32 v16, v{QR}, v{QR+1}\nv_cvt_pk_bf16_f32 v17, v{QR+2}, v{QR+3}")
    a(f"ds_write_b64 v2, v[16:17] offset:{QBI}")
    signal(C_QB)
    lds_wait(C_QB, 4, 10, slp=0, extra="\n".join(f"ds_read_b128 v[{QB+4*s}:{QB+4*s+3}], v12 offset:{QBI + 512*s}" for s in range(4)))
    SC = 32
    for s in range(4):
        for T in range(2):
            c = "0" if s == 0 else f"v[{SC+4*T}:{SC+4*T+3}]"
            a(f"v_mfma_f32_16x16x32_bf16 v[{SC+4*T}:{SC+4*T+3}], v[{KF+16*T+4*s}:{KF+16*T+4*s+3}], v[{QB+4*s}:{QB+4*s+3}], {c}")
    for i in range(4): a(f"v_cndmask_b32 v{40+i}, v{SC+4+i}, v{SC+i}, s[54:55]")
    a("v_cvt_pk_bf16_f32 v44, v40, v41\nv_cvt_pk_bf16_f32 v45, v42, v43")
    unpack(40, 44); unpack(42, 45)
    for i in range(4): a(f"v_mul_f32 v{40+i}, s40, v{40+i}")
    a("v_cvt_pk_bf16_f32 v44, v40, v41\nv_cvt_pk_bf16_f32 v45, v42, v43")
    a(f"ds_write_b64 v3, v[44:45] offset:{SCX}")
    signal(C_SC)
    lds_wait(C_SC, 4, 10, slp=0, extra=f"ds_read_b128 v[16:19], v0 offset:{SCX}\nds_read_b128 v[20:23], v0 offset:{SCX+512}")
    P = 32
    for i in range(8): unpack(P + 2*i, 16 + i)
    ML = 60
    a(f"v_max3_f32 v{ML}, v{P}, v{P+1}, v{P+2}\nv_max3_f32 v24, v{P+3}, v{P+4}, v{P+5}\nv_max3_f32 v25, v{P+6}, v{P+7}, v{P+8}\nv_max3_f32 v26, v{P+9}, v{P+10}, v{P+11}")
    a(f"v_max3_f32 v{ML}, v{ML}, v{P+12}, v{P+13}\nv_max3_f32 v24, v24, v{P+14}, v{P+15}\nv_max3_f32 v{ML}, v{ML}, v25, v26\nv_max_f32 v{ML}, v{ML}, v24")
    allreduce("v_max_f32", ML, 24, lo=(8,))
    a(f"v_mul_f32 v24, s41, v{ML}")
    for i in range(16): a(f"v_fma_f32 v{P+i}, v{P+i}, s41, -v24")
    for i in range(16): a(f"v_exp_f32 v{P+i}, v{P+i}")
    PA = 16; PB = 24
    for i in range(8): a(f"v_cvt_pk_bf16_f32 v{PA+i}, v{P+2*i}, v{P+2*i+1}")
    for i in range(8): a(f"v_mov_b32 v{PB+i}, v{PA+i}")
    for i in range(8): a(f"v_mov_b32_dpp v{PB+i}, v{PA+i} row_ror:8 row_mask:0xf bank_mask:0x3")
    for i in range(8): a(f"v_mov_b32_dpp v{PA+i}, v{PA+i} row_ror:8 row_mask:0xf bank_mask:0xc")
    a("s_cmp_lg_u32 s3, 3\ns_cbranch_scc1 L_Apv")
    for i in range(4): a(f"v_pk_add_f32 v[{P+4*i}:{P+4*i+1}], v[{P+4*i}:{P+4*i+1}], v[{P+4*i+2}:{P+4*i+3}]")
    a(f"v_pk_add_f32 v[{P}:{P+1}], v[{P}:{P+1}], v[{P+4}:{P+5}]\nv_pk_add_f32 v[{P+8}:{P+9}], v[{P+8}:{P+9}], v[{P+12}:{P+13}]")
    a(f"v_pk_add_f32 v[{P}:{P+1}], v[{P}:{P+1}], v[{P+8}:{P+9}]\nv_add_f32 v{ML+1}, v{P}, v{P+1}")
    allreduce("v_add_f32", ML+1, 48, lo=(8,))
    a(f"v_mov_b32 v{ML+2}, v{ML}\nv_mov_b32 v{ML+3}, v{ML+1}")
    tag_regs([ML, ML+1, ML+2, ML+3], 13, 12, rn=False)
    a("s_mov_b64 exec, 0xff")
    a("v_lshlrev_b32 v48, 9, v1")
    publish(ML, 48, 52)
    a("s_mov_b64 exec, -1")
    a.label("L_Apv")
    stamp(1)
    lds_wait(C_V, 4, 10, slp=0)
    stamp(10)
    OA = 64
    for u in range(4):
        for dt in range(2):
            for e in range(2):
                r = VF + 8*u + 4*dt + 2*e
                a(f"ds_read_b64_tr_b16 v[{r}:{r+1}], v{14+dt} offset:{L_V + 4096*(2*u+e)}")
        if u == 2: a("s_waitcnt lgkmcnt(8)")
        if u >= 2:
            pass
    for u in range(4):
        a(f"s_waitcnt lgkmcnt({12-4*u})")
        for dt in range(2):
            c = "0" if u == 0 else f"v[{OA+4*dt}:{OA+4*dt+3}]"
            a(f"v_mfma_f32_16x16x32_bf16 v[{OA+4*dt}:{OA+4*dt+3}], v[{VF+8*u+4*dt}:{VF+8*u+4*dt+3}], v[{PA+4*u}:{PA+4*u+3}], {c}")
    for r in range(4): a(f"v_cndmask_b32 v{OA+r}, v{OA+4+r}, v{OA+r}, s[54:55]")
    tag_regs([OA+r for r in range(4)], 13, 12, rn=False)
    publish(OA, 11, 53)
    stamp(6)
    if redf: a("s_cmp_ge_u32 s3, 2\ns_cbranch_scc1 L_fin")
    else: a("s_cmp_eq_u32 s3, 2\ns_cbranch_scc1 L_RED\ns_cmp_eq_u32 s3, 3\ns_cbranch_scc1 L_fin")
    a(f"s_lshr_b32 s50, s60, 1\ns_lshl_b32 s50, s50, 13\ns_lshl_b32 s40, s3, 12\ns_add_u32 s50, s50, s40\ns_add_u32 s50, s50, {MO}")
    a(f"s_lshl_b32 s51, s61, 12\ns_lshr_b32 s40, s62, 2\ns_lshl_b32 s40, s40, 9\ns_add_u32 s51, s51, s40\ns_add_u32 s51, s51, {MML}")
    a("v_lshrrev_b32 v2, 3, v1\nv_lshlrev_b32 v2, 2, v2\nv_and_b32 v3, 3, v1\nv_or_b32 v2, v2, v3\nv_lshlrev_b32 v2, 4, v2")
    a("v_and_b32 v12, 7, v1\nv_lshlrev_b32 v12, 3, v12\nv_lshrrev_b32 v3, 5, v1\nv_lshl_or_b32 v12, v3, 1, v12\nv_bfe_u32 v3, v1, 4, 1\nv_lshl_or_b32 v12, v3, 2, v12")
    a(f"s_lshl_b32 s40, s3, 6\ns_add_u32 s40, s40, {B+OV}\nv_add_u32 v12, s40, v12")
    MLR = 16; OR_ = 20
    oloads = [(OR_ + 4*i, 4, 0, 1024*i) for i in range(4)]
    lds_wait(C_TO, tco, 10)
    if ok > 1:
        def mko(sb, wk):
            a(f"buffer_load_dwordx4 v[{sb}:{sb+3}], v2, s[4:7], s{wk[1]} offen sc1")
            for i in range(4): a(f"buffer_load_dwordx4 v[{sb+4+4*i}:{sb+7+4*i}], v4, s[4:7], s{wk[0]} offen offset:{1024*i} sc1")
        a("s_mov_b32 s43, 0")
        ppoll(mko, 5, 20, [50, 51], MLR, 72, ok, ogap, 12, 10, step=ostep)
        stamp(7)
    else:
        def pre_o():
            poll(oloads, [50], None, 12, 10, parts="issue")
        poll([(MLR, 2, 0, 0)], [51], list(range(MLR, MLR+4)), 12, 10, pre=pre_o, first_wait=4, wk0=47, slot=12)
    allreduce("v_max_f32", MLR+2, 10, lo=(8, 2, 1))
    a(f"v_sub_f32 v{MLR}, v{MLR}, v{MLR+2}\nv_mul_f32 v{MLR}, s41, v{MLR}\nv_exp_f32 v{MLR}, v{MLR}")
    a(f"v_mul_f32 v{MLR+1}, v{MLR}, v{MLR+1}")
    allreduce("v_add_f32", MLR+1, 10, lo=(8, 2, 1))
    a(f"v_rcp_f32 v{MLR+1}, v{MLR+1}")
    a(f"v_mul_f32 v{MLR}, v{MLR}, v{MLR+1}")
    if ok == 1:
        poll(oloads, [50], list(range(OR_, OR_+16)), 12, 10, parts="check")
        stamp(7)
    for r in range(4): a(f"v_mul_f32_dpp v{40+r}, v{MLR}, v{OR_+r} quad_perm:[0,0,0,0] row_mask:0xf bank_mask:0xf")
    for i in range(1, 4):
        for r in range(4): a(f"v_fmac_f32_dpp v{40+r}, v{MLR}, v{OR_+4*i+r} quad_perm:[{i},{i},{i},{i}] row_mask:0xf bank_mask:0xf")
    tred4(40)
    a("v_add_f32_dpp v40, v40, v40 row_ror:8 row_mask:0xf bank_mask:0xf")
    a("v_cvt_pk_bf16_f32 v40, v40, v40")
    a("ds_write_b16 v12, v40")
    signal(C_OV)
    stamp(8)
    a("s_branch L_fin")

    a.label("L_CF")
    if not redf: a("s_cmp_eq_u32 s3, 3\ns_cbranch_scc1 L_fin")
    get_rec(16)
    a("s_cmp_ge_u32 s3, 2\ns_cbranch_scc1 L_RED")
    f_ids()
    a("s_cmp_eq_u32 s3, 1\ns_cbranch_scc1 L_CF1")
    a("s_cmp_eq_u32 s54, 0\ns_cbranch_scc1 L_fin")
    a("v_lshrrev_b32 v11, 3, v1\nv_lshlrev_b32 v11, 10, v11\nv_and_b32 v10, 7, v1\nv_lshl_or_b32 v11, v10, 4, v11\nv_mov_b32 v13, 0xff")
    a(f"s_sub_u32 s51, s61, 4\ns_lshl_b32 s51, s51, 12\ns_and_b32 s40, s62, 7\ns_lshl_b32 s40, s40, 7\ns_add_u32 s51, s51, s40\ns_add_u32 s51, s51, {MQ2}")
    a(f"v_and_b32 v12, 0x1f0, v4\nv_add_u32 v12, {B+QBI}, v12")
    lds_wait(C_K, 4, 10, extra=GPRD)
    gemv1_reduce(11, 51, 8, 13, gonly=True)
    stamp(6)
    a("s_branch L_fin")
    a.label("L_CF1")
    a("s_lshl_b32 s40, s55, 5\nv_add_u32 v11, s40, v1")
    a("v_mul_u32_u24 v12, 4682, v11\nv_lshrrev_b32 v12, 16, v12\nv_mul_u32_u24 v13, 14, v12\nv_sub_u32 v11, v11, v13")
    a("v_lshlrev_b32 v12, 10, v12\nv_lshl_or_b32 v11, v11, 4, v12\nv_mov_b32 v13, 0x3ff")
    a(f"s_sub_u32 s40, s61, 4\ns_lshl_b32 s50, s40, 14\ns_add_u32 s50, s50, {MH}\ns_lshl_b32 s49, s40, 12\ns_add_u32 s49, s49, {MH2 - 13*1024}")
    a("s_cmp_ge_u32 s57, 2\ns_cselect_b32 s51, s49, s50")
    a("s_and_b32 s40, s57, 1\ns_lshl_b32 s40, s40, 9\ns_add_u32 s51, s51, s40\ns_lshl_b32 s40, s56, 8\ns_add_u32 s51, s51, s40")
    a("s_lshr_b32 s41, s62, 1\ns_lshl_b32 s40, s41, 10\ns_add_u32 s50, s50, s40\ns_add_u32 s49, s49, s40")
    a("s_mov_b32 s52, 0x3fff3fff\ns_mov_b32 s53, 0x3fff3fff")
    a("v_lshlrev_b32 v2, 1, v7\nv_or_b32 v3, 1, v2")
    for r in (2, 3): a(f"v_mul_u32_u24 v5, 37, v{r}\nv_lshrrev_b32 v5, 8, v5\nv_add_lshl_u32 v{r}, v{r}, v5, 2\nv_add_u32 v{r}, {B+OV}, v{r}")
    a("s_mul_i32 s41, s41, 14\nv_add_u32 v10, s41, v7\nv_cmp_lt_u32 vcc, 191, v10\ns_mov_b64 s[56:57], vcc")
    a(f"v_and_b32 v12, 0x1f0, v4\nv_add_u32 v12, {B+GP}, v12")
    lds_wait(C_G, 4, 10, extra=GPRD)
    gemv1_reduce(11, 51, 10, 13)
    stamp(9)
    lds_wait(C_TO, tco, 10)
    hl = [(16, 4, 0, 0), "\n".join(f"v_mov_b32 v{20+i}, s{34+i}" for i in range(4)), "s_and_saveexec_b64 s[58:59], s[56:57]\ns_cbranch_execz 2", (20, 4, 1, 0), "s_mov_b64 exec, s[58:59]"]
    if hk > 1:
        a("s_sub_u32 s40, s50, s49\nv_add_u32 v14, s40, v4\nv_cndmask_b32 v14, v14, v4, s[56:57]")
        def mkh(sb, wk):
            a(f"buffer_load_dwordx4 v[{sb}:{sb+3}], v4, s[4:7], s{wk[0]} offen sc1")
            a(f"buffer_load_dwordx4 v[{sb+4}:{sb+7}], v14, s[4:7], s{wk[1]} offen sc1")
        a("s_mov_b32 s43, 0")
        ppoll(mkh, 2, 8, [50, 49], 16, 40, hk, hgap, 10, 10, lanemask="s[52:53]", step=hstep)
        a("s_mov_b64 exec, s[56:57]")
    else:
        poll(hl, [50, 49], list(range(16, 24)), 10, 10, lanemask="s[52:53]", delay=dh, slp=4)
    a("v_pk_add_f32 v[16:17], v[16:17], v[20:21]\nv_pk_add_f32 v[18:19], v[18:19], v[22:23]")
    a("s_mov_b64 exec, -1")
    stamp(7)
    swapred("v_add_f32", 32, [16, 17, 18, 19], 20)
    a("v_cvt_pk_bf16_f32 v20, v16, v17\nv_cvt_pk_bf16_f32 v21, v18, v19")
    a("v_mov_b32 v30, v20\nv_mov_b32 v31, v21")
    a("v_permlane16_swap_b32 v20, v30\nv_permlane16_swap_b32 v21, v31")
    unpack(16, 20); unpack(18, 21)
    k0 = 0.7978845608028654; k1 = 0.044715
    a(f"s_mov_b32 s40, {f32(-2*LOG2E*k0*k1)}\nv_mov_b32 v28, {f32(-2*LOG2E*k0)}")
    for r in range(4): a(f"v_mul_f32 v{20+r}, v{16+r}, v{16+r}")
    for r in range(4): a(f"v_fma_f32 v{20+r}, v{20+r}, s40, v28")
    for r in range(4): a(f"v_mul_f32 v{20+r}, v{20+r}, v{16+r}")
    for r in range(4): a(f"v_exp_f32 v{20+r}, v{20+r}")
    unpack(32, 30); unpack(34, 31)
    for r in range(4): a(f"v_add_f32 v{20+r}, 1.0, v{20+r}")
    for r in range(4): a(f"v_rcp_f32 v{20+r}, v{20+r}")
    a("v_mov_b32 v9, 2")
    for r in range(4): a(f"v_mul_f32 v{20+r}, v{20+r}, v{16+r}")
    a("v_cvt_pk_bf16_f32 v24, v20, v21\nv_cvt_pk_bf16_f32 v25, v22, v23")
    unpack(20, 24); unpack(22, 25)
    for r in range(4): a(f"v_mul_f32 v{20+r}, v{20+r}, v{32+r}")
    a("v_cvt_pk_bf16_f32 v24, v20, v21\nv_cvt_pk_bf16_f32 v25, v22, v23")
    a("s_mov_b64 exec, 0x3fff")
    a("ds_write_b32 v2, v24\nds_write_b32 v3, v25")
    signal(C_OV)
    stamp(8)
    a("s_branch L_fin")

    a.label("L_RED")
    if nat: a("s_barrier")
    a("s_load_dwordx2 s[24:25], s[0:1], 72\ns_mov_b32 s26, 2048\ns_mov_b32 s27, 0x20000")
    if redf: a("s_lshl_b32 s60, s60, 1\ns_add_u32 s60, s60, s3\ns_sub_u32 s60, s60, 258")
    a("s_lshl_b32 s52, s60, 3")
    a("v_lshrrev_b32 v3, 5, v1\nv_bfe_u32 v5, v1, 4, 1\nv_lshl_or_b32 v3, v5, 1, v3\nv_lshlrev_b32 v3, 1, v3")
    if nat: a("s_waitcnt lgkmcnt(0)")
    a("v_mov_b32 v24, 0\nbuffer_load_short_d16_hi v24, v3, s[8:11], s52 offen" + (" sc1" if nat == 2 else ""))
    a("v_mov_b32 v26, s38\nv_mov_b32 v27, s39")
    if xf: a(f"s_lshl_b32 s53, s61, 7\ns_add_u32 s53, s53, {MF}\ns_lshl_b32 s54, s62, 2\ns_add_u32 s54, s54, s53\nv_lshlrev_b32 v5, 2, v1")
    a(f"s_lshl_b32 s50, s60, 4\ns_add_u32 s50, s50, {M3}\ns_add_u32 s51, s50, 0x40000\nv_lshlrev_b32 v2, 12, v1")
    a("s_waitcnt vmcnt(0)" if nat else "s_waitcnt lgkmcnt(0)\ns_barrier")
    stamp(9)
    if xf:
        a("s_mov_b64 exec, 1")
        a("buffer_store_dword v26, off, s[4:7], s54")
        a("s_mov_b32 exec_lo, -1\ns_mov_b32 s44, 0")
        a.label("L_xf")
        a("buffer_load_dword v28, v5, s[4:7], s53 offen sc1")
        a("s_add_u32 s44, s44, 1")
        a("s_waitcnt vmcnt(0)")
        a("v_cmp_eq_u32 vcc, s38, v28")
        a(f"s_bcnt1_i32_b64 s45, vcc\ns_cmp_ge_u32 s45, {xneed}\ns_cbranch_scc1 L_xf_ok")
        a(f"s_cmp_lt_u32 s44, {xmax}\ns_cbranch_scc1 L_xf")
        a.label("L_xf_ok")
        a("s_mov_b64 exec, -1")
    if rk == 1:
        poll([(16, 2, 0, 0), (20, 2, 1, 0)], [50, 51], list(range(16, 24)), 10, 10, delay=dr, slp=rsleep, dual=False)
    else:
        for i in range(4): a(f"s_and_b32 s{34+i}, s{30+i}, 0x3ff")
        def rissue(k):
            a(f"buffer_load_dwordx4 v[{32+8*k}:{35+8*k}], v2, s[4:7], s50 offen sc1")
            a(f"buffer_load_dwordx4 v[{36+8*k}:{39+8*k}], v2, s[4:7], s51 offen sc1")
        backoff(dr)
        stamp(14)
        for k in range(rk):
            if k: backoff(rgap)
            rissue(k)
        a("s_mov_b32 s44, 0")
        a.label("L_rp")
        for k in range(rk):
            a(f"s_waitcnt vmcnt({2*(rk-1)})")
            for i in range(8): a(f"v_xor_b32 v{16+i}, s{34 + i % 4}, v{32+8*k+i}")
            a("v_or3_b32 v10, v16, v17, v18\nv_or3_b32 v10, v10, v19, v20\nv_or3_b32 v10, v10, v21, v22\nv_or_b32 v10, v10, v23\nv_and_b32 v10, 0x3ff, v10")
            a("v_cmp_ne_u32 vcc, 0, v10\ns_and_b64 exec, vcc, exec\ns_cbranch_scc0 L_rp_ok")
            rissue(k)
        a(f"s_add_u32 s44, s44, 1\ns_cmp_lt_u32 s44, {SPIN_MAX}\ns_cbranch_scc1 L_rp")
        a.label("L_rp_ok")
        a("s_mov_b64 exec, -1")
    stamp(10)
    a("v_permlane32_swap_b32 v16, v17\nv_permlane32_swap_b32 v18, v19\nv_permlane32_swap_b32 v20, v21\nv_permlane32_swap_b32 v22, v23")
    a("v_add_f32 v16, v16, v17\nv_add_f32 v18, v18, v19\nv_add_f32 v20, v20, v21\nv_add_f32 v22, v22, v23")
    a("v_permlane16_swap_b32 v16, v18\nv_permlane16_swap_b32 v20, v22")
    a("v_add_f32 v16, v16, v18\nv_add_f32 v20, v20, v22")
    for k in (8, 4, 2, 1):
        for r in (16, 20): a(f"v_add_f32_dpp v{r}, v{r}, v{r} row_ror:{k} row_mask:0xf bank_mask:0xf")
    a("v_cvt_pk_bf16_f32 v16, v16, v20")
    a("v_lshlrev_b32 v17, 16, v16\nv_and_b32 v18, 0xffff0000, v16")
    a("v_add_f32 v17, v17, v24\nv_cvt_pk_bf16_f32 v17, v17, v17\nv_lshlrev_b32 v17, 16, v17")
    a("v_add_f32 v16, v17, v18\nv_cvt_pk_bf16_f32 v16, v16, v16")
    a("s_mov_b32 exec_lo, 0x10001\ns_mov_b32 exec_hi, 0x10001")
    a("buffer_store_short v16, v3, s[24:27], s52 offen" + {0: "", 1: " sc1", 2: " nt"}[osc])
    a("s_mov_b64 exec, 1")
    a("s_cmp_lg_u32 s60, 0\ns_cbranch_scc1 L_fin")
    a("buffer_store_dwordx2 v[26:27], off, s[4:7], 0" + (" sc0 sc1" if esc else ""))
    a("s_branch L_fin")

    a.label("L_fin")
    stamp(11)
    stamp_out()
    a.label("L_end")
    a("s_endpgm")
    a.raw('.section .rodata,"a"'); a.raw(".p2align 6"); a.raw(f".amdhsa_kernel {NAME}_kernel")
    nv = 128 if v128 else 192
    a.raw(f"  .amdhsa_next_free_vgpr {nv}"); a.raw(f"  .amdhsa_next_free_sgpr {100 if stamps else 64}"); a.raw(f"  .amdhsa_accum_offset {nv}")
    a.raw("  .amdhsa_group_segment_fixed_size 0"); a.raw("  .amdhsa_kernarg_size 96"); a.raw("  .amdhsa_user_sgpr_count 2")
    a.raw("  .amdhsa_user_sgpr_kernarg_segment_ptr 1"); a.raw("  .amdhsa_system_sgpr_workgroup_id_x 1"); a.raw(".end_amdhsa_kernel")
    return a.text()

if __name__ == "__main__":
    for spec in sys.argv[1:]:
        nm, _, kv = spec.partition(":")
        kw = {}
        for p in kv.split(","):
            if p:
                k, v = p.split("="); kw[k] = int(v)
        open(nm + ".s", "w").write(gen(**kw))
        open(nm + "_st.s", "w").write(gen(stamps=True, **kw))
```

```python
import sys, re
import gen16 as gen14
kw = dict(na=12, wa=5, wf=5, v128=1, dr=0, xf=1, esc=1, ostep=3, hstep=2, tq=7, to=5, th=1, thm=4)
for p in sys.argv[2:]:
    k, v = p.split("="); kw[k] = int(v)
t = gen14.gen(**kw)
doc = """;
"""
notes = {
 "L_Cstub:": "; ---- C waves: wave 0 fetches x and the epoch",
 "L_SA:": "; ---- S waves, attention group: wq rows -> K,V (LDS DMA) -> wo tile, then the wo GEMV",
 "L_SF:": "; ---- S waves, FFN group: gate/up tile -> w_down tile",
 "L_SM:": "; ---- S waves, FFN group (mixed): wq rows 768.. -> gate/up tile -> w_down tile",
 "L_Sfin:": "; ---- w_down GEMV and output partial",
 "L_C0:": "; ---- LayerNorm statistics (two-pass, bf16 rounding steps of the reference)",
 "L_Cj:": "; ---- attention group C waves: publish q partial, gather q, QK^T, softmax (true max), PV, publish, combine",
 "L_CF:": "; ---- FFN group C waves: publish partials, gather gate/up, GELU(tanh) * up",
 "L_RED:": "; ---- final reduction of 4 output columns: x + attention + FFN",
}
out = []
for l in t.split("\n"):
    if l in notes: out.append(notes[l])
    out.append(l)
    if l.startswith("; @launch"): out.append(doc.rstrip("\n"))
open(sys.argv[1], "w").write("\n".join(out))
```

```python
import sys, struct
from asmlib import Asm
NAME = "parallel_sum__sliding_block_cached__glu_gated_geglu__decode"
def f32(x): return "0x%08x" % struct.unpack("<I", struct.pack("<f", x))[0]

MQ = 0x10000; MML = 0x20000; MH = 0x30000; MO = 0x40000; GD = 0xC0000; MQ2 = 0x24000; MH2 = 0x28000; MF = 0x2C000; M3 = 0x180000
STAMP = 128 << 20
L_K = 0; L_V = 32768; B = 65536
XN = 0; GP = 1024; QBI = 3072; SCX = 5120; OV = 7168; CO = 7296
LDS_BYTES = B + 7360
C_G, C_K, C_V, C_QB, C_REC, C_SC, C_OV, C_TQ, C_TO = 0, 4, 8, 12, 16, 32, 36, 40, 44
LOG2E = 1.4426950408889634
SPIN_MAX = 200000

def gen(nt=True, stamps=False, wa=6, wf=6, sleep=2, dq=0, do=0, dh=0, dr=12, rsleep=1, local=1, gper=4, cst=10, wkv=None, ww=None, rot=1, tq=6, to=4, th=1, thm=0, wm=8, xm=1, tcq=4, tco=4, redf=0, wwf=None, nog=0, pl1=0, w0=None, n0=8, w0f=None, n0f=8, wn=2, rk=1, rgap=5, hk=3, hgap=10, ok=2, ogap=14, bare=0, bump=0, fw=5, na=12, cstm=10, pr=0, ack=0, v128=0, ostep=0, hstep=0, nat=0, xf=0, xmax=16, xneed=32, tlb=0, eba=0, ebf=0, osc=0, esc=0, pg=0, m3=0):
    a = Asm()
    NT = " nt" if nt else ""
    hdr = open("cdna_kernels/" + NAME + ".s.ref").read().split("\n")
    for l in hdr:
        if l.startswith("; @launch"): break
        a.raw(l)
    a.raw(f"; @launch grid=(256,1,1) block=(512,1,1) lds={LDS_BYTES}")
    a.raw('.amdgcn_target "amdgcn-amd-amdhsa--gfx950"')
    a.raw(".text"); a.raw(f".globl {NAME}_kernel"); a.raw(".p2align 8"); a.raw(f".type {NAME}_kernel,@function"); a.raw(f"{NAME}_kernel:")
    NST = 15
    uid = [0]
    def stamp(i):
        if stamps: a(f"s_memrealtime s[{64+2*i}:{65+2*i}]")
    def stamp_out():
        if not stamps: return
        a("s_mov_b64 exec, -1")
        a("s_waitcnt lgkmcnt(0)")
        for i in range(2 * NST): a(f"v_writelane_b32 v3, s{64+i}, {i}")
        a(f"s_lshl_b32 s40, s2, 3\ns_add_u32 s40, s40, s3\ns_mul_i32 s40, s40, {NST*8}\ns_add_u32 s40, s40, {STAMP}")
        a(f"v_lshlrev_b32 v4, 2, v1\nv_cmp_gt_u32 vcc, {2*NST}, v1\ns_and_saveexec_b64 s[42:43], vcc")
        a("buffer_store_dword v3, v4, s[4:7], s40 offen")
    def swapred(op, kind, regs, tmp):
        for i, r in enumerate(regs): a(f"v_mov_b32 v{tmp+i}, v{r}")
        for i, r in enumerate(regs): a(f"v_permlane{kind}_swap_b32 v{r}, v{tmp+i}")
        for i, r in enumerate(regs): a(f"{op} v{r}, v{r}, v{tmp+i}")
    def allreduce(op, v, t, lo=(8, 4, 2, 1)):
        for k in lo: a(f"{op}_dpp v{v}, v{v}, v{v} row_ror:{k} row_mask:0xf bank_mask:0xf")
        swapred(op, 16, [v], t); swapred(op, 32, [v], t)
    def tred4(r):
        a(f"v_permlane32_swap_b32 v{r}, v{r+1}\nv_permlane32_swap_b32 v{r+2}, v{r+3}")
        a(f"v_add_f32 v{r}, v{r}, v{r+1}\nv_add_f32 v{r+2}, v{r+2}, v{r+3}")
        a(f"v_permlane16_swap_b32 v{r}, v{r+2}")
        a(f"v_add_f32 v{r}, v{r}, v{r+2}")
    def unpack(dst, src):
        a(f"v_lshlrev_b32 v{dst}, 16, v{src}\nv_and_b32 v{dst+1}, 0xffff0000, v{src}")
    def mk_tags():
        a("s_and_b32 s30, s38, 0xfff\ns_bfe_u32 s31, s38, 0xc000c\ns_and_b32 s32, s39, 0xfff\ns_bfe_u32 s33, s39, 0xc000c")
    def tag_regs(regs, vmask, bits, rn=True):
        if rn:
            for r in regs: a(f"v_add_u32 v{r}, {1 << (bits-1)}, v{r}")
        for i, r in enumerate(regs): a(f"v_bfi_b32 v{r}, v{vmask}, s{30 + i % 4}, v{r}")
    def backoff(n):
        while n > 0:
            k = min(n, 127); a(f"s_sleep {k}"); n -= k
    def publish(vd, voff, soff, gonly=False):
        if gonly:
            a(f"buffer_store_dwordx4 v[{vd}:{vd+3}], v{voff}, s[4:7], s{soff} offen sc1"); return
        if local:
            a(f"buffer_store_dwordx4 v[{vd}:{vd+3}], v{voff}, s[4:7], s{soff} offen")
        if nog: return
        a(f"s_add_u32 s45, s{soff}, {GD}")
        a(f"buffer_store_dwordx4 v[{vd}:{vd+3}], v{voff}, s[4:7], s45 offen sc1")
    def poll(loads, bases, regs, bits, t, lanemask=None, pre=None, delay=0, slot=13, slp=None, dual=True, wk0=46, first_wait=0, parts=None):
        uid[0] += 1
        L = f"L_poll{uid[0]}"
        slp = sleep if slp is None else slp
        m = (1 << bits) - 1
        for i in range(4): a(f"s_and_b32 s{34+i}, s{30+i}, {m}")
        def issue(first=False):
            for ld in loads:
                if isinstance(ld, str): a(ld); continue
                vd, vo, bi, imm = ld
                a(f"buffer_load_dwordx4 v[{vd}:{vd+3}], v{vo}, s[4:7], {bi if isinstance(bi, str) else 's%d' % wk[bi]} offen offset:{imm} sc1")
        if dual:
            wk = [wk0 + i for i in range(len(bases))]
            for i, b in enumerate(bases):
                a(f"s_mov_b32 s{wk[i]}, s{b}" if local else f"s_add_u32 s{wk[i]}, s{b}, {GD}")
        else: wk = bases
        if parts == "issue":
            if slot == 13: stamp(14)
            issue(True); uid[0] -= 1
            return
        backoff(delay)
        if slot == 13 and parts is None: stamp(14)
        if lanemask is not None: a(f"s_mov_b64 exec, {lanemask}")
        if parts == "check":
            a("s_mov_b32 s44, 0")
            a(f"s_branch {L}_w")
        elif pre is not None:
            issue(True); pre()
            a("s_mov_b32 s44, 0")
            if first_wait:
                a(f"s_waitcnt vmcnt({first_wait})")
                a(f"s_branch {L}_c")
            else:
                a(f"s_branch {L}_w")
        else:
            a("s_mov_b32 s44, 0")
        a.label(L)
        issue()
        a.label(L + "_w")
        a("s_waitcnt vmcnt(0)")
        a.label(L + "_c")
        for i, r in enumerate(regs): a(f"v_xor_b32 v{r}, s{34 + i % 4}, v{r}")
        a(f"v_or3_b32 v{t}, v{regs[0]}, v{regs[1]}, v{regs[2]}")
        rest = regs[3:]
        while len(rest) >= 2:
            a(f"v_or3_b32 v{t}, v{t}, v{rest[0]}, v{rest[1]}"); rest = rest[2:]
        if rest: a(f"v_or_b32 v{t}, v{t}, v{rest[0]}")
        a(f"v_and_b32 v{t}, {m}, v{t}")
        a(f"v_cmp_ne_u32 vcc, 0, v{t}")
        a("s_and_b64 exec, vcc, exec")
        a(f"s_cbranch_scc0 {L}_ok")
        if slp: a(f"s_sleep {slp}")
        a("s_add_u32 s44, s44, 1")
        if dual and local:
            a(f"s_and_b32 s45, s44, {gper-1}\ns_cmp_eq_u32 s45, {gper-1}\ns_cselect_b32 s45, {GD}, 0")
            for i, b in enumerate(bases): a(f"s_add_u32 s{wk[i]}, s{b}, s45")
        a(f"s_cmp_lt_u32 s44, {SPIN_MAX}\ns_cbranch_scc1 {L}")
        a.label(L + "_ok")
        a("s_mov_b64 exec, -1")
        if stamps: a(f"s_mul_i32 s{64+2*slot}, s44, 100\ns_add_u32 s{64+2*slot}, s{64+2*slot}, s64\ns_addc_u32 s{65+2*slot}, s65, 0")
    def ppoll(mk, nld, nreg, bases, R, S, k, gap, bits, t, lanemask=None, step=0):
        uid[0] += 1
        L = f"L_pp{uid[0]}"
        m = (1 << bits) - 1
        for i in range(4): a(f"s_and_b32 s{34+i}, s{30+i}, {m}")
        wk = [46 + i for i in range(len(bases))]
        for i, b in enumerate(bases): a(f"s_mov_b32 s{wk[i]}, s{b}" if local else f"s_add_u32 s{wk[i]}, s{b}, {GD}")
        if lanemask is not None: a(f"s_mov_b64 exec, {lanemask}")
        stamp(14)
        a("s_waitcnt vmcnt(0)") if False else None
        for j in range(k):
            if j and step: lds_wait(C_TO, 4 * (j + 1), t)
            elif j: backoff(gap)
            mk(S + j * nreg, wk)
        a("s_mov_b32 s44, 0")
        a.label(L)
        regs = list(range(R, R + nreg))
        for j in range(k):
            a(f"s_waitcnt vmcnt({nld*(k-1)})")
            for i in range(nreg): a(f"v_xor_b32 v{R+i}, s{34 + i % 4}, v{S + j*nreg + i}")
            a(f"v_or3_b32 v{t}, v{regs[0]}, v{regs[1]}, v{regs[2]}")
            rest = regs[3:]
            while len(rest) >= 2:
                a(f"v_or3_b32 v{t}, v{t}, v{rest[0]}, v{rest[1]}"); rest = rest[2:]
            if rest: a(f"v_or_b32 v{t}, v{t}, v{rest[0]}")
            a(f"v_and_b32 v{t}, {m}, v{t}\nv_cmp_ne_u32 vcc, 0, v{t}\ns_and_b64 exec, vcc, exec\ns_cbranch_scc0 {L}_ok")
            if stamps: a("s_add_u32 s43, s43, 1")
            mk(S + j * nreg, wk)
        a("s_add_u32 s44, s44, 1")
        a(f"s_and_b32 s45, s44, 1\ns_cselect_b32 s45, {GD}, 0" if local else f"s_mov_b32 s45, {GD}")
        for i, b in enumerate(bases): a(f"s_add_u32 s{wk[i]}, s{b}, s45")
        a(f"s_cmp_lt_u32 s44, {SPIN_MAX}\ns_cbranch_scc1 {L}")
        a.label(L + "_ok")
        a("s_mov_b64 exec, -1")
        if stamps: a(f"s_mul_i32 s90, s43, 100\ns_add_u32 s90, s90, s64\ns_addc_u32 s91, s65, 0")
    def lds_wait(off, val, t, slp=1, extra=None):
        uid[0] += 1
        L = f"L_lw{uid[0]}"
        a("s_mov_b32 s44, 0")
        a.label(L)
        a(f"ds_read_b32 v{t}, v8 offset:{CO + off}")
        if extra: a(extra)
        a("s_waitcnt lgkmcnt(0)")
        a(f"v_readfirstlane_b32 s45, v{t}")
        a(f"s_cmp_ge_u32 s45, {val}\ns_cbranch_scc1 {L}_ok")
        if slp: a(f"s_sleep {slp}")
        a(f"s_add_u32 s44, s44, 1\ns_cmp_lt_u32 s44, {SPIN_MAX*8}\ns_cbranch_scc1 {L}")
        a.label(L + "_ok")
    def signal(off):
        a("s_mov_b64 exec, 1")
        a(f"ds_add_u32 v8, v9 offset:{CO+off}")
        a("s_mov_b64 exec, -1")
    def get_rec(r):
        uid[0] += 1
        L = f"L_tg{uid[0]}"
        a("s_mov_b32 s44, 0")
        a.label(L)
        a(f"ds_read_b128 v[{r}:{r+3}], v8 offset:{CO+C_REC}")
        a("s_waitcnt lgkmcnt(0)")
        a(f"v_readfirstlane_b32 s45, v{r+2}\nv_readfirstlane_b32 s38, v{r}\nv_readfirstlane_b32 s39, v{r+1}")
        a(f"s_bitcmp1_b32 s45, 0\ns_cbranch_scc1 {L}_ok")
        a(f"s_sleep 1\ns_add_u32 s44, s44, 1\ns_cmp_lt_u32 s44, {SPIN_MAX*8}\ns_cbranch_scc1 {L}")
        a.label(L + "_ok")
        mk_tags()
    def f_ids():
        a("s_cmp_ge_u32 s62, 24\ns_cselect_b32 s54, 1, 0")
        a("s_lshr_b32 s55, s62, 2\ns_min_u32 s55, s55, 6")
        a("s_add_u32 s40, s54, 1\ns_lshr_b32 s56, s62, s40\ns_and_b32 s56, s56, 1")
        a("s_lshl_b32 s40, s54, 1\ns_add_u32 s40, s40, 1\ns_and_b32 s57, s62, s40")

    def common():
        if stamps:
            for i in range(1, NST): a(f"s_mov_b64 s[{64+2*i}:{65+2*i}], 0")
        a("s_mov_b32 s6, 0x10000000\ns_mov_b32 s7, 0x20000\ns_mov_b32 s10, 2048\ns_mov_b32 s11, 0x20000")
        a("s_lshl_b32 s60, s61, 5\ns_add_u32 s60, s60, s62")
        a(f"v_mov_b32 v8, {B}\nv_mov_b32 v9, 1")
    FW = fw
    NM = 64 - 4 * na
    G1 = 64; W2 = 64 if v128 else 128; SEL = 48; ACC = 56; AT = 40; XR = 16; OWN = 32
    AC2 = 52
    def mk_sel():
        a("v_and_b32 v60, 8, v7\nv_cmp_eq_u32 vcc, 0, v60")
        a("v_mov_b32 v60, 0x0c0c0302\nv_mov_b32 v61, 0x0c0c0100\nv_cndmask_b32 v60, v60, v61, vcc")
        a("v_and_b32 v61, 1, v7\nv_lshlrev_b32 v61, 4, v61\nv_alignbit_b32 v60, v60, v60, v61")
        a("v_bfe_u32 v62, v7, 1, 2\nv_mov_b32 v63, 0x0c0c0c0c")
        for d in range(4):
            a(f"v_cmp_eq_u32 vcc, {d}, v62")
            a(f"v_cndmask_b32 v{SEL+d}, v63, v60, vcc")
    def sp_perm(n):
        if n & 1: return
        at = AT + 4 * ((n >> 1) & 1)
        for d in range(4): a(f"v_perm_b32 v{at+d}, v{XR + n // 2}, v{XR + n // 2}, v{SEL+d}")
    def sp_mfma(breg, n, first):
        at = AT + 4 * ((n >> 1) & 1)
        ac = AC2 if n & 1 else ACC
        c = "0" if (n < 2 or first) else f"v[{ac}:{ac+3}]"
        a(f"v_mfma_f32_16x16x32_bf16 v[{ac}:{ac+3}], v[{at}:{at+3}], v[{breg}:{breg+3}], {c}")
    def sp_merge():
        a(f"v_permlane32_swap_b32 v{AC2}, v{AC2+1}\nv_permlane32_swap_b32 v{AC2+2}, v{AC2+3}")
        a(f"v_add_f32 v{ACC}, v{ACC}, v{AC2+1}\nv_add_f32 v{ACC+2}, v{ACC+2}, v{AC2+3}")
        a(f"v_permlane32_swap_b32 v{AC2+1}, v{AC2}\nv_permlane32_swap_b32 v{AC2+3}, v{AC2+2}")
        a(f"v_add_f32 v{ACC+1}, v{ACC+1}, v{AC2}\nv_add_f32 v{ACC+3}, v{ACC+3}, v{AC2+2}")
    def stream(kind, win):
        NG = {"A": na, "F": 32, "M": NM + 16}[kind]
        stride = 8192 if kind == "A" else 7168
        ops = [("G", n) for n in range(NG)]
        ops.insert(FW, ("X", 0))
        if kind == "A": ops += [("K", n) for n in range(8)] + [("V", n) for n in range(8)]
        ops += [("W", n) for n in range(16 if kind == "A" else 14)]
        def issue(op):
            k, n = op
            if k == "G":
                r = G1 + 4 * (n % 16)
                if kind == "M" and n >= NM:
                    if n > NM: a("s_add_u32 s50, s50, 7168")
                    a(f"buffer_load_dwordx4 v[{r}:{r+3}], v10, s[20:23], s50 offen{NT}")
                else:
                    a("s_add_u32 s51, s51, s47")
                    a(f"buffer_load_dwordx4 v[{r}:{r+3}], v2, s[12:15], s51 offen{NT}")
            elif k == "X":
                a("v_lshlrev_b32 v60, 2, v1")
                if kind == "M":
                    a("s_lshl_b32 s42, s57, 2\ns_add_u32 s42, s42, s46")
                    a(f"s_sub_u32 s41, s61, 4\ns_mul_i32 s50, s41, 7\ns_add_u32 s50, s50, 6\ns_lshl_b32 s50, s50, 8\ns_mul_i32 s40, s42, {64*7168}\ns_add_u32 s50, s50, s40")
                    a("s_lshl_b32 s42, s42, 7\ns_sub_u32 s42, s42, 128\ns_sub_u32 s42, s42, s49")
                    a("v_mov_b32 v62, s42\nv_cmp_gt_u32 vcc, 32, v1\nv_cndmask_b32 v61, v62, 0, vcc\nv_add_u32 v60, v60, v61\nv_add_u32 v60, s49, v60")
                    a(f"buffer_load_dword v{OWN}, v60, s[8:11], 0 offen")
                    a(f"v_mul_u32_u24 v10, {16*7168}, v6\nv_lshl_add_u32 v10, v7, 4, v10")
                    a("s_cmp_eq_u32 s56, 1\ns_cselect_b32 s20, s26, s24\ns_cselect_b32 s21, s27, s25\ns_mov_b32 s22, 0x700000\ns_mov_b32 s23, 0x20000")
                else:
                    a(f"buffer_load_dword v{OWN}, v60, s[8:11], s49 offen")
            elif k in "KV":
                a(f"s_add_u32 s53, s53, 1024\ns_and_b32 s53, s53, 0x1c00")
                if k == "K": a("s_bfe_u32 s40, s53, 0x2000a\ns_lshl_b32 s40, s40, 6")
                else: a("s_bfe_u32 s40, s53, 0x1000a\ns_lshl_b32 s40, s40, 7")
                a("s_or_b32 s40, s40, s53")
                a(f"v_xor_b32 v{12+(n&1)}, s40, v{10 if k == 'K' else 11}")
                a(f"s_add_u32 m0, s53, s{54 if k == 'K' else 55}")
                srd = 20 if k == "K" else 24
                a(f"buffer_load_dwordx4 v{12+(n&1)}, s[{srd}:{srd+3}], s50 offen{NT} lds")
            else:
                if n and n % 2 == 0: a("s_add_u32 s52, s52, 4096")
                a(f"buffer_load_dwordx4 v[{W2+4*n}:{W2+4*n+3}], v3, s[16:19], s52 offen offset:{2048*(n&1)}{NT}")
        def setup_rest():
            common()
            if kind == "A":
                a("s_load_dwordx2 s[16:17], s[0:1], 32\ns_load_dwordx2 s[20:21], s[0:1], 8\ns_load_dwordx2 s[24:25], s[0:1], 16")
                a("s_mov_b32 s18, 0x800000\ns_mov_b32 s22, 0x2000000\ns_mov_b32 s23, 0x20000\ns_mov_b32 s26, 0x2000000\ns_mov_b32 s27, 0x20000")
            else:
                a("s_load_dwordx2 s[16:17], s[0:1], 64\ns_mov_b32 s18, 0x700000")
            a("s_mov_b32 s19, 0x20000")
            a("v_mov_b32 v5, 0x3ff")
            a(f"v_mul_u32_u24 v3, {(16 if kind == 'A' else 14)*2048}, v6\nv_lshl_or_b32 v3, v7, 4, v3")
            a("s_and_b32 s40, s62, 1\ns_lshl_b32 s40, s40, 10\ns_lshl_b32 s41, s46, 8\ns_add_u32 s40, s40, s41\ns_lshr_b32 s41, s60, 1")
            if kind == "A":
                a("s_lshl_b32 s52, s41, 17\ns_add_u32 s52, s52, s40")
                a("v_xor_b32 v10, v7, v6\nv_lshlrev_b32 v10, 4, v10\nv_lshl_or_b32 v10, v6, 8, v10")
                a("v_lshlrev_b32 v11, 1, v6\nv_xor_b32 v11, v7, v11\nv_lshlrev_b32 v11, 4, v11\nv_lshl_or_b32 v11, v6, 8, v11")
                a(f"s_lshl_b32 s50, s61, 23\ns_lshl_b32 s40, s62, 15\ns_add_u32 s50, s50, s40\ns_lshl_b32 s54, s46, 13\ns_add_u32 s50, s50, s54\ns_add_u32 s50, s50, {28672*256}\ns_add_u32 s55, s54, {L_V}")
                a("s_lshl_b32 s53, s62, 10" if rot else "s_mov_b32 s53, 0x1c00")
            else:
                a(f"s_sub_u32 s41, s41, 64\ns_mul_i32 s52, s41, {56*2048}\ns_add_u32 s52, s52, s40")
            mk_sel()
            a("s_waitcnt lgkmcnt(0)")
        def get_x():
            get_rec(60)
            a("v_and_b32 v62, 0xffff0000, v62")
            unpack(34, OWN)
            a("v_sub_f32 v34, v34, v62\nv_sub_f32 v35, v35, v62\nv_cvt_pk_bf16_f32 v36, v34, v35")
            unpack(34, 36)
            a("v_mul_f32 v34, v34, v63\nv_mul_f32 v35, v35, v63\nv_cvt_pk_bf16_f32 v36, v34, v35")
            a(f"s_lshl_b32 s40, s46, 8\ns_add_u32 s40, s40, {B+XN}\nv_lshl_add_u32 v37, v1, 2, s40\nds_write_b32 v37, v36")
            if kind == "A":
                a(f"v_mul_u32_u24 v37, {2*na}, v6\nv_add_u32 v37, s40, v37")
                if na == 12:
                    for i in range(3): a(f"ds_read_b64 v[{XR+2*i}:{XR+2*i+1}], v37 offset:{8*i}")
                else:
                    for i in range(0, na // 2 - 1, 2): a(f"ds_read2_b32 v[{XR+i}:{XR+i+1}], v37 offset0:{i} offset1:{i+1}")
                    if (na // 2) % 2: a(f"ds_read_b32 v{XR+na//2-1}, v37 offset:{4*(na//2-1)}")
            elif kind == "F":
                a("v_lshl_add_u32 v37, v6, 6, s40")
                for i in range(4): a(f"ds_read_b128 v[{XR+4*i}:{XR+4*i+3}], v37 offset:{16*i}")
            else:
                a(f"v_lshl_add_u32 v37, v6, 5, s40\nv_lshl_add_u32 v38, v6, {5 if NM == 16 else 4}, s40")
                for i in range(NM // 8): a(f"ds_read_b128 v[{XR+4*i}:{XR+4*i+3}], v38 offset:{16*i}")
                for i in range(2): a(f"ds_read_b128 v[{XR+NM//2+4*i}:{XR+NM//2+4*i+3}], v37 offset:{16*i + 128}")
            a(f"s_lshl_b32 s40, s46, 9\ns_add_u32 s40, s40, {B+GP}\nv_lshl_add_u32 v33, v7, 1, v6\nv_lshl_add_u32 v33, v33, 4, s40")
            a("s_waitcnt lgkmcnt(0)")
            stamp(2)
        def consume(n):
            if n == 0: get_x()
            sp_perm(n); sp_mfma(G1 + 4 * (n % 16), n, kind == "M" and n in (NM, NM + 1))
            if kind == "M" and n == NM - 1:
                sp_merge()
                a("s_mov_b32 exec_hi, 0")
                a(f"ds_write_b128 v33, v[{ACC}:{ACC+3}] offset:{QBI-GP}")
                signal(C_K)
                stamp(3)
            if n == NG - 1:
                sp_merge()
                a("s_mov_b32 exec_hi, 0")
                a(f"ds_write_b128 v33, v[{ACC}:{ACC+3}]")
                signal(C_G)
                stamp(4)
        nc = 0
        nsig = [0]
        nl = -1
        gidx = {op[1]: i for i, op in enumerate(ops) if op[0] == "G"}
        first = {"A": max(win, w0 or 0), "F": win, "M": wm}[kind]
        for i, op in enumerate(ops):
            if i < FW: continue
            w = win
            if kind == "A" and w0 and i < n0 + w0: w = max(win, min(w0, n0 + w0 - i + win))
            if kind == "F" and w0f and i < n0f: w = w0f
            if kind == "M" and i < NM + 1: w = wm
            if op[0] in "KV" and wkv: w = wkv
            if op[0] == "W" and ww and kind == "A": w = ww
            if op[0] == "W" and wwf and kind != "A": w = wwf
            if w > 10: w = (w // 10) if i % 2 else (w % 10)
            eb = eba if kind == "A" else ebf
            if eb and i >= len(ops) - eb: w = min(8, w + i - (len(ops) - eb) + 1)
            if i - w <= FW <= i: w += 1
            newl = max(nl, i - w)
            if op[0] == "X": newl = nl
            if newl > nl:
                a(f"s_waitcnt vmcnt({i - 1 - newl})")
            evs = list(range(nl + 1, newl + 1)); nl = newl
            if op[0] == "G" and op[1] >= 16:
                while nc <= op[1] - 16: consume(nc); nc += 1
            if op[0] == "W" and v128:
                last = max([g for g in range(NG) if g % 16 == op[1]], default=-1)
                assert last < 0 or gidx[last] <= nl
                while nc <= last: consume(nc); nc += 1
            issue(op)
            if i == max(first, FW):
                setup_rest(); a("s_barrier")
            for e in evs:
                if ops[e] == ("K", 7): signal(C_K); stamp(3)
                if ops[e] == ("V", 7): signal(C_V); stamp(6)
                if kind == "A" and e == na + 1 + tq: signal(C_TQ)
                t0 = to if kind == "A" else (th if kind == "F" else thm)
                st_, kk = (ostep, ok) if kind == "A" else (hstep, hk)
                if ops[e][0] == "W" and ops[e][1] in ([t0 + j * st_ for j in range(kk)] if st_ else [t0]): signal(C_TO); nsig[0] += 1
            k = 0
            while i >= (cst if kind != "M" else min(cst, cstm)) and nl >= FW and nc < NG and gidx[nc] <= nl and k < 3:
                consume(nc); nc += 1; k += 1
        assert nc == NG
        assert nsig[0] == (((ok if ostep else 1) if kind == 'A' else (hk if hstep else 1))), nsig
    X, F, EV = 16, 28, 24
    stamp(0)
    a("s_load_dwordx2 s[12:13], s[0:1], 24\ns_load_dwordx4 s[24:27], s[0:1], 48\ns_load_dwordx2 s[8:9], s[0:1], 0\ns_load_dwordx2 s[4:5], s[0:1], 88")
    a("v_lshrrev_b32 v2, 6, v0\nv_and_b32 v1, 63, v0")
    a("s_cmp_ge_u32 s2, 256\ns_cbranch_scc1 L_end")
    a("v_readfirstlane_b32 s3, v2")
    a("s_and_b32 s61, s2, 7\ns_lshl_b32 s61, s61, 2\ns_lshr_b32 s61, " + ("0x32761054" if xm else "0x76543210") + ", s61\ns_and_b32 s61, s61, 7\ns_lshr_b32 s62, s2, 3")
    a("v_lshrrev_b32 v6, 4, v1\nv_and_b32 v7, 15, v1\nv_lshlrev_b32 v4, 4, v1\ns_mov_b32 s10, 2048\ns_mov_b32 s11, 0x20000")
    a("s_cmp_lt_u32 s3, 4\ns_cbranch_scc1 L_Cstub")
    if pr >= 2: a("s_setprio 1")
    a("s_sub_u32 s46, s3, 4\ns_mov_b32 s15, 0x20000")
    f_ids()
    a("s_and_b32 s45, s61, 3\ns_mul_i32 s42, s45, 7\ns_add_u32 s42, s42, s55\ns_mov_b32 s40, s57\ns_mov_b32 s41, 32\ns_mov_b32 s43, 1")
    a("s_lshl_b32 s45, s45, 3\ns_and_b32 s44, s62, 7\ns_add_u32 s44, s44, s45")
    a("s_cmp_eq_u32 s54, 1\ns_cselect_b32 s40, " + str(64 // NM - 1) + ", s40\ns_cselect_b32 s41, " + str(NM) + ", s41\ns_cselect_b32 s42, s44, s42\ns_cselect_b32 s43, 0, s43")
    a("s_lshr_b32 s44, s62, 2\ns_add_u32 s44, s44, s45\ns_and_b32 s45, s62, 3")
    a("s_cmp_lt_u32 s61, 4\ns_cselect_b32 s40, s45, s40\ns_cselect_b32 s41, " + str(na) + ", s41\ns_cselect_b32 s42, s44, s42\ns_cselect_b32 s43, 0, s43")
    a("s_cmp_eq_u32 s43, 0\ns_cselect_b32 s47, 0x2000, s10\ns_cselect_b32 s14, 0x800000, s10")
    a("s_cmp_eq_u32 s43, 1\ns_cselect_b32 s47, 0x1c00, s47\ns_cselect_b32 s14, 0x700000, s14")
    a("s_lshl_b32 s40, s40, 2\ns_add_u32 s40, s40, s46\ns_mul_i32 s40, s40, s41")
    if pg:
        assert na == 12
        a("s_lshl_b32 s44, s46, 6\ns_add_u32 s44, s44, 48\ns_cmp_eq_u32 s41, 16\ns_cselect_b32 s40, s44, s40")
        a("s_lshl_b32 s44, s45, 4\ns_add_u32 s44, s44, s40\ns_cmp_eq_u32 s41, 12\ns_cselect_b32 s40, s44, s40")
    a("s_lshl_b32 s49, s40, 3")
    a("s_mul_i32 s51, s40, s47\ns_lshl_b32 s51, s51, 2\ns_lshl_b32 s42, s42, 8\ns_add_u32 s51, s51, s42\ns_mul_i32 s41, s41, s47")
    a("v_mul_u32_u24 v2, s41, v6\nv_lshl_add_u32 v2, v7, 4, v2")
    a("s_cmp_eq_u32 s56, 1")
    a("s_waitcnt lgkmcnt(0)")
    a("s_cselect_b32 s44, s26, s24\ns_cselect_b32 s45, s27, s25\ns_cmp_eq_u32 s43, 1\ns_cselect_b32 s12, s44, s12\ns_cselect_b32 s13, s45, s13")
    for n in range(FW):
        if n: a("s_add_u32 s51, s51, s47")
        a(f"buffer_load_dwordx4 v[{G1+4*n}:{G1+4*n+3}], v2, s[12:15], s51 offen{NT}")
    if stamps: a("s_memrealtime s[98:99]")
    a("s_cbranch_scc1 L_end") if False else None
    a("s_cmp_eq_u32 s43, 1\ns_cbranch_scc1 L_SF\ns_cmp_ge_u32 s61, 4\ns_cbranch_scc1 L_SM\ns_branch L_SA")
    a.label("L_Cstub")
    if pr == 0: a("s_setprio 3")
    a("s_cmp_lg_u32 s3, 0\ns_cbranch_scc1 L_Cn0")
    a("s_mov_b32 s6, 0x10000000\ns_mov_b32 s7, 0x20000")
    a("s_waitcnt lgkmcnt(0)")
    a(f"buffer_load_dwordx4 v[{X}:{X+3}], v4, s[8:11], 0 offen")
    a(f"buffer_load_dwordx4 v[{X+4}:{X+7}], v4, s[8:11], 0 offen offset:1024")
    a(f"buffer_load_dwordx2 v[{EV}:{EV+1}], off, s[4:7], 0 sc0 sc1")
    a("s_branch L_C0")
    def sfin(NW):
        stamp(5)
        if stamps: a("s_mov_b64 s[66:67], s[98:99]")
        if m3:
            a("v_and_b32 v11, 3, v7\nv_lshl_add_u32 v11, v11, 1, v6\nv_lshlrev_b32 v11, 4, v11\nv_lshrrev_b32 v12, 2, v7\nv_lshl_or_b32 v11, v12, 14, v11")
            a(f"s_and_b32 s50, s60, 1\ns_lshl_b32 s50, s50, 2\ns_add_u32 s50, s50, s46\ns_lshl_b32 s50, s50, 16\ns_lshr_b32 s41, s60, 1\ns_lshl_b32 s41, s41, 7\ns_add_u32 s50, s50, s41\ns_add_u32 s50, s50, {M3}")
        else:
            a("v_lshl_add_u32 v11, v7, 1, v6\nv_lshlrev_b32 v11, 4, v11")
            a(f"s_lshl_b32 s50, s60, 11\ns_lshl_b32 s41, s46, 9\ns_add_u32 s50, s50, s41\ns_add_u32 s50, s50, {M3}")
        a(f"v_lshlrev_b32 v12, 5, v6\nv_add_u32 v12, {B+OV}, v12")
        lds_wait(C_OV, 0 if bare else 2, 13, slp=0, extra=f"ds_read_b128 v[{XR}:{XR+3}], v12\nds_read_b128 v[{XR+4}:{XR+7}], v12 offset:16")
        stamp(8)
        sp_perm(0)
        for k in range(NW):
            if NW - 1 - k < 8: a(f"s_waitcnt vmcnt({NW-1-k})")
            sp_mfma(W2 + 4*k, k, k == 0)
            if k % 2 == 0 and k + 2 < NW: sp_perm(k + 2)
        stamp(9)
        sp_merge()
        tag_regs([ACC, ACC+1, ACC+2, ACC+3], 5, 10)
        a("s_mov_b32 exec_hi, 0")
        a(f"buffer_store_dwordx4 v[{ACC}:{ACC+3}], v11, s[4:7], s50 offen sc1")
        if ack: a("s_waitcnt vmcnt(0)")
        a("s_barrier")
    a.label("L_SA")
    stream("A", wa)
    sfin(16)
    a("s_branch L_fin")
    a.label("L_SF")
    stream("F", wf)
    a("s_branch L_Sfin")
    a.label("L_SM")
    stream("M", wf)
    a.label("L_Sfin")
    sfin(14)
    a("s_branch L_fin")
    a.label("L_C0")
    common()
    a("s_barrier")
    a("s_waitcnt vmcnt(1)")
    stamp(2)
    for i in range(8): unpack(F + 2*i, X + i)
    S, T = F + 16, F + 17
    for i in range(4): a(f"v_pk_add_f32 v[{X+2*i}:{X+2*i+1}], v[{F+4*i}:{F+4*i+1}], v[{F+4*i+2}:{F+4*i+3}]")
    a(f"v_pk_add_f32 v[{X}:{X+1}], v[{X}:{X+1}], v[{X+2}:{X+3}]\nv_pk_add_f32 v[{X+4}:{X+5}], v[{X+4}:{X+5}], v[{X+6}:{X+7}]")
    a(f"v_pk_add_f32 v[{X}:{X+1}], v[{X}:{X+1}], v[{X+4}:{X+5}]\nv_add_f32 v{S}, v{X}, v{X+1}")
    allreduce("v_add_f32", S, T)
    a(f"v_mul_f32 v{S}, {f32(1/1024)}, v{S}")
    M = X + 2
    a(f"v_mov_b32 v{M}, v{S}\nv_mov_b32 v{M+1}, v{S}")
    for i in range(8): a(f"v_pk_add_f32 v[{F+2*i}:{F+2*i+1}], v[{F+2*i}:{F+2*i+1}], v[{M}:{M+1}] neg_lo:[0,1] neg_hi:[0,1]")
    a(f"v_pk_mul_f32 v[{X}:{X+1}], v[{F}:{F+1}], v[{F}:{F+1}]\nv_pk_mul_f32 v[{X+4}:{X+5}], v[{F+2}:{F+3}], v[{F+2}:{F+3}]")
    for i in range(2, 8):
        d = X if i % 2 == 0 else X + 4
        a(f"v_pk_fma_f32 v[{d}:{d+1}], v[{F+2*i}:{F+2*i+1}], v[{F+2*i}:{F+2*i+1}], v[{d}:{d+1}]")
    V = X + 6
    a(f"v_pk_add_f32 v[{X}:{X+1}], v[{X}:{X+1}], v[{X+4}:{X+5}]\nv_add_f32 v{V}, v{X}, v{X+1}")
    allreduce("v_add_f32", V, T)
    a(f"v_mul_f32 v{V}, {f32(1/1024)}, v{V}")
    a(f"v_cvt_pk_bf16_f32 v{T}, v{S}, v{V}")
    a(f"v_lshl_or_b32 v{EV+2}, v{T}, 16, 1")
    a(f"v_and_b32 v{V}, 0xffff0000, v{T}\nv_add_f32 v{V}, {f32(1e-5)}, v{V}")
    a(f"v_cvt_pk_bf16_f32 v{V}, v{V}, v{V}\nv_and_b32 v{V}, 0xffff0000, v{V}\nv_sqrt_f32 v{V}, v{V}")
    a(f"v_cvt_pk_bf16_f32 v{V}, v{V}, v{V}\nv_and_b32 v{V}, 0xffff0000, v{V}\nv_rcp_f32 v{EV+3}, v{V}")
    a("s_waitcnt vmcnt(0)")
    a(f"v_add_u32 v{EV}, 0x7f4a7c15, v{EV}\nv_add_u32 v{EV+1}, 0x9e3779b9, v{EV+1}")
    a("s_mov_b64 exec, 1")
    a(f"ds_write_b128 v8, v[{EV}:{EV+3}] offset:{CO+C_REC}")
    a("s_mov_b64 exec, -1")
    stamp(3)
    a("s_branch L_Cj")
    a.label("L_Cn0")
    common()
    a("v_mov_b32 v16, 0\nv_mov_b32 v17, 0\nv_mov_b32 v18, 0\nv_mov_b32 v19, 0")
    a(f"ds_write_b128 v8, v[16:19] offset:{CO}\nds_write_b128 v8, v[16:19] offset:{CO+16}\nds_write_b128 v8, v[16:19] offset:{CO+32}")
    a("s_waitcnt lgkmcnt(0)")
    a("s_barrier")
    if tlb:
        a("s_cmp_lg_u32 s3, 3\ns_cbranch_scc1 L_Cj")
        a("s_load_dwordx4 s[12:15], s[0:1], 8\ns_load_dwordx2 s[16:17], s[0:1], 32\ns_load_dwordx2 s[20:21], s[0:1], 64")
        a(f"s_lshl_b32 s40, s61, 23\ns_lshl_b32 s41, s62, 15\ns_add_u32 s40, s40, s41\ns_add_u32 s40, s40, {28672*256}")
        a(f"s_lshr_b32 s41, s60, 1\ns_lshl_b32 s42, s41, 17\ns_sub_u32 s41, s41, 64\ns_mul_i32 s43, s41, {56*2048}")
        a("s_mov_b64 exec, 1\nv_mov_b32 v16, s40\nv_mov_b32 v17, s42\nv_mov_b32 v21, s43")
        if tlb > 1: get_rec(24)
        a("s_waitcnt lgkmcnt(0)")
        a("s_cmp_ge_u32 s61, 4\ns_cbranch_scc1 L_tf")
        a("global_load_dword v18, v16, s[12:13] nt\nglobal_load_dword v19, v16, s[14:15] nt\nglobal_load_dword v20, v17, s[16:17] nt")
        a("s_branch L_tj")
        a.label("L_tf")
        a("global_load_dword v20, v21, s[20:21] nt")
        a.label("L_tj")
        a("s_waitcnt vmcnt(0)\ns_mov_b64 exec, -1")
    a.label("L_Cj")
    if pr in (1, 2): a("s_setprio 3")
    if bare: a("s_branch L_fin")
    a("s_cmp_ge_u32 s61, 4\ns_cbranch_scc1 L_CF")

    GPRD = "\n".join(f"ds_read_b128 v[{16+4*i}:{19+4*i}], v12 offset:{512*i}" for i in range(4))
    def gemv1_reduce(voff, soff, bits, vmask, gonly=False):
        a("s_mov_b32 exec_hi, 0")
        a("v_pk_add_f32 v[16:17], v[16:17], v[20:21]\nv_pk_add_f32 v[18:19], v[18:19], v[22:23]")
        a("v_pk_add_f32 v[24:25], v[24:25], v[28:29]\nv_pk_add_f32 v[26:27], v[26:27], v[30:31]")
        a("v_pk_add_f32 v[32:33], v[16:17], v[24:25]\nv_pk_add_f32 v[34:35], v[18:19], v[26:27]")
        tag_regs([32, 33, 34, 35], vmask, bits)
        publish(32, voff, soff, gonly)
        a("s_mov_b64 exec, -1")
    KF = 64; VF = 96; QR = 36; QB = 16
    a(f"s_lshl_b32 s50, s61, 14\ns_add_u32 s50, s50, {MQ}")
    a("s_and_b32 s40, s62, 3\ns_lshl_b32 s40, s40, 10\ns_add_u32 s51, s50, s40\ns_lshr_b32 s40, s62, 2\ns_lshl_b32 s40, s40, 7\ns_add_u32 s51, s51, s40")
    a(f"s_lshl_b32 s49, s61, 12\ns_lshl_b32 s40, s3, 10\ns_add_u32 s49, s49, s40\ns_add_u32 s49, s49, {MQ2}")
    a("s_lshl_b32 s40, s3, 12\ns_add_u32 s50, s50, s40")
    a("v_lshrrev_b32 v11, 3, v1\nv_lshlrev_b32 v11, 12, v11\nv_and_b32 v10, 7, v1\nv_lshl_or_b32 v11, v10, 4, v11\nv_mov_b32 v13, 0xff")
    get_rec(16)
    a("s_cmp_lg_u32 s3, 1\ns_cbranch_scc1 L_Aq")
    a(f"v_and_b32 v12, 0x1f0, v4\nv_add_u32 v12, {B+GP}, v12")
    lds_wait(C_G, 4, 10, extra=GPRD)
    gemv1_reduce(11, 51, 8, 13)
    stamp(9)
    a.label("L_Aq")
    if True:
        a("v_bfe_u32 v2, v1, 1, 2\nv_lshlrev_b32 v2, 7, v2\nv_lshrrev_b32 v3, 3, v1\nv_lshl_or_b32 v2, v3, 4, v2\nv_and_b32 v3, 1, v1\nv_lshl_or_b32 v2, v3, 3, v2")
        a(f"s_lshl_b32 s40, s3, 9\ns_add_u32 s40, s40, {B}\nv_add_u32 v2, s40, v2")
        a("v_and_b32 v10, 7, v7\nv_lshlrev_b32 v12, 7, v6\nv_lshl_or_b32 v12, v10, 4, v12")
        a("v_lshrrev_b32 v5, 3, v7")
        a("v_lshl_add_u32 v3, v5, 3, v12\nv_add_u32 v3, s40, v3")
        a(f"v_add_u32 v12, {B}, v12\nv_lshl_add_u32 v0, v5, 10, v12")
        a("v_lshlrev_b32 v11, 14, v10\nv_lshl_or_b32 v11, v5, 6, v11\nv_lshl_or_b32 v11, v6, 4, v11")
        a(f"s_lshl_b32 s53, s61, 17\ns_lshl_b32 s40, s3, 12\ns_add_u32 s53, s53, s40\ns_and_b32 s40, s62, 3\ns_lshl_b32 s40, s40, 10\ns_add_u32 s53, s53, s40\ns_lshr_b32 s40, s62, 2\ns_lshl_b32 s40, s40, 7\ns_add_u32 s53, s53, s40\ns_add_u32 s53, s53, {MO}")
        a(f"s_lshl_b32 s52, s61, 12\ns_lshl_b32 s40, s62, 4\ns_add_u32 s52, s52, s40\ns_add_u32 s52, s52, {MML}")
        a("v_mov_b32 v13, 0xfff\nv_cmp_gt_u32 s[54:55], 8, v7")
        a("v_lshrrev_b32 v14, 2, v1\nv_lshlrev_b32 v14, 8, v14\nv_bfe_u32 v15, v1, 1, 4\nv_lshl_or_b32 v14, v15, 4, v14\nv_and_b32 v15, 1, v1\nv_lshl_or_b32 v14, v15, 3, v14")
        a("s_lshl_b32 s40, s3, 6\nv_xor_b32 v14, s40, v14\nv_xor_b32 v15, 32, v14")
        a("v_xor_b32 v56, v6, v7\nv_lshlrev_b32 v56, 4, v56\nv_lshl_or_b32 v56, v7, 8, v56\ns_lshl_b32 s40, s3, 13\nv_add_u32 v56, s40, v56")
        for s in range(1, 4): a(f"v_xor_b32 v{56+s}, {64*s}, v56")
        a(f"s_mov_b32 s40, {f32(128**-0.5)}\ns_mov_b32 s41, {f32(LOG2E)}")
    def pre_k():
        lds_wait(C_K, 4, 10)
        stamp(4)
        for T in range(2):
            for s in range(4):
                r = KF + 16*T + 4*s
                a(f"ds_read_b128 v[{r}:{r+3}], v{56+s} offset:{L_K + 4096*T}")
    lds_wait(C_TQ, tcq, 10)
    poll([(QR + 16, 4, "s49", 0)] + [(QR + 4*p, 4, 0, 1024*p) for p in range(4)], [50], list(range(QR, QR+20)), 8, 10, pre=pre_k, delay=dq, slot=12)
    stamp(5)
    a(f"v_pk_add_f32 v[{QR+12}:{QR+13}], v[{QR+12}:{QR+13}], v[{QR+16}:{QR+17}]\nv_pk_add_f32 v[{QR+14}:{QR+15}], v[{QR+14}:{QR+15}], v[{QR+18}:{QR+19}]")
    a(f"v_pk_add_f32 v[{QR}:{QR+1}], v[{QR}:{QR+1}], v[{QR+4}:{QR+5}]\nv_pk_add_f32 v[{QR+2}:{QR+3}], v[{QR+2}:{QR+3}], v[{QR+6}:{QR+7}]")
    a(f"v_pk_add_f32 v[{QR+8}:{QR+9}], v[{QR+8}:{QR+9}], v[{QR+12}:{QR+13}]\nv_pk_add_f32 v[{QR+10}:{QR+11}], v[{QR+10}:{QR+11}], v[{QR+14}:{QR+15}]")
    a(f"v_pk_add_f32 v[{QR}:{QR+1}], v[{QR}:{QR+1}], v[{QR+8}:{QR+9}]\nv_pk_add_f32 v[{QR+2}:{QR+3}], v[{QR+2}:{QR+3}], v[{QR+10}:{QR+11}]")
    a(f"v_cvt_pk_bf16_f32 v16, v{QR}, v{QR+1}\nv_cvt_pk_bf16_f32 v17, v{QR+2}, v{QR+3}")
    a(f"ds_write_b64 v2, v[16:17] offset:{QBI}")
    signal(C_QB)
    lds_wait(C_QB, 4, 10, slp=0, extra="\n".join(f"ds_read_b128 v[{QB+4*s}:{QB+4*s+3}], v12 offset:{QBI + 512*s}" for s in range(4)))
    SC = 32
    for s in range(4):
        for T in range(2):
            c = "0" if s == 0 else f"v[{SC+4*T}:{SC+4*T+3}]"
            a(f"v_mfma_f32_16x16x32_bf16 v[{SC+4*T}:{SC+4*T+3}], v[{KF+16*T+4*s}:{KF+16*T+4*s+3}], v[{QB+4*s}:{QB+4*s+3}], {c}")
    for i in range(4): a(f"v_cndmask_b32 v{40+i}, v{SC+4+i}, v{SC+i}, s[54:55]")
    a("v_cvt_pk_bf16_f32 v44, v40, v41\nv_cvt_pk_bf16_f32 v45, v42, v43")
    unpack(40, 44); unpack(42, 45)
    for i in range(4): a(f"v_mul_f32 v{40+i}, s40, v{40+i}")
    a("v_cvt_pk_bf16_f32 v44, v40, v41\nv_cvt_pk_bf16_f32 v45, v42, v43")
    a(f"ds_write_b64 v3, v[44:45] offset:{SCX}")
    signal(C_SC)
    lds_wait(C_SC, 4, 10, slp=0, extra=f"ds_read_b128 v[16:19], v0 offset:{SCX}\nds_read_b128 v[20:23], v0 offset:{SCX+512}")
    P = 32
    for i in range(8): unpack(P + 2*i, 16 + i)
    ML = 60
    a(f"v_max3_f32 v{ML}, v{P}, v{P+1}, v{P+2}\nv_max3_f32 v24, v{P+3}, v{P+4}, v{P+5}\nv_max3_f32 v25, v{P+6}, v{P+7}, v{P+8}\nv_max3_f32 v26, v{P+9}, v{P+10}, v{P+11}")
    a(f"v_max3_f32 v{ML}, v{ML}, v{P+12}, v{P+13}\nv_max3_f32 v24, v24, v{P+14}, v{P+15}\nv_max3_f32 v{ML}, v{ML}, v25, v26\nv_max_f32 v{ML}, v{ML}, v24")
    a("v_mov_b32 v26, s41\nv_mov_b32 v27, s41")
    allreduce("v_max_f32", ML, 24, lo=(8,))
    a(f"v_mul_f32 v24, s41, v{ML}\nv_mul_f32 v25, s41, v{ML}")
    for i in range(8): a(f"v_pk_fma_f32 v[{P+2*i}:{P+2*i+1}], v[{P+2*i}:{P+2*i+1}], v[26:27], v[24:25] neg_lo:[0,0,1] neg_hi:[0,0,1]")
    PA = 16
    for i in range(8):
        a(f"v_exp_f32 v{P+2*i}, v{P+2*i}\nv_exp_f32 v{P+2*i+1}, v{P+2*i+1}")
        if i: a(f"v_cvt_pk_bf16_f32 v{PA+i-1}, v{P+2*i-2}, v{P+2*i-1}")
    a(f"v_cvt_pk_bf16_f32 v{PA+7}, v{P+14}, v{P+15}")
    a("s_cmp_lg_u32 s3, 3\ns_cbranch_scc1 L_Apv")
    for i in range(4): a(f"v_pk_add_f32 v[{P+4*i}:{P+4*i+1}], v[{P+4*i}:{P+4*i+1}], v[{P+4*i+2}:{P+4*i+3}]")
    a(f"v_pk_add_f32 v[{P}:{P+1}], v[{P}:{P+1}], v[{P+4}:{P+5}]\nv_pk_add_f32 v[{P+8}:{P+9}], v[{P+8}:{P+9}], v[{P+12}:{P+13}]")
    a(f"v_pk_add_f32 v[{P}:{P+1}], v[{P}:{P+1}], v[{P+8}:{P+9}]\nv_add_f32 v{ML+1}, v{P}, v{P+1}")
    allreduce("v_add_f32", ML+1, 48, lo=(8,))
    a(f"v_mov_b32 v{ML+2}, v{ML}\nv_mov_b32 v{ML+3}, v{ML+1}")
    tag_regs([ML, ML+1, ML+2, ML+3], 13, 12, rn=False)
    a("s_mov_b64 exec, 0xff")
    a("v_lshlrev_b32 v48, 9, v1")
    publish(ML, 48, 52)
    a("s_mov_b64 exec, -1")
    a.label("L_Apv")
    stamp(1)
    lds_wait(C_V, 4, 10, slp=0)
    stamp(10)
    OA = 64
    for u in range(4):
        for dt in range(2):
            for e in range(2):
                r = VF + 8*u + 4*dt + 2*e
                a(f"ds_read_b64_tr_b16 v[{r}:{r+1}], v{14+dt} offset:{L_V + 4096*(2*u+e)}")
        if u == 2: a("s_waitcnt lgkmcnt(8)")
        if u >= 2:
            pass
    for u in range(4):
        a(f"s_waitcnt lgkmcnt({12-4*u})")
        for dt in range(2):
            ac = OA + 8*(u >> 1) + 4*dt
            c = "0" if u % 2 == 0 else f"v[{ac}:{ac+3}]"
            a(f"v_mfma_f32_16x16x32_bf16 v[{ac}:{ac+3}], v[{VF+8*u+4*dt}:{VF+8*u+4*dt+3}], v[{PA+4*(u&1)}:{PA+4*(u&1)+3}], {c}")
    for r in range(4): a(f"v_cndmask_b32 v{OA+4+r}, v{OA+8+r}, v{OA+4+r}, s[54:55]")
    for r in range(4): a(f"v_cndmask_b32 v{OA+r}, v{OA+12+r}, v{OA+r}, s[54:55]")
    for r in range(4): a(f"v_add_f32_dpp v{OA+r}, v{OA+4+r}, v{OA+r} row_ror:8 row_mask:0xf bank_mask:0xf")
    tag_regs([OA+r for r in range(4)], 13, 12, rn=False)
    publish(OA, 11, 53)
    stamp(6)
    if redf: a("s_cmp_ge_u32 s3, 2\ns_cbranch_scc1 L_fin")
    else: a("s_cmp_eq_u32 s3, 2\ns_cbranch_scc1 L_RED\ns_cmp_eq_u32 s3, 3\ns_cbranch_scc1 L_fin")
    a(f"s_lshr_b32 s50, s60, 1\ns_lshl_b32 s50, s50, 13\ns_lshl_b32 s40, s3, 12\ns_add_u32 s50, s50, s40\ns_add_u32 s50, s50, {MO}")
    a(f"s_lshl_b32 s51, s61, 12\ns_lshr_b32 s40, s62, 2\ns_lshl_b32 s40, s40, 9\ns_add_u32 s51, s51, s40\ns_add_u32 s51, s51, {MML}")
    a("v_lshrrev_b32 v2, 3, v1\nv_lshlrev_b32 v2, 2, v2\nv_and_b32 v3, 3, v1\nv_or_b32 v2, v2, v3\nv_lshlrev_b32 v2, 4, v2")
    a("v_and_b32 v12, 7, v1\nv_lshlrev_b32 v12, 3, v12\nv_lshrrev_b32 v3, 5, v1\nv_lshl_or_b32 v12, v3, 1, v12\nv_bfe_u32 v3, v1, 4, 1\nv_lshl_or_b32 v12, v3, 2, v12")
    a(f"s_lshl_b32 s40, s3, 6\ns_add_u32 s40, s40, {B+OV}\nv_add_u32 v12, s40, v12")
    MLR = 16; OR_ = 20
    oloads = [(OR_ + 4*i, 4, 0, 1024*i) for i in range(4)]
    lds_wait(C_TO, tco, 10)
    if ok > 1:
        def mko(sb, wk):
            a(f"buffer_load_dwordx4 v[{sb}:{sb+3}], v2, s[4:7], s{wk[1]} offen sc1")
            for i in range(4): a(f"buffer_load_dwordx4 v[{sb+4+4*i}:{sb+7+4*i}], v4, s[4:7], s{wk[0]} offen offset:{1024*i} sc1")
        a("s_mov_b32 s43, 0")
        ppoll(mko, 5, 20, [50, 51], MLR, 72, ok, ogap, 12, 10, step=ostep)
        stamp(7)
    else:
        def pre_o():
            poll(oloads, [50], None, 12, 10, parts="issue")
        poll([(MLR, 2, 0, 0)], [51], list(range(MLR, MLR+4)), 12, 10, pre=pre_o, first_wait=4, wk0=47, slot=12)
    allreduce("v_max_f32", MLR+2, 10, lo=(8, 2, 1))
    a(f"v_sub_f32 v{MLR}, v{MLR}, v{MLR+2}\nv_mul_f32 v{MLR}, s41, v{MLR}\nv_exp_f32 v{MLR}, v{MLR}")
    a(f"v_mul_f32 v{MLR+1}, v{MLR}, v{MLR+1}")
    assert ok > 1
    L_ = MLR + 1
    fm = [f"v_mul_f32_dpp v{40+r}, v{MLR}, v{OR_+r} quad_perm:[0,0,0,0] row_mask:0xf bank_mask:0xf" for r in range(4)]
    fm += [f"v_fmac_f32_dpp v{40+r}, v{MLR}, v{OR_+4*i+r} quad_perm:[{i},{i},{i},{i}] row_mask:0xf bank_mask:0xf" for i in range(1, 4) for r in range(4)]
    red = [[f"v_add_f32_dpp v{L_}, v{L_}, v{L_} row_ror:{k} row_mask:0xf bank_mask:0xf"] for k in (8, 2, 1)]
    red[-1].append(f"v_mov_b32 v10, v{L_}")
    red += [[f"v_permlane16_swap_b32 v{L_}, v10", f"v_add_f32 v{L_}, v{L_}, v10", f"v_mov_b32 v10, v{L_}"],
            [f"v_permlane32_swap_b32 v{L_}, v10", f"v_add_f32 v{L_}, v{L_}, v10"], [f"v_rcp_f32 v{L_}, v{L_}"]]
    while fm:
        for x in fm[:2]: a(x)
        fm = fm[2:]
        if red:
            for x in red.pop(0): a(x)
    tred4(40)
    a("v_add_f32_dpp v40, v40, v40 row_ror:8 row_mask:0xf bank_mask:0xf")
    a(f"v_mul_f32 v40, v40, v{L_}")
    a("v_cvt_pk_bf16_f32 v40, v40, v40")
    a("ds_write_b16 v12, v40")
    signal(C_OV)
    stamp(8)
    a("s_branch L_fin")

    a.label("L_CF")
    if not redf: a("s_cmp_eq_u32 s3, 3\ns_cbranch_scc1 L_fin")
    get_rec(16)
    a("s_cmp_ge_u32 s3, 2\ns_cbranch_scc1 L_RED")
    f_ids()
    a("s_cmp_eq_u32 s3, 1\ns_cbranch_scc1 L_CF1")
    a("s_cmp_eq_u32 s54, 0\ns_cbranch_scc1 L_fin")
    a("v_lshrrev_b32 v11, 3, v1\nv_lshlrev_b32 v11, 10, v11\nv_and_b32 v10, 7, v1\nv_lshl_or_b32 v11, v10, 4, v11\nv_mov_b32 v13, 0xff")
    a(f"s_sub_u32 s51, s61, 4\ns_lshl_b32 s51, s51, 12\ns_and_b32 s40, s62, 7\ns_lshl_b32 s40, s40, 7\ns_add_u32 s51, s51, s40\ns_add_u32 s51, s51, {MQ2}")
    a(f"v_and_b32 v12, 0x1f0, v4\nv_add_u32 v12, {B+QBI}, v12")
    lds_wait(C_K, 4, 10, extra=GPRD)
    gemv1_reduce(11, 51, 8, 13, gonly=True)
    stamp(6)
    a("s_branch L_fin")
    a.label("L_CF1")
    a("s_lshl_b32 s40, s55, 5\nv_add_u32 v11, s40, v1")
    a("v_mul_u32_u24 v12, 4682, v11\nv_lshrrev_b32 v12, 16, v12\nv_mul_u32_u24 v13, 14, v12\nv_sub_u32 v11, v11, v13")
    a("v_lshlrev_b32 v12, 10, v12\nv_lshl_or_b32 v11, v11, 4, v12\nv_mov_b32 v13, 0x3ff")
    a(f"s_sub_u32 s40, s61, 4\ns_lshl_b32 s50, s40, 14\ns_add_u32 s50, s50, {MH}\ns_lshl_b32 s49, s40, 12\ns_add_u32 s49, s49, {MH2 - 13*1024}")
    a("s_cmp_ge_u32 s57, 2\ns_cselect_b32 s51, s49, s50")
    a("s_and_b32 s40, s57, 1\ns_lshl_b32 s40, s40, 9\ns_add_u32 s51, s51, s40\ns_lshl_b32 s40, s56, 8\ns_add_u32 s51, s51, s40")
    a("s_lshr_b32 s41, s62, 1\ns_lshl_b32 s40, s41, 10\ns_add_u32 s50, s50, s40\ns_add_u32 s49, s49, s40")
    a("s_mov_b32 s52, 0x3fff3fff\ns_mov_b32 s53, 0x3fff3fff")
    a("v_bfe_u32 v3, v1, 4, 1\nv_lshl_or_b32 v2, v7, 1, v3")
    a(f"v_mul_u32_u24 v5, 37, v2\nv_lshrrev_b32 v5, 8, v5\nv_add_lshl_u32 v2, v2, v5, 2\nv_lshrrev_b32 v3, 5, v1\nv_lshl_add_u32 v2, v3, 1, v2\nv_add_u32 v2, {B+OV}, v2")
    a("s_mul_i32 s41, s41, 14\nv_add_u32 v10, s41, v7\nv_cmp_lt_u32 vcc, 191, v10\ns_mov_b64 s[56:57], vcc")
    a(f"v_and_b32 v12, 0x1f0, v4\nv_add_u32 v12, {B+GP}, v12")
    lds_wait(C_G, 4, 10, extra=GPRD)
    gemv1_reduce(11, 51, 10, 13)
    stamp(9)
    lds_wait(C_TO, tco, 10)
    hl = [(16, 4, 0, 0), "\n".join(f"v_mov_b32 v{20+i}, s{34+i}" for i in range(4)), "s_and_saveexec_b64 s[58:59], s[56:57]\ns_cbranch_execz 2", (20, 4, 1, 0), "s_mov_b64 exec, s[58:59]"]
    if hk > 1:
        a("s_sub_u32 s40, s50, s49\nv_add_u32 v14, s40, v4\nv_cndmask_b32 v14, v14, v4, s[56:57]")
        def mkh(sb, wk):
            a(f"buffer_load_dwordx4 v[{sb}:{sb+3}], v4, s[4:7], s{wk[0]} offen sc1")
            a(f"buffer_load_dwordx4 v[{sb+4}:{sb+7}], v14, s[4:7], s{wk[1]} offen sc1")
        k0 = 0.7978845608028654; k1 = 0.044715
        a(f"s_mov_b32 s40, {f32(-2*LOG2E*k0*k1)}\nv_mov_b32 v28, {f32(-2*LOG2E*k0)}\nv_mov_b32 v9, 2")
        a("s_mov_b32 s43, 0")
        ppoll(mkh, 2, 8, [50, 49], 16, 40, hk, hgap, 10, 10, lanemask="s[52:53]", step=hstep)
        a("s_mov_b64 exec, s[56:57]")
    else:
        poll(hl, [50, 49], list(range(16, 24)), 10, 10, lanemask="s[52:53]", delay=dh, slp=4)
    a("v_pk_add_f32 v[16:17], v[16:17], v[20:21]\nv_pk_add_f32 v[18:19], v[18:19], v[22:23]")
    a("s_mov_b64 exec, -1")
    stamp(7)
    a("v_permlane32_swap_b32 v16, v17\nv_permlane32_swap_b32 v18, v19")
    a("v_add_f32 v16, v16, v17\nv_add_f32 v18, v18, v19")
    a("v_permlane16_swap_b32 v16, v18")
    a("v_cvt_pk_bf16_f32 v20, v16, v18")
    unpack(16, 20)
    a("v_mul_f32 v20, v16, v16\nv_fma_f32 v20, v20, s40, v28\nv_mul_f32 v20, v20, v16\nv_exp_f32 v20, v20")
    a("v_add_f32 v20, 1.0, v20\nv_rcp_f32 v20, v20\nv_mul_f32 v20, v20, v16")
    a("v_cvt_pk_bf16_f32 v20, v20, v20\nv_lshlrev_b32 v20, 16, v20\nv_mul_f32 v20, v20, v17\nv_cvt_pk_bf16_f32 v20, v20, v20")
    a("s_mov_b64 exec, s[52:53]")
    a("ds_write_b16 v2, v20")
    signal(C_OV)
    stamp(8)
    a("s_branch L_fin")

    a.label("L_RED")
    if nat: a("s_barrier")
    a("s_load_dwordx2 s[24:25], s[0:1], 72\ns_mov_b32 s26, 2048\ns_mov_b32 s27, 0x20000")
    if redf: a("s_lshl_b32 s60, s60, 1\ns_add_u32 s60, s60, s3\ns_sub_u32 s60, s60, 258")
    a("s_lshl_b32 s52, s60, 3")
    a("v_lshrrev_b32 v3, 5, v1\nv_bfe_u32 v5, v1, 4, 1\nv_lshl_or_b32 v3, v5, 1, v3\nv_lshlrev_b32 v3, 1, v3")
    if nat: a("s_waitcnt lgkmcnt(0)")
    a("v_mov_b32 v24, 0\nbuffer_load_short_d16_hi v24, v3, s[8:11], s52 offen" + (" sc1" if nat == 2 else ""))
    a("v_mov_b32 v26, s38\nv_mov_b32 v27, s39")
    if xf: a(f"s_lshl_b32 s53, s61, 7\ns_add_u32 s53, s53, {MF}\ns_lshl_b32 s54, s62, 2\ns_add_u32 s54, s54, s53\nv_lshlrev_b32 v5, 2, v1")
    if m3:
        a(f"s_lshr_b32 s50, s60, 3\ns_lshl_b32 s50, s50, 14\ns_and_b32 s40, s60, 7\ns_lshl_b32 s40, s40, 4\ns_add_u32 s50, s50, s40\ns_add_u32 s50, s50, {M3}\ns_add_u32 s51, s50, 8192\nv_lshlrev_b32 v2, 7, v1")
    else:
        a(f"s_lshl_b32 s50, s60, 4\ns_add_u32 s50, s50, {M3}\ns_add_u32 s51, s50, 0x40000\nv_lshlrev_b32 v2, 12, v1")
    a("s_waitcnt vmcnt(0)" if nat else "s_waitcnt lgkmcnt(0)\ns_barrier")
    stamp(9)
    if xf:
        a("s_mov_b64 exec, 1")
        a("buffer_store_dword v26, off, s[4:7], s54")
        a("s_mov_b32 exec_lo, -1\ns_mov_b32 s44, 0")
        a.label("L_xf")
        a("buffer_load_dword v28, v5, s[4:7], s53 offen sc1")
        a("s_add_u32 s44, s44, 1")
        a("s_waitcnt vmcnt(0)")
        a("v_cmp_eq_u32 vcc, s38, v28")
        a(f"s_bcnt1_i32_b64 s45, vcc\ns_cmp_ge_u32 s45, {xneed}\ns_cbranch_scc1 L_xf_ok")
        a(f"s_cmp_lt_u32 s44, {xmax}\ns_cbranch_scc1 L_xf")
        a.label("L_xf_ok")
        a("s_mov_b64 exec, -1")
    if rk == 1:
        poll([(16, 2, 0, 0), (20, 2, 1, 0)], [50, 51], list(range(16, 24)), 10, 10, delay=dr, slp=rsleep, dual=False)
    else:
        for i in range(4): a(f"s_and_b32 s{34+i}, s{30+i}, 0x3ff")
        def rissue(k):
            a(f"buffer_load_dwordx4 v[{32+8*k}:{35+8*k}], v2, s[4:7], s50 offen sc1")
            a(f"buffer_load_dwordx4 v[{36+8*k}:{39+8*k}], v2, s[4:7], s51 offen sc1")
        backoff(dr)
        stamp(14)
        for k in range(rk):
            if k: backoff(rgap)
            rissue(k)
        a("s_mov_b32 s44, 0")
        a.label("L_rp")
        for k in range(rk):
            a(f"s_waitcnt vmcnt({2*(rk-1)})")
            for i in range(8): a(f"v_xor_b32 v{16+i}, s{34 + i % 4}, v{32+8*k+i}")
            a("v_or3_b32 v10, v16, v17, v18\nv_or3_b32 v10, v10, v19, v20\nv_or3_b32 v10, v10, v21, v22\nv_or_b32 v10, v10, v23\nv_and_b32 v10, 0x3ff, v10")
            a("v_cmp_ne_u32 vcc, 0, v10\ns_and_b64 exec, vcc, exec\ns_cbranch_scc0 L_rp_ok")
            rissue(k)
        a(f"s_add_u32 s44, s44, 1\ns_cmp_lt_u32 s44, {SPIN_MAX}\ns_cbranch_scc1 L_rp")
        a.label("L_rp_ok")
        a("s_mov_b64 exec, -1")
    stamp(10)
    a("v_permlane32_swap_b32 v16, v17\nv_permlane32_swap_b32 v18, v19\nv_permlane32_swap_b32 v20, v21\nv_permlane32_swap_b32 v22, v23")
    a("v_add_f32 v16, v16, v17\nv_add_f32 v18, v18, v19\nv_add_f32 v20, v20, v21\nv_add_f32 v22, v22, v23")
    a("v_permlane16_swap_b32 v16, v18\nv_permlane16_swap_b32 v20, v22")
    a("v_add_f32 v16, v16, v18\nv_add_f32 v20, v20, v22")
    for k in (8, 4, 2, 1):
        for r in (16, 20): a(f"v_add_f32_dpp v{r}, v{r}, v{r} row_ror:{k} row_mask:0xf bank_mask:0xf")
    a("v_cvt_pk_bf16_f32 v16, v16, v20")
    a("v_lshlrev_b32 v17, 16, v16\nv_and_b32 v18, 0xffff0000, v16")
    a("v_add_f32 v17, v17, v24\nv_cvt_pk_bf16_f32 v17, v17, v17\nv_lshlrev_b32 v17, 16, v17")
    a("v_add_f32 v16, v17, v18\nv_cvt_pk_bf16_f32 v16, v16, v16")
    a("s_mov_b32 exec_lo, 0x10001\ns_mov_b32 exec_hi, 0x10001")
    a("buffer_store_short v16, v3, s[24:27], s52 offen" + {0: "", 1: " sc1", 2: " nt"}[osc])
    a("s_mov_b64 exec, 1")
    a("s_cmp_lg_u32 s60, 0\ns_cbranch_scc1 L_fin")
    a("buffer_store_dwordx2 v[26:27], off, s[4:7], 0" + (" sc0 sc1" if esc else ""))
    a("s_branch L_fin")

    a.label("L_fin")
    stamp(11)
    stamp_out()
    a.label("L_end")
    a("s_endpgm")
    a.raw('.section .rodata,"a"'); a.raw(".p2align 6"); a.raw(f".amdhsa_kernel {NAME}_kernel")
    nv = 128 if v128 else 192
    a.raw(f"  .amdhsa_next_free_vgpr {nv}"); a.raw(f"  .amdhsa_next_free_sgpr {100 if stamps else 64}"); a.raw(f"  .amdhsa_accum_offset {nv}")
    a.raw("  .amdhsa_group_segment_fixed_size 0"); a.raw("  .amdhsa_kernarg_size 96"); a.raw("  .amdhsa_user_sgpr_count 2")
    a.raw("  .amdhsa_user_sgpr_kernarg_segment_ptr 1"); a.raw("  .amdhsa_system_sgpr_workgroup_id_x 1"); a.raw(".end_amdhsa_kernel")
    return a.text()

if __name__ == "__main__":
    for spec in sys.argv[1:]:
        nm, _, kv = spec.partition(":")
        kw = {}
        for p in kv.split(","):
            if p:
                k, v = p.split("="); kw[k] = int(v)
        open(nm + ".s", "w").write(gen(**kw))
        open(nm + "_st.s", "w").write(gen(stamps=True, **kw))
```
